```python
import torch

def _softmax(x, axis=-1):
    return torch.softmax(x, dim=axis)
def _gelu(x):
    return torch.nn.functional.gelu(x, approximate="tanh")
def _silu(x):
    return torch.nn.functional.silu(x)
def _sigmoid(x):
    return torch.sigmoid(x)
def _layernorm(x, axis=-1, eps=1e-5):
    m = x.mean(dim=axis, keepdim=True)
    v = x.var(dim=axis, keepdim=True, unbiased=False)
    return (x - m) / torch.sqrt(v + eps)
def _scatter_add(tgt, idx, src, axis=0):
    return tgt.clone().index_add_(axis, idx, src)
def _segment_sum(src, seg, n):
    out = torch.zeros((n,) + src.shape[1:], dtype=src.dtype)
    return out.index_add_(0, seg, src)
def _pad(x, pw):
    flat = tuple(v for pair in reversed(pw) for v in pair)
    return torch.nn.functional.pad(x, flat)

kernel_name = 'concat_heads__gqa_block_cached__sliding_block_cached__decode'

def setup_inputs():

    _w = (lambda a: (lambda t: t.to(torch.bfloat16) if t.is_floating_point() else t)(torch.as_tensor(a)))
    def _A_setup():
        B, Sq, D = 2, 1, 512
        Hq, Hkv, Sk, Dh = 32, 8, 32768, 128
        assert Hq % Hkv == 0, (Hq, Hkv)
        return {
            "x": _w((lambda *s: torch.randn(*s, dtype=torch.bfloat16) * 1.6)(B, Sq, D)),
            "k_cache": _w((lambda *s: torch.randn(*s, dtype=torch.bfloat16) * 1.6)(B, Hkv, Sk, Dh)),
            "v_cache": _w((lambda *s: torch.randn(*s, dtype=torch.bfloat16) * 0.05)(B, Hkv, Sk, Dh)),
            "wq": _w((lambda *s: torch.randn(*s, dtype=torch.bfloat16) * 1.6)(D, Hq * Dh) * (D ** -0.5)),
            "wo": _w((lambda *s: torch.randn(*s, dtype=torch.bfloat16) * 0.05)(Hq * Dh, D) * ((Hq * Dh) ** -0.5)),
        }
    _A_in = _A_setup()

    def _B_setup():
        B, Sq, D = 2, 1, 512
        Hq, Hkv, Sk, Dh = 32, 8, 32768, 128
        assert Hq % Hkv == 0, (Hq, Hkv)
        return {
            "x": _w((lambda *s: torch.randn(*s, dtype=torch.bfloat16) * 1.6)(B, Sq, D)),
            "k_cache": _w((lambda *s: torch.randn(*s, dtype=torch.bfloat16) * 1.6)(B, Hkv, Sk, Dh)),
            "v_cache": _w((lambda *s: torch.randn(*s, dtype=torch.bfloat16) * 0.05)(B, Hkv, Sk, Dh)),
            "wq": _w((lambda *s: torch.randn(*s, dtype=torch.bfloat16) * 1.6)(D, Hq * Dh) * (D ** -0.5)),
            "wo": _w((lambda *s: torch.randn(*s, dtype=torch.bfloat16) * 0.05)(Hq * Dh, D) * ((Hq * Dh) ** -0.5)),
        }
    _B_in = _B_setup()

    return {
        "A_x": _A_in["x"],
        "A_k_cache": _A_in["k_cache"],
        "A_v_cache": _A_in["v_cache"],
        "A_wq": _A_in["wq"],
        "A_wo": _A_in["wo"],
        "B_x": _B_in["x"],
        "B_k_cache": _B_in["k_cache"],
        "B_v_cache": _B_in["v_cache"],
        "B_wq": _B_in["wq"],
        "B_wo": _B_in["wo"],
    }

def reference(A_x, A_k_cache, A_v_cache, A_wq, A_wo, B_x, B_k_cache, B_v_cache, B_wq, B_wo):
    def _A_ref(x, k_cache, v_cache, wq, wo):
        B, Sq, D = x.shape
        Hq, Dh = 32, 128
        Hkv = k_cache.shape[1]
        rep = Hq // Hkv
        q = (lambda x, *d: x.permute(*d))((x @ wq).reshape(B, Sq, Hq, Dh), 0, 2, 1, 3)
        k = (lambda x, n, axis: torch.repeat_interleave(x, n, dim=axis))(k_cache, rep, axis=1)
        v = (lambda x, n, axis: torch.repeat_interleave(x, n, dim=axis))(v_cache, rep, axis=1)
        scores = torch.einsum("bhqd,bhkd->bhqk", q, k) * (Dh ** -0.5)
        p = _softmax(scores, axis=-1)
        o = torch.einsum("bhqk,bhkd->bhqd", p, v)
        return (lambda x, *d: x.permute(*d))(o, 0, 2, 1, 3).reshape(B, Sq, Hq * Dh) @ wo

    def _B_ref(x, k_cache, v_cache, wq, wo):
        B, Sq, D = x.shape
        Hq, Dh = 32, 128
        Hkv, Sk = k_cache.shape[1], k_cache.shape[2]
        W = min(4096, max(256, Sk // 4))
        rep = Hq // Hkv
        q = (lambda x, *d: x.permute(*d))((x @ wq).reshape(B, Sq, Hq, Dh), 0, 2, 1, 3)
        k = (lambda x, n, axis: torch.repeat_interleave(x, n, dim=axis))(k_cache[:, :, Sk - W:, :], rep, axis=1)
        v = (lambda x, n, axis: torch.repeat_interleave(x, n, dim=axis))(v_cache[:, :, Sk - W:, :], rep, axis=1)
        scores = torch.einsum("bhqd,bhkd->bhqk", q, k) * (Dh ** -0.5)
        p = _softmax(scores, axis=-1)
        o = torch.einsum("bhqk,bhkd->bhqd", p, v)
        return (lambda x, *d: x.permute(*d))(o, 0, 2, 1, 3).reshape(B, Sq, Hq * Dh) @ wo

    a = _A_ref(A_x, A_k_cache, A_v_cache, A_wq, A_wo)
    b = _B_ref(B_x, B_k_cache, B_v_cache, B_wq, B_wo)
    return torch.concatenate([a, b], axis=-1)
```

```python
import sys, struct

KN = 'concat_heads__gqa_block_cached__sliding_block_cached__decode'

def f2u(x):
    return struct.unpack('<I', struct.pack('<f', x))[0]

WS_EPOCH = 0x0
WS_QG    = 0x1000
WS_PART  = 0x20000
WS_STAT  = 0x120000
WS_OUTP  = 0x130000
WS_STAMP = 512 << 20
L_WQ  = 0x0
L_RES = 0x0
L_WO  = 0x8000
L_ST  = 0x10000
L_QP  = 0x10200
L_Q   = 0x10A00
L_O   = 0x11200
LDS_BYTES = 86016
L_SM = 0x10000
R_ST, R_QP, R_Q, R_O = L_ST - L_SM, L_QP - L_SM, L_Q - L_SM, L_O - L_SM

TAGC = 0x9E3779B9
SPIN = 1 << 17

class A:
    def __init__(self):
        self.L = []
    def __call__(self, s):
        for line in s.strip('\n').split('\n'):
            self.L.append('  ' + line.strip())
    def lab(self, s):
        self.L.append(s + ':')
    def raw(self, s):
        self.L.append(s)

def vr(a, n=4):
    return f'v[{a}:{a+n-1}]'

def gen(path, stamps=False, opts=None):
    o = dict(opts or {})
    e = A()
    nstamp = [0]
    def stamp(i):
        if stamps:
            e(f's_memrealtime s[{70+2*i}:{71+2*i}]')
    e.raw(f'; @launch grid=(256,1,1) block=(512,1,1) lds={LDS_BYTES}')
    e.raw('.amdgcn_target "amdgcn-amd-amdhsa--gfx950"')
    e.raw('.text')
    e.raw(f'.globl {KN}_kernel')
    e.raw('.p2align 8')
    e.raw(f'.type {KN}_kernel,@function')
    e.raw(f'{KN}_kernel:')
    e('s_cmp_ge_u32 s2, 256')
    e('s_cbranch_scc1 L_end')
    stamp(0)
    e('''
    s_load_dwordx16 s[4:19], s[0:1], 0
    s_load_dwordx8 s[20:27], s[0:1], 64
    s_load_dwordx2 s[28:29], s[0:1], 96
    v_lshrrev_b32 v4, 6, v0
    v_and_b32 v1, 63, v0
    v_readfirstlane_b32 s3, v4
    s_lshr_b32 s30, s2, 4
    s_and_b32 s31, s2, 15
    s_lshr_b32 s40, s30, 3
    s_and_b32 s41, s30, 7
    s_mov_b32 s47, 0x05040100
    s_mov_b32 s48, 0x07060302
    ''')
    c = (128 ** -0.5) * 1.4426950408889634
    e(f's_mov_b32 s49, {f2u(c):#x}')
    e('''
    v_and_b32 v4, 15, v1
    v_lshrrev_b32 v5, 4, v1
    v_and_b32 v6, 3, v4
    v_lshrrev_b32 v7, 2, v4
    v_lshl_add_u32 v6, v6, 2, v7
    v_lshlrev_b32 v6, 8, v6
    v_lshl_add_u32 v2, v5, 4, v6
    v_lshlrev_b32 v3, 4, v1
    v_mov_b32 v22, 0
    v_mov_b32 v23, 0
    ''')
    e('''
    s_lshl_b32 s55, s40, 4
    s_add_u32 s55, s55, s31
    s_lshr_b32 s56, s55, 3
    s_and_b32 s57, s55, 7
    s_lshl_b32 s58, s41, 2
    s_add_u32 s58, s58, s56
    ''')
    e('s_waitcnt lgkmcnt(0)')
    e(f'global_load_dword v30, v22, s[28:29] offset:{WS_EPOCH} sc1')
    e('''
    s_lshr_b32 s59, s3, 2
    s_and_b32 s60, s3, 3
    s_lshl_b32 s61, s59, 4
    s_add_u32 s61, s61, s30
    s_lshl_b32 s61, s61, 2
    s_add_u32 s61, s61, s60
    s_lshl_b32 s61, s61, 4
    s_add_u32 s61, s61, s31
    s_lshl_b32 s62, s61, 9
    ''')
    e(f's_add_u32 s62, s62, {WS_PART}')
    e('''
    v_lshlrev_b32 v6, 3, v1
    v_add_u32 v6, s62, v6
    global_store_dwordx2 v6, v[22:23], s[28:29] sc1
    s_lshl_b32 s62, s61, 3
    ''')
    e(f's_add_u32 s62, s62, {WS_STAT}')
    e('''
    v_mov_b32 v7, s62
    s_mov_b64 exec, 1
    global_store_dwordx2 v7, v[22:23], s[28:29] sc1
    s_mov_b64 exec, -1
    ''')
    e('''
    s_lshl_b32 s61, s59, 3
    s_add_u32 s61, s61, s57
    s_lshl_b32 s61, s61, 2
    s_add_u32 s61, s61, s60
    s_lshl_b32 s61, s61, 5
    s_add_u32 s61, s61, s58
    s_lshl_b32 s61, s61, 7
    ''')
    e(f's_add_u32 s63, s61, {WS_OUTP}')
    e('''
    v_lshlrev_b32 v8, 2, v1
    v_add_u32 v8, s63, v8
    s_mov_b32 exec_hi, 0
    global_store_dword v8, v22, s[28:29] sc1
    s_mov_b32 exec_hi, -1
    ''')
    e('''
    s_cmp_eq_u32 s40, 0
    s_cselect_b32 s50, s4, s14
    s_cselect_b32 s51, s5, s15
    s_cselect_b32 s52, s10, s20
    s_cselect_b32 s53, s11, s21
    v_and_b32 v9, 1, v1
    v_lshlrev_b32 v9, 10, v9
    v_lshl_add_u32 v9, v5, 4, v9
    s_lshl_b32 s59, s3, 7
    v_add_u32 v9, s59, v9
    global_load_dwordx4 v[144:147], v9, s[50:51]
    global_load_dwordx4 v[148:151], v9, s[50:51] offset:64
    ''')
    e('''
    v_lshrrev_b32 v10, 2, v1
    v_lshlrev_b32 v10, 13, v10
    v_and_b32 v11, 3, v1
    v_lshl_add_u32 v10, v11, 4, v10
    s_lshl_b32 s59, s3, 19
    s_lshl_b32 s60, s41, 10
    s_add_u32 s59, s59, s60
    s_lshl_b32 s60, s31, 6
    s_add_u32 s59, s59, s60
    s_add_u32 s52, s52, s59
    s_addc_u32 s53, s53, 0
    s_lshl_b32 s60, s3, 12
    ''')
    for i in range(4):
        e(f's_add_u32 m0, s60, {L_WQ + i*1024}')
        if i > 0:
            e('s_add_u32 s52, s52, 0x20000')
            e('s_addc_u32 s53, s53, 0')
        else:
            e('s_nop 0')
        e('global_load_lds_dwordx4 v10, s[52:53] nt')
    e('''
    v_lshrrev_b32 v10, 3, v1
    v_lshlrev_b32 v10, 10, v10
    v_and_b32 v11, 7, v1
    v_lshl_add_u32 v10, v11, 4, v10
    s_lshl_b32 s59, s58, 17
    s_lshl_b32 s60, s3, 14
    s_add_u32 s59, s59, s60
    s_lshl_b32 s60, s57, 7
    s_add_u32 s59, s59, s60
    s_lshl_b32 s60, s3, 11
    ''')
    for p in range(2):
        wo = 12 if p == 0 else 22
        e(f's_add_u32 s52, s{wo}, s59')
        e(f's_addc_u32 s53, s{wo+1}, 0')
        for i in range(2):
            e(f's_add_u32 m0, s60, {L_WO + p*16384 + i*1024}')
            if i > 0:
                e('s_add_u32 s52, s52, 0x2000')
                e('s_addc_u32 s53, s53, 0')
            else:
                e('s_nop 0')
            e('global_load_lds_dwordx4 v10, s[52:53] nt')
    def set_srd(kp, vp, boff_reg):
        e(f's_add_u32 s32, s{kp}, s{boff_reg}')
        e(f's_addc_u32 s33, s{kp+1}, 0')
        e('s_and_b32 s33, s33, 0xffff')
        e(f's_add_u32 s36, s{vp}, s{boff_reg}')
        e(f's_addc_u32 s37, s{vp+1}, 0')
        e('s_and_b32 s37, s37, 0xffff')
    e('s_lshl_b32 s59, s30, 23')
    set_srd(16, 18, 59)
    e('''
    s_mov_b32 s34, 0x800000
    s_mov_b32 s35, 0x20000
    s_mov_b32 s38, 0x800000
    s_mov_b32 s39, 0x20000
    s_lshl_b32 s44, s31, 16
    s_lshl_b32 s60, s3, 13
    s_add_u32 s44, s44, s60
    ''')
    e(f's_add_u32 s44, s44, {(32768-4096)*256}')
    e('s_add_u32 s45, s44, 4096')
    KA, KB, VA, VB, VT = 80, 96, 112, 128, 144
    def issue(chunk):
        if chunk == 'Ka':
            for j in range(4): e(f'buffer_load_dwordx4 {vr(KA+4*j)}, v2, s[32:35], s44 offen offset:{64*j} nt')
        elif chunk == 'Kb':
            for j in range(4): e(f'buffer_load_dwordx4 {vr(KB+4*j)}, v2, s[32:35], s45 offen offset:{64*j} nt')
        elif chunk == 'Va':
            for i in range(4): e(f'buffer_load_dwordx4 {vr(VA+4*i)}, v3, s[36:39], s44 offen offset:{1024*i} nt')
        elif chunk == 'Vb':
            for i in range(4): e(f'buffer_load_dwordx4 {vr(VB+4*i)}, v3, s[36:39], s45 offen offset:{1024*i} nt')
    def issue_all():
        for ch in ('Ka', 'Kb', 'Va', 'Vb'): issue(ch)
    e('s_cmp_eq_u32 s3, 0')
    e('s_cbranch_scc1 L_w0_first')
    issue_all()
    e('s_waitcnt vmcnt(20)')
    e('s_branch L_qproj')
    e.lab('L_w0_first')
    e('s_waitcnt vmcnt(4)')
    e.lab('L_qproj')
    stamp(1)
    e('v_readfirstlane_b32 s43, v30')
    e('''
    v_lshrrev_b32 v6, 2, v4
    v_lshl_add_u32 v6, v5, 3, v6
    v_lshlrev_b32 v6, 6, v6
    v_and_b32 v7, 3, v4
    v_lshl_add_u32 v6, v7, 3, v6
    s_lshl_b32 s59, s3, 12
    v_add_u32 v6, s59, v6
    ''')
    e(f's_add_u32 s42, s43, {TAGC:#x}')
    for kk in range(2):
        for ct in range(2):
            r = 152 + (kk*2+ct)*4
            for h in range(2):
                e(f'ds_read_b64_tr_b16 v[{r+2*h}:{r+2*h+1}], v6 offset:{L_WQ + kk*2048 + h*256 + ct*32}')
    e('s_waitcnt lgkmcnt(0)')
    for ct in range(2):
        e(f'v_mfma_f32_16x16x32_bf16 {vr(8+4*ct)}, {vr(152+ct*4)}, v[144:147], 0')
    for ct in range(2):
        e(f'v_mfma_f32_16x16x32_bf16 {vr(8+4*ct)}, {vr(152+(2+ct)*4)}, v[148:151], {vr(8+4*ct)}')
    e('''
    v_lshlrev_b32 v6, 7, v4
    v_lshl_add_u32 v6, v5, 4, v6
    s_lshl_b32 s59, s3, 8
    s_add_u32 s59, s59, 0x10000
    v_add_u32 v6, s59, v6
    s_nop 3
    s_mov_b32 exec_lo, 0x00030003
    s_mov_b32 exec_hi, 0x00030003
    ''')
    e(f'ds_write_b128 v6, v[8:11] offset:{R_QP}')
    e(f'ds_write_b128 v6, v[12:15] offset:{R_QP+64}')
    e('s_mov_b64 exec, -1')
    e('s_waitcnt lgkmcnt(0)')
    e('s_barrier')
    e('s_cmp_lg_u32 s3, 0')
    e('s_cbranch_scc1 L_qwait')
    e('''
    v_lshrrev_b32 v6, 4, v1
    v_and_b32 v6, 1, v6
    v_lshlrev_b32 v7, 7, v6
    v_lshl_add_u32 v7, v4, 3, v7
    v_add_u32 v7, 0x10000, v7
    ''')
    for w in range(8):
        e(f'ds_read_b64 v[{144+2*w}:{145+2*w}], v7 offset:{R_QP + w*256}')
    e('''
    s_lshl_b32 s59, s40, 6
    s_lshl_b32 s60, s41, 2
    s_add_u32 s59, s59, s60
    s_lshr_b32 s60, s31, 2
    s_add_u32 s59, s59, s60
    s_lshl_b32 s59, s59, 9
    s_and_b32 s60, s31, 3
    s_lshl_b32 s60, s60, 7
    s_add_u32 s59, s59, s60
    ''')
    e(f's_add_u32 s59, s59, {WS_QG}')
    e('''
    v_lshlrev_b32 v8, 14, v6
    v_lshl_add_u32 v8, v4, 3, v8
    v_add_u32 v8, s59, v8
    s_waitcnt lgkmcnt(0)
    ''')
    for k in range(2):
        e(f'v_add_f32 v{144+k}, v{144+k}, v{146+k}')
        e(f'v_add_f32 v{148+k}, v{148+k}, v{150+k}')
        e(f'v_add_f32 v{152+k}, v{152+k}, v{154+k}')
        e(f'v_add_f32 v{156+k}, v{156+k}, v{158+k}')
    for k in range(2):
        e(f'v_add_f32 v{144+k}, v{144+k}, v{148+k}')
        e(f'v_add_f32 v{152+k}, v{152+k}, v{156+k}')
    for k in range(2):
        e(f'v_add_f32 v{144+k}, v{144+k}, v{152+k}')
    e('''
    v_cvt_pk_bf16_f32 v10, v144, v145
    v_mov_b32 v11, s42
    s_mov_b32 exec_hi, 0
    global_store_dwordx2 v8, v[10:11], s[28:29] sc1
    s_mov_b32 exec_hi, -1
    ''')
    stamp(2)
    e('''
    s_lshl_b32 s59, s40, 5
    s_lshl_b32 s60, s41, 2
    s_add_u32 s59, s59, s60
    s_lshl_b32 s59, s59, 9
    ''')
    e(f's_add_u32 s59, s59, {WS_QG}')
    e('v_add_u32 v8, s59, v3')
    e(f'v_add_u32 v9, {64*512}, v8')
    e(f's_mov_b32 s66, {SPIN}')
    e.lab('L_qpoll')
    e('''
    global_load_dwordx4 v[144:147], v8, s[28:29] sc1
    global_load_dwordx4 v[148:151], v8, s[28:29] offset:1024 sc1
    global_load_dwordx4 v[152:155], v9, s[28:29] sc1
    global_load_dwordx4 v[156:159], v9, s[28:29] offset:1024 sc1
    s_waitcnt vmcnt(0)
    ''')
    e('v_cmp_eq_u32 vcc, s42, v145')
    for r in (147, 149, 151, 153, 155, 157, 159):
        e(f'v_cmp_eq_u32 s[64:65], s42, v{r}')
        e('s_and_b64 vcc, vcc, s[64:65]')
    e('''
    s_cmp_eq_u64 vcc, -1
    s_cbranch_scc1 L_qok
    s_sub_u32 s66, s66, 1
    s_cbranch_scc1 L_qok
    s_sleep 2
    s_branch L_qpoll
    ''')
    e.lab('L_qok')
    stamp(3)
    issue_all()
    e('v_lshlrev_b32 v6, 3, v1')
    for u in range(4):
        r = 144 + 4*u
        off = (L_Q + (u >> 1)*1024 + (u & 1)*512)
        e(f'v_add_u32 v7, {off}, v6')
        e(f'ds_write2_b32 v7, v{r}, v{r+2} offset0:0 offset1:1')
    e('s_waitcnt lgkmcnt(0)')
    e.lab('L_qwait')
    e('s_barrier')
    QR = 64
    e('''
    v_and_b32 v6, 3, v4
    v_lshlrev_b32 v6, 8, v6
    v_lshl_add_u32 v31, v5, 4, v6
    v_add_u32 v31, 0x10000, v31
    ''')
    for j in range(4):
        e(f'ds_read_b128 {vr(QR+4*j)}, v31 offset:{R_Q + 1024 + 64*j}')
    for r in range(32, 64): e(f'v_mov_b32 v{r}, 0')
    e(f'v_mov_b32 v20, {f2u(-1e30):#x}')
    e('v_mov_b32 v21, 0')
    e('s_lshl_b32 s59, s30, 23')
    set_srd(6, 8, 59)
    e('''
    s_lshl_b32 s44, s31, 19
    s_lshl_b32 s60, s3, 13
    s_add_u32 s44, s44, s60
    s_add_u32 s45, s44, 4096
    s_mov_b32 s46, 8
    s_mov_b32 s54, 1
    s_waitcnt lgkmcnt(0)
    ''')
    stamp(4)
    e.lab('L_tile')
    e('''
    s_cmp_eq_u32 s46, 0
    s_cselect_b32 s34, 0, 0x800000
    s_cselect_b32 s38, 0, 0x800000
    s_waitcnt vmcnt(12)
    ''')
    for j in range(4):
        e(f'v_mfma_f32_16x16x32_bf16 v[8:11], {vr(KA+4*j)}, {vr(QR+4*j)}, ' + ('0' if j == 0 else 'v[8:11]'))
    issue('Ka')
    e('s_waitcnt vmcnt(12)')
    for j in range(4):
        e(f'v_mfma_f32_16x16x32_bf16 v[12:15], {vr(KB+4*j)}, {vr(QR+4*j)}, ' + ('0' if j == 0 else 'v[12:15]'))
    issue('Kb')
    e('''
    v_max3_f32 v22, v8, v9, v10
    v_max_f32 v22, v22, v11
    s_nop 1
    v_max3_f32 v22, v22, v12, v13
    v_max3_f32 v22, v22, v14, v15
    v_mov_b32 v23, v22
    s_nop 1
    v_permlane32_swap_b32 v23, v22
    v_max_f32 v22, v22, v23
    v_mov_b32 v23, v22
    s_nop 1
    v_permlane16_swap_b32 v23, v22
    v_max_f32 v22, v22, v23
    v_mul_f32 v22, s49, v22
    v_max_f32 v23, v20, v22
    v_sub_f32 v24, v20, v23
    v_exp_f32 v28, v24
    v_mov_b32 v20, v23
    ''')
    for i in range(8): e(f'v_fma_f32 v{8+i}, v{8+i}, s49, -v23')
    for i in range(8): e(f'v_exp_f32 v{8+i}, v{8+i}')
    e('v_mul_f32 v21, v21, v28')
    for j in range(0, 16):
        e(f'v_pk_mul_f32 v[{32+2*j}:{33+2*j}], v[{32+2*j}:{33+2*j}], v[28:29] op_sel_hi:[1,0]')
    e('''
    v_add_f32 v24, v8, v9
    v_add_f32 v25, v10, v11
    v_add_f32 v26, v12, v13
    v_add_f32 v27, v14, v15
    v_cvt_pk_bf16_f32 v16, v8, v9
    v_cvt_pk_bf16_f32 v17, v10, v11
    v_cvt_pk_bf16_f32 v18, v12, v13
    v_cvt_pk_bf16_f32 v19, v14, v15
    v_add_f32 v24, v24, v25
    v_add_f32 v26, v26, v27
    v_add_f32 v21, v21, v24
    v_add_f32 v21, v21, v26
    s_waitcnt vmcnt(12)
    ''')
    for j in range(8):
        w = j >> 1; sel = 's47' if j % 2 == 0 else 's48'
        e(f'v_perm_b32 v{VT+4*j+0}, v{VA+4*1+w}, v{VA+4*0+w}, {sel}')
        e(f'v_perm_b32 v{VT+4*j+1}, v{VA+4*3+w}, v{VA+4*2+w}, {sel}')
    issue('Va')
    e('s_waitcnt vmcnt(12)')
    for j in range(8):
        w = j >> 1; sel = 's47' if j % 2 == 0 else 's48'
        e(f'v_perm_b32 v{VT+4*j+2}, v{VB+4*1+w}, v{VB+4*0+w}, {sel}')
        e(f'v_perm_b32 v{VT+4*j+3}, v{VB+4*3+w}, v{VB+4*2+w}, {sel}')
    issue('Vb')
    for j in range(8):
        e(f'v_mfma_f32_16x16x32_bf16 {vr(32+4*j)}, {vr(VT+4*j)}, v[16:19], {vr(32+4*j)}')
    e('''
    s_add_u32 s44, s44, 0x10000
    s_add_u32 s45, s45, 0x10000
    s_cmp_eq_u32 s54, 1
    s_cbranch_scc1 L_flush
    s_sub_u32 s46, s46, 1
    s_cbranch_scc0 L_tile
    ''')
    e.lab('L_flush')
    e('''
    v_mov_b32 v23, v21
    s_nop 1
    v_permlane32_swap_b32 v23, v21
    v_add_f32 v21, v21, v23
    v_mov_b32 v23, v21
    s_nop 1
    v_permlane16_swap_b32 v23, v21
    v_add_f32 v21, v21, v23
    ''')
    e('''
    s_lshl_b32 s59, s54, 3
    s_add_u32 s59, s59, s3
    s_lshl_b32 s59, s59, 11
    v_lshlrev_b32 v6, 9, v4
    v_lshl_add_u32 v6, v5, 4, v6
    v_add_u32 v6, s59, v6
    s_lshl_b32 s59, s54, 8
    s_lshl_b32 s60, s3, 3
    s_add_u32 s59, s59, s60
    s_add_u32 s59, s59, 0x10000
    v_lshlrev_b32 v7, 6, v4
    v_add_u32 v7, s59, v7
    v_mov_b32 v22, v20
    v_mov_b32 v23, v21
    s_mov_b32 exec_lo, 0x000f000f
    s_mov_b32 exec_hi, 0x000f000f
    ''')
    for j in range(8):
        e(f'ds_write_b128 v6, {vr(32+4*j)} offset:{L_RES + 64*j}')
    e('s_mov_b64 exec, 15')
    e(f'ds_write_b64 v7, v[22:23] offset:{R_ST}')
    e('s_mov_b64 exec, -1')
    e('s_cmp_eq_u32 s54, 0')
    e('s_cbranch_scc1 L_tail')
    stamp(5)
    for j in range(4):
        e(f'ds_read_b128 {vr(QR+4*j)}, v31 offset:{R_Q + 64*j}')
    for r in range(32, 64): e(f'v_mov_b32 v{r}, 0')
    e(f'v_mov_b32 v20, {f2u(-1e30):#x}')
    e('''
    v_mov_b32 v21, 0
    s_mov_b32 s54, 0
    s_mov_b32 s46, 7
    s_waitcnt lgkmcnt(0)
    s_branch L_tile
    ''')
    e.lab('L_tail')
    stamp(6)
    e('s_waitcnt vmcnt(0) lgkmcnt(0)')
    e('s_barrier')
    stamp(7)
    e('''
    s_lshr_b32 s59, s3, 1
    s_and_b32 s60, s3, 1
    s_lshl_b32 s61, s59, 9
    s_lshl_b32 s62, s60, 8
    s_add_u32 s61, s61, s62
    v_lshlrev_b32 v6, 2, v1
    v_add_u32 v6, s61, v6
    s_lshl_b32 s61, s59, 6
    s_add_u32 s61, s61, 0x10000
    v_mov_b32 v7, s61
    ''')
    e('''
    s_lshl_b32 s61, s30, 2
    s_add_u32 s61, s61, s59
    s_lshl_b32 s61, s61, 4
    s_add_u32 s61, s61, s31
    s_lshl_b32 s62, s61, 9
    s_lshl_b32 s60, s60, 8
    s_add_u32 s62, s62, s60
    ''')
    e(f's_add_u32 s62, s62, {WS_PART}')
    e('v_lshlrev_b32 v9, 2, v1')
    e('v_add_u32 v9, s62, v9')
    e('s_lshl_b32 s62, s61, 3')
    e(f's_add_u32 s62, s62, {WS_STAT}')
    e('v_mov_b32 v10, s62')
    for p in range(2):
        base = 64 + 32*p
        for k in range(4):
            e(f'ds_read_b128 {vr(base+4*k)}, v7 offset:{R_ST + p*256 + 16*k}')
        for w in range(8):
            e(f'ds_read_b32 v{base+16+w}, v6 offset:{L_RES + (p*8+w)*2048}')
    for p in range(2):
        base = 64 + 32*p
        if p == 0: e('s_waitcnt lgkmcnt(0)')
        m = [base + 2*w for w in range(8)]; l = [base + 2*w + 1 for w in range(8)]; O = [base+16+w for w in range(8)]
        M = base + 24; acc = base + 25; L = base + 26
        e(f'v_max3_f32 v{M}, v{m[0]}, v{m[1]}, v{m[2]}')
        e(f'v_max3_f32 v{M}, v{M}, v{m[3]}, v{m[4]}')
        e(f'v_max3_f32 v{M}, v{M}, v{m[5]}, v{m[6]}')
        e(f'v_max_f32 v{M}, v{M}, v{m[7]}')
        for w in range(8): e(f'v_sub_f32 v{m[w]}, v{m[w]}, v{M}')
        for w in range(8): e(f'v_exp_f32 v{m[w]}, v{m[w]}')
        e('s_nop 0')
        e(f'v_mul_f32 v{acc}, v{m[0]}, v{O[0]}')
        e(f'v_mul_f32 v{L}, v{m[0]}, v{l[0]}')
        for w in range(1, 8):
            e(f'v_fmac_f32 v{acc}, v{m[w]}, v{O[w]}')
            e(f'v_fmac_f32 v{L}, v{m[w]}, v{l[w]}')
        e(f'v_or_b32 v{acc}, 1, v{acc}')
        e(f'v_or_b32 v{base+28}, 1, v{M}')
        e(f'v_or_b32 v{base+29}, 1, v{L}')
        if p == 1:
            e('v_add_u32 v9, 0x80000, v9')
            e('v_add_u32 v10, 0x2000, v10')
        e(f'global_store_dword v9, v{acc}, s[28:29] sc1')
        e('s_bitcmp1_b32 s3, 0')
        e(f's_cbranch_scc1 L_nostat{p}')
        e('s_mov_b64 exec, 1')
        e(f'global_store_dwordx2 v10, v[{base+28}:{base+29}], s[28:29] sc1')
        e('s_mov_b64 exec, -1')
        e.lab(f'L_nostat{p}')
    stamp(8)
    e('s_cmp_ge_u32 s3, 4')
    e('s_cbranch_scc1 L_t1_other')
    e('''
    s_lshr_b32 s59, s3, 1
    s_and_b32 s60, s3, 1
    s_lshl_b32 s61, s59, 4
    s_lshl_b32 s62, s60, 3
    s_add_u32 s61, s61, s62
    s_add_u32 s61, s61, s41
    s_lshl_b32 s61, s61, 2
    s_add_u32 s61, s61, s56
    s_lshl_b32 s62, s61, 7
    ''')
    e(f's_add_u32 s62, s62, {WS_STAT}')
    e('v_lshlrev_b32 v6, 3, v4')
    e('v_add_u32 v6, s62, v6')
    e('s_lshl_b32 s62, s61, 13')
    e(f's_add_u32 s62, s62, {WS_PART}')
    e('v_lshlrev_b32 v7, 3, v1')
    e('v_add_u32 v7, s62, v7')
    e('v_add_u32 v8, 4096, v7')
    e(f's_mov_b32 s66, {SPIN}')
    e.lab('L_spoll')
    e('''
    global_load_dwordx2 v[10:11], v6, s[28:29] sc1
    s_waitcnt vmcnt(0)
    v_and_b32 v12, v10, v11
    v_and_b32 v12, 1, v12
    v_cmp_eq_u32 vcc, 1, v12
    s_cmp_eq_u64 vcc, -1
    s_cbranch_scc1 L_sok
    s_sub_u32 s66, s66, 1
    s_cbranch_scc1 L_sok
    s_sleep 2
    s_branch L_spoll
    ''')
    e.lab('L_sok')
    stamp(9)
    e.lab('L_dpoll')
    D = 64
    for s in range(16):
        va = 'v7' if s < 8 else 'v8'
        e(f'global_load_dwordx2 v[{D+2*s}:{D+2*s+1}], {va}, s[28:29] offset:{(s%8)*512} sc1')
    e('''
    v_max_f32_dpp v12, v10, v10 row_ror:8 row_mask:0xf bank_mask:0xf
    s_nop 1
    v_max_f32_dpp v13, v12, v12 row_ror:4 row_mask:0xf bank_mask:0xf
    s_nop 1
    v_max_f32_dpp v12, v13, v13 row_ror:2 row_mask:0xf bank_mask:0xf
    s_nop 1
    v_max_f32_dpp v13, v12, v12 row_ror:1 row_mask:0xf bank_mask:0xf
    ''')
    e('''
    v_sub_f32 v14, v10, v13
    v_exp_f32 v14, v14
    s_nop 0
    v_mul_f32 v15, v14, v11
    s_nop 1
    v_add_f32_dpp v12, v15, v15 row_ror:8 row_mask:0xf bank_mask:0xf
    s_nop 1
    v_add_f32_dpp v15, v12, v12 row_ror:4 row_mask:0xf bank_mask:0xf
    s_nop 1
    v_add_f32_dpp v12, v15, v15 row_ror:2 row_mask:0xf bank_mask:0xf
    s_nop 1
    v_add_f32_dpp v15, v12, v12 row_ror:1 row_mask:0xf bank_mask:0xf
    v_rcp_f32 v15, v15
    s_nop 0
    v_mul_f32 v14, v14, v15
    s_waitcnt vmcnt(0)
    ''')
    regs = list(range(D, D+32))
    e(f'v_bitop3_b32 v12, v{regs[0]}, v{regs[1]}, v{regs[2]} bitop3:0x80')
    k = 3
    while k + 1 < 32:
        e(f'v_bitop3_b32 v12, v12, v{regs[k]}, v{regs[k+1]} bitop3:0x80'); k += 2
    e(f'v_and_b32 v12, v12, v{regs[31]}')
    e('''
    v_and_b32 v12, 1, v12
    v_cmp_eq_u32 vcc, 1, v12
    s_cmp_eq_u64 vcc, -1
    s_cbranch_scc1 L_dok
    s_sub_u32 s66, s66, 1
    s_cbranch_scc1 L_dok
    s_branch L_dpoll
    ''')
    e.lab('L_dok')
    e('v_mov_b32 v16, 0')
    e('v_mov_b32 v17, 0')
    e('s_nop 1')
    for s in range(16):
        e(f'v_fmac_f32_dpp v16, v14, v{D+2*s} row_newbcast:{s} row_mask:0xf bank_mask:0xf')
        e(f'v_fmac_f32_dpp v17, v14, v{D+2*s+1} row_newbcast:{s} row_mask:0xf bank_mask:0xf')
    e('''
    v_cvt_pk_bf16_f32 v18, v16, v17
    v_lshrrev_b32 v12, 3, v1
    v_bfe_u32 v13, v1, 1, 2
    v_lshl_add_u32 v12, v13, 5, v12
    v_and_b32 v13, 1, v1
    v_lshl_add_u32 v12, v13, 4, v12
    v_lshlrev_b32 v12, 1, v12
    s_lshl_b32 s61, s3, 8
    s_add_u32 s61, s61, 0x10000
    v_add_u32 v12, s61, v12
    ''')
    e(f'ds_write_b16 v12, v18 offset:{R_O}')
    e(f'ds_write_b16_d16_hi v12, v18 offset:{R_O+16}')
    e('s_branch L_t1_join')
    e.lab('L_t1_other')
    e('s_cmp_lg_u32 s3, 7')
    e('s_cbranch_scc1 L_t1_join')
    e('s_cmp_ge_u32 s2, 64')
    e('s_cbranch_scc1 L_t1_join')
    e('''
    s_lshr_b32 s59, s2, 2
    s_and_b32 s59, s59, 7
    v_and_b32 v6, 31, v1
    v_bfe_u32 v7, v6, 1, 1
    v_lshlrev_b32 v7, 6, v7
    v_lshrrev_b32 v8, 2, v6
    v_lshl_add_u32 v7, v8, 2, v7
    v_and_b32 v8, 1, v6
    v_lshlrev_b32 v8, 3, v8
    v_or_b32 v8, s59, v8
    v_lshrrev_b32 v9, 2, v8
    v_add_u32 v7, v7, v9
    v_lshlrev_b32 v7, 9, v7
    v_and_b32 v8, 3, v8
    v_lshl_add_u32 v7, v8, 7, v7
    ''')
    e(f'v_add_u32 v7, {WS_QG + 4}, v7')
    e(f's_mov_b32 s66, {SPIN}')
    e.lab('L_fpoll')
    e('''
    global_load_dword v10, v7, s[28:29] sc1
    s_waitcnt vmcnt(0)
    v_cmp_eq_u32 vcc, s42, v10
    s_cmp_eq_u64 vcc, -1
    s_cbranch_scc1 L_t1_join
    s_sub_u32 s66, s66, 1
    s_cbranch_scc1 L_t1_join
    s_sleep 2
    s_branch L_fpoll
    ''')
    e.lab('L_t1_join')
    e('s_waitcnt lgkmcnt(0)')
    e('s_barrier')
    stamp(10)
    e('''
    s_lshr_b32 s59, s3, 2
    s_and_b32 s60, s3, 3
    v_lshrrev_b32 v6, 2, v4
    v_lshl_add_u32 v6, v5, 3, v6
    v_lshlrev_b32 v6, 7, v6
    v_and_b32 v7, 3, v4
    v_lshl_add_u32 v6, v7, 3, v6
    s_lshl_b32 s61, s59, 14
    s_lshl_b32 s62, s60, 5
    s_add_u32 s61, s61, s62
    v_add_u32 v6, s61, v6
    v_and_b32 v7, 1, v4
    v_lshlrev_b32 v7, 8, v7
    v_lshl_add_u32 v7, v5, 4, v7
    s_lshl_b32 s61, s59, 9
    s_add_u32 s61, s61, 0x10000
    v_add_u32 v7, s61, v7
    ''')
    for kk in range(4):
        e(f'ds_read_b128 {vr(80+4*kk)}, v7 offset:{R_O + kk*64}')
        for h in range(2):
            e(f'ds_read_b64_tr_b16 v[{64+4*kk+2*h}:{64+4*kk+2*h+1}], v6 offset:{L_WO + kk*4096 + h*512}')
    e('s_waitcnt lgkmcnt(0)')
    for kk in range(4):
        e(f'v_mfma_f32_16x16x32_bf16 v[8:11], {vr(80+4*kk)}, {vr(64+4*kk)}, ' + ('0' if kk == 0 else 'v[8:11]'))
    e('''
    v_lshlrev_b32 v6, 2, v4
    v_add_u32 v6, s63, v6
    s_nop 5
    v_or_b32 v8, 1, v8
    v_or_b32 v9, 1, v9
    s_mov_b64 exec, 0xffff
    global_store_dword v6, v8, s[28:29] sc1
    global_store_dword v6, v9, s[28:29] offset:64 sc1
    s_mov_b64 exec, -1
    ''')
    stamp(11)
    e('s_cmp_lg_u32 s3, 0')
    e('s_cbranch_scc1 L_end')
    e('s_cmp_ge_u32 s2, 64')
    e('s_cbranch_scc1 L_fin')
    e('s_lshl_b32 s59, s2, 12')
    e(f's_add_u32 s59, s59, {WS_OUTP}')
    e('''
    v_lshrrev_b32 v6, 5, v1
    v_lshlrev_b32 v6, 11, v6
    v_and_b32 v7, 31, v1
    v_lshl_add_u32 v6, v7, 2, v6
    v_add_u32 v6, s59, v6
    ''')
    e(f's_mov_b32 s66, {SPIN}')
    e.lab('L_opoll')
    for u in range(16):
        e(f'global_load_dword v{64+u}, v6, s[28:29] offset:{u*128} sc1')
    e('s_waitcnt vmcnt(0)')
    e('v_bitop3_b32 v12, v64, v65, v66 bitop3:0x80')
    k = 67
    while k + 1 < 80:
        e(f'v_bitop3_b32 v12, v12, v{k}, v{k+1} bitop3:0x80'); k += 2
    e('v_and_b32 v12, v12, v79')
    e('''
    v_and_b32 v12, 1, v12
    v_cmp_eq_u32 vcc, 1, v12
    s_cmp_eq_u64 vcc, -1
    s_cbranch_scc1 L_ook
    s_sub_u32 s66, s66, 1
    s_cbranch_scc1 L_ook
    s_sleep 1
    s_branch L_opoll
    ''')
    e.lab('L_ook')
    for k in range(0, 16, 2): e(f'v_add_f32 v{64+k}, v{64+k}, v{65+k}')
    for k in range(0, 16, 4): e(f'v_add_f32 v{64+k}, v{64+k}, v{66+k}')
    e('''
    v_add_f32 v64, v64, v68
    v_add_f32 v72, v72, v76
    v_add_f32 v64, v64, v72
    v_mov_b32 v65, v64
    s_nop 1
    v_permlane32_swap_b32 v65, v64
    v_add_f32 v64, v64, v65
    v_cvt_pk_bf16_f32 v64, v64, v64
    ''')
    e('''
    v_bfe_u32 v6, v1, 4, 1
    v_lshlrev_b32 v6, 10, v6
    v_add_u32 v6, v6, v4
    s_lshl_b32 s59, s2, 4
    v_add_u32 v6, s59, v6
    v_lshlrev_b32 v6, 1, v6
    s_mov_b32 exec_hi, 0
    global_store_short v6, v64, s[24:25]
    s_mov_b32 exec_hi, -1
    ''')
    e('''
    s_cmp_lg_u32 s2, 0
    s_cbranch_scc1 L_fin
    s_add_u32 s59, s43, 1
    v_mov_b32 v7, s59
    v_mov_b32 v8, 0
    s_mov_b64 exec, 1
    ''')
    e(f'global_store_dword v8, v7, s[28:29] offset:{WS_EPOCH} sc1')
    e('s_mov_b64 exec, -1')
    e.lab('L_fin')
    if stamps:
        e('s_memrealtime s[94:95]')
        e('s_waitcnt lgkmcnt(0)')
        e(f's_mul_i32 s59, s2, {13*8}')
        e(f's_add_u32 s59, s59, {WS_STAMP}')
        e('v_mov_b32 v6, s59')
        e('s_mov_b64 exec, 1')
        for i in range(13):
            e(f'v_mov_b32 v{10+2*i}, s{70+2*i}')
            e(f'v_mov_b32 v{11+2*i}, s{71+2*i}')
        for i in range(13):
            e(f'global_store_dwordx2 v6, v[{10+2*i}:{11+2*i}], s[28:29] offset:{8*i}')
    e.lab('L_end')
    e('s_endpgm')
    e.raw('.section .rodata,"a"')
    e.raw('.p2align 6')
    e.raw(f'.amdhsa_kernel {KN}_kernel')
    e.raw('  .amdhsa_next_free_vgpr 256')
    e.raw('  .amdhsa_next_free_sgpr 102')
    e.raw('  .amdhsa_accum_offset 256')
    e.raw('  .amdhsa_group_segment_fixed_size 0')
    e.raw('  .amdhsa_kernarg_size 104')
    e.raw('  .amdhsa_user_sgpr_count 2')
    e.raw('  .amdhsa_user_sgpr_kernarg_segment_ptr 1')
    e.raw('  .amdhsa_system_sgpr_workgroup_id_x 1')
    e.raw('.end_amdhsa_kernel')
    open(path, 'w').write('\n'.join(e.L) + '\n')

if __name__ == '__main__':
    gen('k1.s', stamps=False)
    gen('k1s.s', stamps=True)
```

```python
import sys, struct

KN = 'concat_heads__gqa_block_cached__sliding_block_cached__decode'

def f2u(x):
    return struct.unpack('<I', struct.pack('<f', x))[0]

WS_EPOCH = 0x0
WS_QG    = 0x1000
WS_PART  = 0x20000
WS_STAT  = 0x120000
WS_OUTP  = 0x130000
WS_STAMP = 512 << 20
L_WQ  = 0x0
L_RES = 0x0
L_WO  = 0x8000
L_ST  = 0x10000
L_QP  = 0x10200
L_Q   = 0x10A00
L_O   = 0x11200
L_CNT = 0x11600
LDS_BYTES = 86016
L_SM = 0x10000
R_ST, R_QP, R_Q, R_O = L_ST - L_SM, L_QP - L_SM, L_Q - L_SM, L_O - L_SM

TAGC = 0x9E3779B9
SPIN = 1 << 17

class A:
    def __init__(self):
        self.L = []
    def __call__(self, s):
        for line in s.strip('\n').split('\n'):
            self.L.append('  ' + line.strip())
    def lab(self, s):
        self.L.append(s + ':')
    def raw(self, s):
        self.L.append(s)

def vr(a, n=4):
    return f'v[{a}:{a+n-1}]'

def gen(path, stamps=False, opts=None):
    o = dict(opts or {})
    e = A()
    nstamp = [0]
    def stamp(i):
        if stamps:
            e(f's_memrealtime s[{70+2*i}:{71+2*i}]')
    e.raw(f'; @launch grid=(256,1,1) block=(512,1,1) lds={LDS_BYTES}')
    e.raw('.amdgcn_target "amdgcn-amd-amdhsa--gfx950"')
    e.raw('.text')
    e.raw(f'.globl {KN}_kernel')
    e.raw('.p2align 8')
    e.raw(f'.type {KN}_kernel,@function')
    e.raw(f'{KN}_kernel:')
    e('s_cmp_ge_u32 s2, 256')
    e('s_cbranch_scc1 L_end')
    if stamps:
        for i in range(70, 102): e(f's_mov_b32 s{i}, 0')
    stamp(0)
    e('''
    s_load_dwordx16 s[4:19], s[0:1], 0
    s_load_dwordx8 s[20:27], s[0:1], 64
    s_load_dwordx2 s[28:29], s[0:1], 96
    v_lshrrev_b32 v4, 6, v0
    v_and_b32 v1, 63, v0
    v_readfirstlane_b32 s3, v4
    s_lshr_b32 s30, s2, 4
    s_and_b32 s31, s2, 15
    s_lshr_b32 s40, s30, 3
    s_and_b32 s41, s30, 7
    s_mov_b32 s47, 0x05040100
    s_mov_b32 s48, 0x07060302
    ''')
    c = (128 ** -0.5) * 1.4426950408889634
    e(f's_mov_b32 s49, {f2u(c):#x}')
    e('''
    v_and_b32 v4, 15, v1
    v_lshrrev_b32 v5, 4, v1
    v_and_b32 v6, 3, v4
    v_lshrrev_b32 v7, 2, v4
    v_lshl_add_u32 v6, v6, 2, v7
    v_lshlrev_b32 v6, 8, v6
    v_lshl_add_u32 v2, v5, 4, v6
    v_lshlrev_b32 v3, 4, v1
    v_mov_b32 v22, 0
    v_mov_b32 v23, 0
    ''')
    e('''
    s_lshl_b32 s55, s40, 4
    s_add_u32 s55, s55, s31
    s_lshr_b32 s56, s55, 3
    s_and_b32 s57, s55, 7
    s_lshl_b32 s58, s41, 2
    s_add_u32 s58, s58, s56
    ''')
    e('s_waitcnt lgkmcnt(0)')
    stamp(13)
    e(f'global_load_dword v30, v22, s[28:29] offset:{WS_EPOCH} sc1')
    e('''
    s_lshr_b32 s59, s3, 2
    s_and_b32 s60, s3, 3
    s_lshl_b32 s61, s59, 4
    s_add_u32 s61, s61, s30
    s_lshl_b32 s61, s61, 2
    s_add_u32 s61, s61, s60
    s_lshl_b32 s61, s61, 4
    s_add_u32 s61, s61, s31
    s_lshl_b32 s62, s61, 9
    ''')
    e(f's_add_u32 s62, s62, {WS_PART}')
    e('''
    v_lshlrev_b32 v6, 3, v1
    v_add_u32 v6, s62, v6
    global_store_dwordx2 v6, v[22:23], s[28:29] sc1
    s_lshl_b32 s62, s61, 3
    ''')
    e(f's_add_u32 s62, s62, {WS_STAT}')
    e('''
    v_mov_b32 v7, s62
    s_mov_b64 exec, 1
    global_store_dwordx2 v7, v[22:23], s[28:29] sc1
    s_mov_b64 exec, -1
    ''')
    e('''
    s_lshl_b32 s61, s59, 3
    s_add_u32 s61, s61, s57
    s_lshl_b32 s61, s61, 2
    s_add_u32 s61, s61, s60
    s_lshl_b32 s61, s61, 5
    s_add_u32 s61, s61, s58
    s_lshl_b32 s61, s61, 7
    ''')
    e(f's_add_u32 s63, s61, {WS_OUTP}')
    e('''
    v_lshlrev_b32 v8, 2, v1
    v_add_u32 v8, s63, v8
    s_mov_b32 exec_hi, 0
    global_store_dword v8, v22, s[28:29] sc1
    s_mov_b32 exec_hi, -1
    ''')
    e('''
    s_cmp_eq_u32 s40, 0
    s_cselect_b32 s50, s4, s14
    s_cselect_b32 s51, s5, s15
    s_cselect_b32 s52, s10, s20
    s_cselect_b32 s53, s11, s21
    v_and_b32 v9, 1, v1
    v_lshlrev_b32 v9, 10, v9
    v_lshl_add_u32 v9, v5, 4, v9
    s_lshl_b32 s59, s3, 7
    v_add_u32 v9, s59, v9
    global_load_dwordx4 v[144:147], v9, s[50:51]
    global_load_dwordx4 v[148:151], v9, s[50:51] offset:64
    ''')
    e('''
    v_lshrrev_b32 v10, 2, v1
    v_lshlrev_b32 v10, 13, v10
    v_and_b32 v11, 3, v1
    v_lshl_add_u32 v10, v11, 4, v10
    s_lshl_b32 s59, s3, 19
    s_lshl_b32 s60, s41, 10
    s_add_u32 s59, s59, s60
    s_lshl_b32 s60, s31, 6
    s_add_u32 s59, s59, s60
    s_add_u32 s52, s52, s59
    s_addc_u32 s53, s53, 0
    s_lshl_b32 s60, s3, 12
    ''')
    for i in range(4):
        e(f's_add_u32 m0, s60, {L_WQ + i*1024}')
        if i > 0:
            e('s_add_u32 s52, s52, 0x20000')
            e('s_addc_u32 s53, s53, 0')
        else:
            e('s_nop 0')
        e('global_load_lds_dwordx4 v10, s[52:53] nt')
    if o.get('bar0', True):
        e('s_barrier')
    stamp(14)
    def set_srd(kp, vp, boff_reg):
        e(f's_add_u32 s32, s{kp}, s{boff_reg}')
        e(f's_addc_u32 s33, s{kp+1}, 0')
        e('s_and_b32 s33, s33, 0xffff')
        e(f's_add_u32 s36, s{vp}, s{boff_reg}')
        e(f's_addc_u32 s37, s{vp+1}, 0')
        e('s_and_b32 s37, s37, 0xffff')
    e('s_lshl_b32 s59, s30, 23')
    set_srd(16, 18, 59)
    e('''
    s_mov_b32 s34, 0x800000
    s_mov_b32 s35, 0x20000
    s_mov_b32 s38, 0x800000
    s_mov_b32 s39, 0x20000
    s_lshl_b32 s44, s31, 16
    s_lshl_b32 s60, s3, 13
    s_add_u32 s44, s44, s60
    ''')
    e(f's_add_u32 s44, s44, {(32768-4096)*256}')
    e('s_add_u32 s45, s44, 4096')
    KA, KB, VA, VB, VT = 80, 96, 112, 128, 144
    def issue(chunk):
        if chunk == 'Ka':
            for j in range(4): e(f'buffer_load_dwordx4 {vr(KA+4*j)}, v2, s[32:35], s44 offen offset:{64*j} nt')
        elif chunk == 'Kb':
            for j in range(4): e(f'buffer_load_dwordx4 {vr(KB+4*j)}, v2, s[32:35], s45 offen offset:{64*j} nt')
        elif chunk == 'Va':
            for i in range(4): e(f'buffer_load_dwordx4 {vr(VA+4*i)}, v3, s[36:39], s44 offen offset:{1024*i} nt')
        elif chunk == 'Vb':
            for i in range(4): e(f'buffer_load_dwordx4 {vr(VB+4*i)}, v3, s[36:39], s45 offen offset:{1024*i} nt')
    def issue_all():
        for ch in ('Ka', 'Kb', 'Va', 'Vb'): issue(ch)
    n1 = o.get('n1', 3)
    e('s_cmp_eq_u32 s3, 0')
    e('s_cbranch_scc1 L_w0_first')
    e(f's_cmp_gt_u32 s3, {n1}')
    e('s_cbranch_scc1 L_w0_first')
    issue_all()
    e('s_waitcnt vmcnt(16)')
    e('s_branch L_qproj')
    e.lab('L_w0_first')
    e('s_waitcnt vmcnt(0)')
    e.lab('L_qproj')
    stamp(1)
    e('v_readfirstlane_b32 s43, v30')
    e('''
    v_lshrrev_b32 v6, 2, v4
    v_lshl_add_u32 v6, v5, 3, v6
    v_lshlrev_b32 v6, 6, v6
    v_and_b32 v7, 3, v4
    v_lshl_add_u32 v6, v7, 3, v6
    s_lshl_b32 s59, s3, 12
    v_add_u32 v6, s59, v6
    ''')
    e(f's_add_u32 s42, s43, {TAGC:#x}')
    for kk in range(2):
        for ct in range(2):
            r = 152 + (kk*2+ct)*4
            for h in range(2):
                e(f'ds_read_b64_tr_b16 v[{r+2*h}:{r+2*h+1}], v6 offset:{L_WQ + kk*2048 + h*256 + ct*32}')
    e('s_waitcnt lgkmcnt(0)')
    for ct in range(2):
        e(f'v_mfma_f32_16x16x32_bf16 {vr(8+4*ct)}, {vr(152+ct*4)}, v[144:147], 0')
    for ct in range(2):
        e(f'v_mfma_f32_16x16x32_bf16 {vr(8+4*ct)}, {vr(152+(2+ct)*4)}, v[148:151], {vr(8+4*ct)}')
    e('''
    v_lshlrev_b32 v6, 7, v4
    v_lshl_add_u32 v6, v5, 4, v6
    s_lshl_b32 s59, s3, 8
    s_add_u32 s59, s59, 0x10000
    v_add_u32 v6, s59, v6
    s_nop 3
    s_mov_b32 exec_lo, 0x00030003
    s_mov_b32 exec_hi, 0x00030003
    ''')
    e(f'ds_write_b128 v6, v[8:11] offset:{R_QP}')
    e(f'ds_write_b128 v6, v[12:15] offset:{R_QP+64}')
    e('s_mov_b64 exec, -1')
    e(f'v_mov_b32 v29, {L_CNT}')
    e('v_mov_b32 v30, 0')
    e('s_cmp_lg_u32 s3, 0')
    e('s_cbranch_scc1 L_nocnt')
    e('ds_write_b32 v29, v30')
    e.lab('L_nocnt')
    e('v_mov_b32 v30, 1')
    e('s_waitcnt lgkmcnt(0)')
    e('s_barrier')
    stamp(15)
    e('s_cmp_lg_u32 s3, 0')
    e('s_cbranch_scc1 L_q1b')
    e('''
    v_lshrrev_b32 v6, 4, v1
    v_and_b32 v6, 1, v6
    v_lshlrev_b32 v7, 7, v6
    v_lshl_add_u32 v7, v4, 3, v7
    v_add_u32 v7, 0x10000, v7
    ''')
    for w in range(8):
        e(f'ds_read_b64 v[{144+2*w}:{145+2*w}], v7 offset:{R_QP + w*256}')
    e('''
    s_lshl_b32 s59, s40, 6
    s_lshl_b32 s60, s41, 2
    s_add_u32 s59, s59, s60
    s_lshr_b32 s60, s31, 2
    s_add_u32 s59, s59, s60
    s_lshl_b32 s59, s59, 9
    s_and_b32 s60, s31, 3
    s_lshl_b32 s60, s60, 7
    s_add_u32 s59, s59, s60
    ''')
    e(f's_add_u32 s59, s59, {WS_QG}')
    e('''
    v_lshlrev_b32 v8, 14, v6
    v_lshl_add_u32 v8, v4, 3, v8
    v_add_u32 v8, s59, v8
    s_waitcnt lgkmcnt(0)
    ''')
    for k in range(2):
        e(f'v_add_f32 v{144+k}, v{144+k}, v{146+k}')
        e(f'v_add_f32 v{148+k}, v{148+k}, v{150+k}')
        e(f'v_add_f32 v{152+k}, v{152+k}, v{154+k}')
        e(f'v_add_f32 v{156+k}, v{156+k}, v{158+k}')
    for k in range(2):
        e(f'v_add_f32 v{144+k}, v{144+k}, v{148+k}')
        e(f'v_add_f32 v{152+k}, v{152+k}, v{156+k}')
    for k in range(2):
        e(f'v_add_f32 v{144+k}, v{144+k}, v{152+k}')
    e('''
    v_cvt_pk_bf16_f32 v10, v144, v145
    v_mov_b32 v11, s42
    s_mov_b32 exec_hi, 0
    global_store_dwordx2 v8, v[10:11], s[28:29] sc1
    s_mov_b32 exec_hi, -1
    ''')
    stamp(2)
    e("""
    v_lshrrev_b32 v10, 3, v1
    v_lshlrev_b32 v10, 10, v10
    v_and_b32 v11, 7, v1
    v_lshl_add_u32 v10, v11, 4, v10
    s_lshl_b32 s59, s58, 17
    s_lshl_b32 s60, s57, 7
    s_add_u32 s59, s59, s60
    """)
    for p in range(2):
        wo = 12 if p == 0 else 22
        e(f's_add_u32 s52, s{wo}, s59')
        e(f's_addc_u32 s53, s{wo+1}, 0')
        e(f's_mov_b32 s60, {L_WO + p*16384}')
        e.lab(f'L_wo{p}')
        e('s_mov_b32 m0, s60')
        e('s_add_u32 s60, s60, 1024')
        e('global_load_lds_dwordx4 v10, s[52:53] nt')
        e('s_add_u32 s52, s52, 0x2000')
        e('s_addc_u32 s53, s53, 0')
        e(f's_cmp_lt_u32 s60, {L_WO + p*16384 + 16384}')
        e(f's_cbranch_scc1 L_wo{p}')
    e("""
    s_lshl_b32 s59, s40, 5
    s_lshl_b32 s60, s41, 2
    s_add_u32 s59, s59, s60
    s_lshl_b32 s59, s59, 9
    """)
    e(f's_add_u32 s59, s59, {WS_QG}')
    e('v_add_u32 v8, s59, v3')
    e(f'v_add_u32 v9, {64*512}, v8')
    e(f's_mov_b32 s66, {SPIN}')
    e("""
    global_load_dwordx4 v[144:147], v8, s[28:29] sc1
    global_load_dwordx4 v[148:151], v8, s[28:29] offset:1024 sc1
    global_load_dwordx4 v[152:155], v9, s[28:29] sc1
    global_load_dwordx4 v[156:159], v9, s[28:29] offset:1024 sc1
    s_barrier
    s_branch L_qchk
    """)
    e.lab('L_qpoll')
    e('''
    global_load_dwordx4 v[144:147], v8, s[28:29] sc1
    global_load_dwordx4 v[148:151], v8, s[28:29] offset:1024 sc1
    global_load_dwordx4 v[152:155], v9, s[28:29] sc1
    global_load_dwordx4 v[156:159], v9, s[28:29] offset:1024 sc1
    ''')
    e.lab('L_qchk')
    e('s_waitcnt vmcnt(0)')
    e('v_cmp_eq_u32 vcc, s42, v145')
    for r in (147, 149, 151, 153, 155, 157, 159):
        e(f'v_cmp_eq_u32 s[64:65], s42, v{r}')
        e('s_and_b64 vcc, vcc, s[64:65]')
    e('''
    s_cmp_eq_u64 vcc, -1
    s_cbranch_scc1 L_qok
    s_sub_u32 s66, s66, 1
    s_cbranch_scc1 L_qok
    s_sleep 2
    s_branch L_qpoll
    ''')
    e.lab('L_qok')
    stamp(3)
    issue_all()
    e('v_lshlrev_b32 v6, 3, v1')
    for u in range(4):
        r = 144 + 4*u
        off = (L_Q + (u >> 1)*1024 + (u & 1)*512)
        e(f'v_add_u32 v7, {off}, v6')
        e(f'ds_write2_b32 v7, v{r}, v{r+2} offset0:0 offset1:1')
    e('s_waitcnt lgkmcnt(0)')
    e('s_branch L_qwait')
    e.lab('L_q1b')
    e('s_barrier')
    e(f's_cmp_le_u32 s3, {n1}')
    e('s_cbranch_scc1 L_qwait')
    issue_all()
    e.lab('L_qwait')
    e('s_barrier')
    QR = 64
    e('''
    v_and_b32 v6, 3, v4
    v_lshlrev_b32 v6, 8, v6
    v_lshl_add_u32 v31, v5, 4, v6
    v_add_u32 v31, 0x10000, v31
    ''')
    for j in range(4):
        e(f'ds_read_b128 {vr(QR+4*j)}, v31 offset:{R_Q + 1024 + 64*j}')
    for r in range(32, 64): e(f'v_mov_b32 v{r}, 0')
    e(f'v_mov_b32 v20, {f2u(-1e30):#x}')
    e('v_mov_b32 v21, 0')
    e('s_lshl_b32 s59, s30, 23')
    set_srd(6, 8, 59)
    e('''
    s_lshl_b32 s67, s31, 19
    s_sub_u32 s68, s3, 8
    s_mov_b32 s54, 1
    s_waitcnt lgkmcnt(0)
    ''')
    stamp(4)
    e.lab('L_tile')
    if o.get('dyn', True):
        e('''
        s_mov_b64 exec, 1
        ds_add_rtn_u32 v26, v29, v30
        s_mov_b64 exec, -1
        s_waitcnt vmcnt(12)
        ''')
    else:
        e('s_waitcnt vmcnt(12)')
    for j in range(4):
        e(f'v_mfma_f32_16x16x32_bf16 v[8:11], {vr(KA+4*j)}, {vr(QR+4*j)}, ' + ('0' if j == 0 else 'v[8:11]'))
    if o.get('dyn', True):
        e('''
        s_waitcnt lgkmcnt(0)
        v_readfirstlane_b32 s46, v26
        ''')
    else:
        e('''
        s_add_u32 s68, s68, 8
        s_mov_b32 s46, s68
        ''')
    e('''
    s_lshl_b32 s44, s46, 13
    s_add_u32 s44, s44, s67
    s_add_u32 s45, s44, 4096
    s_cmp_lt_u32 s46, 64
    s_cselect_b32 s34, 0x800000, 0
    s_cselect_b32 s38, 0x800000, 0
    ''')
    issue('Ka')
    e('s_waitcnt vmcnt(12)')
    for j in range(4):
        e(f'v_mfma_f32_16x16x32_bf16 v[12:15], {vr(KB+4*j)}, {vr(QR+4*j)}, ' + ('0' if j == 0 else 'v[12:15]'))
    issue('Kb')
    e('''
    v_max3_f32 v22, v8, v9, v10
    v_max_f32 v22, v22, v11
    s_nop 1
    v_max3_f32 v22, v22, v12, v13
    v_max3_f32 v22, v22, v14, v15
    v_mov_b32 v23, v22
    s_nop 1
    v_permlane32_swap_b32 v23, v22
    v_max_f32 v22, v22, v23
    v_mov_b32 v23, v22
    s_nop 1
    v_permlane16_swap_b32 v23, v22
    v_max_f32 v22, v22, v23
    v_mul_f32 v22, s49, v22
    v_max_f32 v23, v20, v22
    v_sub_f32 v24, v20, v23
    v_exp_f32 v28, v24
    v_mov_b32 v20, v23
    ''')
    for i in range(8): e(f'v_fma_f32 v{8+i}, v{8+i}, s49, -v23')
    for i in range(8): e(f'v_exp_f32 v{8+i}, v{8+i}')
    e('v_mul_f32 v21, v21, v28')
    for j in range(0, 16):
        e(f'v_pk_mul_f32 v[{32+2*j}:{33+2*j}], v[{32+2*j}:{33+2*j}], v[28:29] op_sel_hi:[1,0]')
    e('''
    v_add_f32 v24, v8, v9
    v_add_f32 v25, v10, v11
    v_add_f32 v26, v12, v13
    v_add_f32 v27, v14, v15
    v_cvt_pk_bf16_f32 v16, v8, v9
    v_cvt_pk_bf16_f32 v17, v10, v11
    v_cvt_pk_bf16_f32 v18, v12, v13
    v_cvt_pk_bf16_f32 v19, v14, v15
    v_add_f32 v24, v24, v25
    v_add_f32 v26, v26, v27
    v_add_f32 v21, v21, v24
    v_add_f32 v21, v21, v26
    s_waitcnt vmcnt(12)
    ''')
    for j in range(8):
        w = j >> 1; sel = 's47' if j % 2 == 0 else 's48'
        e(f'v_perm_b32 v{VT+4*j+0}, v{VA+4*1+w}, v{VA+4*0+w}, {sel}')
        e(f'v_perm_b32 v{VT+4*j+1}, v{VA+4*3+w}, v{VA+4*2+w}, {sel}')
    issue('Va')
    e('s_waitcnt vmcnt(12)')
    for j in range(8):
        w = j >> 1; sel = 's47' if j % 2 == 0 else 's48'
        e(f'v_perm_b32 v{VT+4*j+2}, v{VB+4*1+w}, v{VB+4*0+w}, {sel}')
        e(f'v_perm_b32 v{VT+4*j+3}, v{VB+4*3+w}, v{VB+4*2+w}, {sel}')
    issue('Vb')
    for j in range(8):
        e(f'v_mfma_f32_16x16x32_bf16 {vr(32+4*j)}, {vr(VT+4*j)}, v[16:19], {vr(32+4*j)}')
    e('''
    s_cmp_eq_u32 s54, 1
    s_cbranch_scc1 L_flush
    s_cmp_lt_u32 s46, 64
    s_cbranch_scc1 L_tile
    ''')
    e.lab('L_flush')
    e('''
    v_mov_b32 v23, v21
    s_nop 1
    v_permlane32_swap_b32 v23, v21
    v_add_f32 v21, v21, v23
    v_mov_b32 v23, v21
    s_nop 1
    v_permlane16_swap_b32 v23, v21
    v_add_f32 v21, v21, v23
    ''')
    e('''
    s_lshl_b32 s59, s54, 3
    s_add_u32 s59, s59, s3
    s_lshl_b32 s59, s59, 11
    v_lshlrev_b32 v6, 9, v4
    v_lshl_add_u32 v6, v5, 4, v6
    v_add_u32 v6, s59, v6
    s_lshl_b32 s59, s54, 8
    s_lshl_b32 s60, s3, 3
    s_add_u32 s59, s59, s60
    s_add_u32 s59, s59, 0x10000
    v_lshlrev_b32 v7, 6, v4
    v_add_u32 v7, s59, v7
    v_mov_b32 v22, v20
    v_mov_b32 v23, v21
    s_mov_b32 exec_lo, 0x000f000f
    s_mov_b32 exec_hi, 0x000f000f
    ''')
    for j in range(8):
        e(f'ds_write_b128 v6, {vr(32+4*j)} offset:{L_RES + 64*j}')
    e('s_mov_b64 exec, 15')
    e(f'ds_write_b64 v7, v[22:23] offset:{R_ST}')
    e('s_mov_b64 exec, -1')
    e('s_cmp_eq_u32 s54, 0')
    e('s_cbranch_scc1 L_tail')
    stamp(5)
    for j in range(4):
        e(f'ds_read_b128 {vr(QR+4*j)}, v31 offset:{R_Q + 64*j}')
    for r in range(32, 64): e(f'v_mov_b32 v{r}, 0')
    e(f'v_mov_b32 v20, {f2u(-1e30):#x}')
    e('''
    v_mov_b32 v21, 0
    s_mov_b32 s54, 0
    s_waitcnt lgkmcnt(0)
    s_cmp_lt_u32 s46, 64
    s_cbranch_scc1 L_tile
    s_branch L_flush
    ''')
    e.lab('L_tail')
    stamp(6)
    e('s_waitcnt vmcnt(0) lgkmcnt(0)')
    e('s_barrier')
    stamp(7)
    e('''
    s_lshr_b32 s59, s3, 1
    s_and_b32 s60, s3, 1
    s_lshl_b32 s61, s59, 9
    s_lshl_b32 s62, s60, 8
    s_add_u32 s61, s61, s62
    v_lshlrev_b32 v6, 2, v1
    v_add_u32 v6, s61, v6
    s_lshl_b32 s61, s59, 6
    s_add_u32 s61, s61, 0x10000
    v_mov_b32 v7, s61
    ''')
    e('''
    s_lshl_b32 s61, s30, 2
    s_add_u32 s61, s61, s59
    s_lshl_b32 s61, s61, 4
    s_add_u32 s61, s61, s31
    s_lshl_b32 s62, s61, 9
    s_lshl_b32 s60, s60, 8
    s_add_u32 s62, s62, s60
    ''')
    e(f's_add_u32 s62, s62, {WS_PART}')
    e('v_lshlrev_b32 v9, 2, v1')
    e('v_add_u32 v9, s62, v9')
    e('s_lshl_b32 s62, s61, 3')
    e(f's_add_u32 s62, s62, {WS_STAT}')
    e('v_mov_b32 v10, s62')
    for p in range(2):
        base = 64 + 32*p
        for k in range(4):
            e(f'ds_read_b128 {vr(base+4*k)}, v7 offset:{R_ST + p*256 + 16*k}')
        for w in range(8):
            e(f'ds_read_b32 v{base+16+w}, v6 offset:{L_RES + (p*8+w)*2048}')
    for p in range(2):
        base = 64 + 32*p
        if p == 0: e('s_waitcnt lgkmcnt(0)')
        m = [base + 2*w for w in range(8)]; l = [base + 2*w + 1 for w in range(8)]; O = [base+16+w for w in range(8)]
        M = base + 24; acc = base + 25; L = base + 26
        e(f'v_max3_f32 v{M}, v{m[0]}, v{m[1]}, v{m[2]}')
        e(f'v_max3_f32 v{M}, v{M}, v{m[3]}, v{m[4]}')
        e(f'v_max3_f32 v{M}, v{M}, v{m[5]}, v{m[6]}')
        e(f'v_max_f32 v{M}, v{M}, v{m[7]}')
        for w in range(8): e(f'v_sub_f32 v{m[w]}, v{m[w]}, v{M}')
        for w in range(8): e(f'v_exp_f32 v{m[w]}, v{m[w]}')
        e('s_nop 0')
        e(f'v_mul_f32 v{acc}, v{m[0]}, v{O[0]}')
        e(f'v_mul_f32 v{L}, v{m[0]}, v{l[0]}')
        for w in range(1, 8):
            e(f'v_fmac_f32 v{acc}, v{m[w]}, v{O[w]}')
            e(f'v_fmac_f32 v{L}, v{m[w]}, v{l[w]}')
        e(f'v_or_b32 v{acc}, 1, v{acc}')
        e(f'v_or_b32 v{base+28}, 1, v{M}')
        e(f'v_or_b32 v{base+29}, 1, v{L}')
        if p == 1:
            e('v_add_u32 v9, 0x80000, v9')
            e('v_add_u32 v10, 0x2000, v10')
        e(f'global_store_dword v9, v{acc}, s[28:29] sc1')
        e('s_bitcmp1_b32 s3, 0')
        e(f's_cbranch_scc1 L_nostat{p}')
        e('s_mov_b64 exec, 1')
        e(f'global_store_dwordx2 v10, v[{base+28}:{base+29}], s[28:29] sc1')
        e('s_mov_b64 exec, -1')
        e.lab(f'L_nostat{p}')
    stamp(8)
    e('s_cmp_ge_u32 s3, 4')
    e('s_cbranch_scc1 L_t1_other')
    e('''
    s_lshr_b32 s59, s3, 1
    s_and_b32 s60, s3, 1
    s_lshl_b32 s61, s59, 4
    s_lshl_b32 s62, s60, 3
    s_add_u32 s61, s61, s62
    s_add_u32 s61, s61, s41
    s_lshl_b32 s61, s61, 2
    s_add_u32 s61, s61, s56
    s_lshl_b32 s62, s61, 7
    ''')
    e(f's_add_u32 s62, s62, {WS_STAT}')
    e('v_lshlrev_b32 v6, 3, v4')
    e('v_add_u32 v6, s62, v6')
    e('s_lshl_b32 s62, s61, 13')
    e(f's_add_u32 s62, s62, {WS_PART}')
    e('v_lshlrev_b32 v7, 3, v1')
    e('v_add_u32 v7, s62, v7')
    e('v_add_u32 v8, 4096, v7')
    e(f's_mov_b32 s66, {SPIN}')
    e.lab('L_spoll')
    e('''
    global_load_dwordx2 v[10:11], v6, s[28:29] sc1
    s_waitcnt vmcnt(0)
    v_and_b32 v12, v10, v11
    v_and_b32 v12, 1, v12
    v_cmp_eq_u32 vcc, 1, v12
    s_cmp_eq_u64 vcc, -1
    s_cbranch_scc1 L_sok
    s_sub_u32 s66, s66, 1
    s_cbranch_scc1 L_sok
    s_sleep 2
    s_branch L_spoll
    ''')
    e.lab('L_sok')
    stamp(9)
    e.lab('L_dpoll')
    D = 64
    for s in range(16):
        va = 'v7' if s < 8 else 'v8'
        e(f'global_load_dwordx2 v[{D+2*s}:{D+2*s+1}], {va}, s[28:29] offset:{(s%8)*512} sc1')
    e('''
    v_max_f32_dpp v12, v10, v10 row_ror:8 row_mask:0xf bank_mask:0xf
    s_nop 1
    v_max_f32_dpp v13, v12, v12 row_ror:4 row_mask:0xf bank_mask:0xf
    s_nop 1
    v_max_f32_dpp v12, v13, v13 row_ror:2 row_mask:0xf bank_mask:0xf
    s_nop 1
    v_max_f32_dpp v13, v12, v12 row_ror:1 row_mask:0xf bank_mask:0xf
    ''')
    e('''
    v_sub_f32 v14, v10, v13
    v_exp_f32 v14, v14
    s_nop 0
    v_mul_f32 v15, v14, v11
    s_nop 1
    v_add_f32_dpp v12, v15, v15 row_ror:8 row_mask:0xf bank_mask:0xf
    s_nop 1
    v_add_f32_dpp v15, v12, v12 row_ror:4 row_mask:0xf bank_mask:0xf
    s_nop 1
    v_add_f32_dpp v12, v15, v15 row_ror:2 row_mask:0xf bank_mask:0xf
    s_nop 1
    v_add_f32_dpp v15, v12, v12 row_ror:1 row_mask:0xf bank_mask:0xf
    v_rcp_f32 v15, v15
    s_nop 0
    v_mul_f32 v14, v14, v15
    s_waitcnt vmcnt(0)
    ''')
    regs = list(range(D, D+32))
    e(f'v_bitop3_b32 v12, v{regs[0]}, v{regs[1]}, v{regs[2]} bitop3:0x80')
    k = 3
    while k + 1 < 32:
        e(f'v_bitop3_b32 v12, v12, v{regs[k]}, v{regs[k+1]} bitop3:0x80'); k += 2
    e(f'v_and_b32 v12, v12, v{regs[31]}')
    e('''
    v_and_b32 v12, 1, v12
    v_cmp_eq_u32 vcc, 1, v12
    s_cmp_eq_u64 vcc, -1
    s_cbranch_scc1 L_dok
    s_sub_u32 s66, s66, 1
    s_cbranch_scc1 L_dok
    s_branch L_dpoll
    ''')
    e.lab('L_dok')
    e('v_mov_b32 v16, 0')
    e('v_mov_b32 v17, 0')
    e('s_nop 1')
    for s in range(16):
        e(f'v_fmac_f32_dpp v16, v14, v{D+2*s} row_newbcast:{s} row_mask:0xf bank_mask:0xf')
        e(f'v_fmac_f32_dpp v17, v14, v{D+2*s+1} row_newbcast:{s} row_mask:0xf bank_mask:0xf')
    e('''
    v_cvt_pk_bf16_f32 v18, v16, v17
    v_lshrrev_b32 v12, 3, v1
    v_bfe_u32 v13, v1, 1, 2
    v_lshl_add_u32 v12, v13, 5, v12
    v_and_b32 v13, 1, v1
    v_lshl_add_u32 v12, v13, 4, v12
    v_lshlrev_b32 v12, 1, v12
    s_lshl_b32 s61, s3, 8
    s_add_u32 s61, s61, 0x10000
    v_add_u32 v12, s61, v12
    ''')
    e(f'ds_write_b16 v12, v18 offset:{R_O}')
    e(f'ds_write_b16_d16_hi v12, v18 offset:{R_O+16}')
    e('s_branch L_t1_join')
    e.lab('L_t1_other')
    e('s_cmp_lg_u32 s3, 7')
    e('s_cbranch_scc1 L_t1_join')
    e('s_cmp_ge_u32 s2, 64')
    e('s_cbranch_scc1 L_t1_join')
    e('''
    s_lshr_b32 s59, s2, 2
    s_and_b32 s59, s59, 7
    v_and_b32 v6, 31, v1
    v_bfe_u32 v7, v6, 1, 1
    v_lshlrev_b32 v7, 6, v7
    v_lshrrev_b32 v8, 2, v6
    v_lshl_add_u32 v7, v8, 2, v7
    v_and_b32 v8, 1, v6
    v_lshlrev_b32 v8, 3, v8
    v_or_b32 v8, s59, v8
    v_lshrrev_b32 v9, 2, v8
    v_add_u32 v7, v7, v9
    v_lshlrev_b32 v7, 9, v7
    v_and_b32 v8, 3, v8
    v_lshl_add_u32 v7, v8, 7, v7
    ''')
    e(f'v_add_u32 v7, {WS_QG + 4}, v7')
    e(f's_mov_b32 s66, {SPIN}')
    e.lab('L_fpoll')
    e('''
    global_load_dword v10, v7, s[28:29] sc1
    s_waitcnt vmcnt(0)
    v_cmp_eq_u32 vcc, s42, v10
    s_cmp_eq_u64 vcc, -1
    s_cbranch_scc1 L_t1_join
    s_sub_u32 s66, s66, 1
    s_cbranch_scc1 L_t1_join
    s_sleep 2
    s_branch L_fpoll
    ''')
    e.lab('L_t1_join')
    e('s_waitcnt lgkmcnt(0)')
    e('s_barrier')
    stamp(10)
    e('''
    s_lshr_b32 s59, s3, 2
    s_and_b32 s60, s3, 3
    v_lshrrev_b32 v6, 2, v4
    v_lshl_add_u32 v6, v5, 3, v6
    v_lshlrev_b32 v6, 7, v6
    v_and_b32 v7, 3, v4
    v_lshl_add_u32 v6, v7, 3, v6
    s_lshl_b32 s61, s59, 14
    s_lshl_b32 s62, s60, 5
    s_add_u32 s61, s61, s62
    v_add_u32 v6, s61, v6
    v_and_b32 v7, 1, v4
    v_lshlrev_b32 v7, 8, v7
    v_lshl_add_u32 v7, v5, 4, v7
    s_lshl_b32 s61, s59, 9
    s_add_u32 s61, s61, 0x10000
    v_add_u32 v7, s61, v7
    ''')
    for kk in range(4):
        e(f'ds_read_b128 {vr(80+4*kk)}, v7 offset:{R_O + kk*64}')
        for h in range(2):
            e(f'ds_read_b64_tr_b16 v[{64+4*kk+2*h}:{64+4*kk+2*h+1}], v6 offset:{L_WO + kk*4096 + h*512}')
    e('s_waitcnt lgkmcnt(0)')
    for kk in range(4):
        e(f'v_mfma_f32_16x16x32_bf16 v[8:11], {vr(80+4*kk)}, {vr(64+4*kk)}, ' + ('0' if kk == 0 else 'v[8:11]'))
    e('''
    v_lshlrev_b32 v6, 2, v4
    v_add_u32 v6, s63, v6
    s_nop 5
    v_or_b32 v8, 1, v8
    v_or_b32 v9, 1, v9
    s_mov_b64 exec, 0xffff
    global_store_dword v6, v8, s[28:29] sc1
    global_store_dword v6, v9, s[28:29] offset:64 sc1
    s_mov_b64 exec, -1
    ''')
    stamp(11)
    e('s_cmp_lg_u32 s3, 0')
    e('s_cbranch_scc1 ' + ('L_fin' if (stamps and not o.get('dbgst')) else 'L_end'))
    e('s_cmp_ge_u32 s2, 64')
    e('s_cbranch_scc1 L_fin')
    e('s_lshl_b32 s59, s2, 12')
    e(f's_add_u32 s59, s59, {WS_OUTP}')
    e('''
    v_lshrrev_b32 v6, 5, v1
    v_lshlrev_b32 v6, 11, v6
    v_and_b32 v7, 31, v1
    v_lshl_add_u32 v6, v7, 2, v6
    v_add_u32 v6, s59, v6
    ''')
    e(f's_mov_b32 s66, {SPIN}')
    e.lab('L_opoll')
    for u in range(16):
        e(f'global_load_dword v{64+u}, v6, s[28:29] offset:{u*128} sc1')
    e('s_waitcnt vmcnt(0)')
    e('v_bitop3_b32 v12, v64, v65, v66 bitop3:0x80')
    k = 67
    while k + 1 < 80:
        e(f'v_bitop3_b32 v12, v12, v{k}, v{k+1} bitop3:0x80'); k += 2
    e('v_and_b32 v12, v12, v79')
    e('''
    v_and_b32 v12, 1, v12
    v_cmp_eq_u32 vcc, 1, v12
    s_cmp_eq_u64 vcc, -1
    s_cbranch_scc1 L_ook
    s_sub_u32 s66, s66, 1
    s_cbranch_scc1 L_ook
    s_sleep 1
    s_branch L_opoll
    ''')
    e.lab('L_ook')
    for k in range(0, 16, 2): e(f'v_add_f32 v{64+k}, v{64+k}, v{65+k}')
    for k in range(0, 16, 4): e(f'v_add_f32 v{64+k}, v{64+k}, v{66+k}')
    e('''
    v_add_f32 v64, v64, v68
    v_add_f32 v72, v72, v76
    v_add_f32 v64, v64, v72
    v_mov_b32 v65, v64
    s_nop 1
    v_permlane32_swap_b32 v65, v64
    v_add_f32 v64, v64, v65
    v_cvt_pk_bf16_f32 v64, v64, v64
    ''')
    e('''
    v_bfe_u32 v6, v1, 4, 1
    v_lshlrev_b32 v6, 10, v6
    v_add_u32 v6, v6, v4
    s_lshl_b32 s59, s2, 4
    v_add_u32 v6, s59, v6
    v_lshlrev_b32 v6, 1, v6
    s_mov_b32 exec_hi, 0
    global_store_short v6, v64, s[24:25]
    s_mov_b32 exec_hi, -1
    ''')
    e('''
    s_cmp_lg_u32 s2, 0
    s_cbranch_scc1 L_fin
    s_add_u32 s59, s43, 1
    v_mov_b32 v7, s59
    v_mov_b32 v8, 0
    s_mov_b64 exec, 1
    ''')
    e(f'global_store_dword v8, v7, s[28:29] offset:{WS_EPOCH} sc1')
    e('s_mov_b64 exec, -1')
    e.lab('L_fin')
    if stamps and o.get('dbgst'):
        e('s_memrealtime s[94:95]')
        e('s_waitcnt lgkmcnt(0)')
        e('s_mov_b64 exec, 1')
        sel = o['dbgst']
        e('s_not_b32 s59, s70')
        e('v_mov_b32 v6, 0')
        e('v_mov_b32 v7, s59')
        e('global_atomic_umax v6, v7, s[26:27] sc1')
        for k, i in enumerate(sel):
            e(f'v_mov_b32 v{8+k}, s{70+2*i}')
            e(f'global_atomic_umax v6, v{8+k}, s[26:27] offset:{4*(k+1)} sc1')
    elif stamps:
        e('s_memrealtime s[94:95]')
        e('s_waitcnt lgkmcnt(0)')
        e('s_lshl_b32 s59, s2, 3')
        e('s_add_u32 s59, s59, s3')
        e(f's_mul_i32 s59, s59, {16*8}')
        e(f's_add_u32 s59, s59, {WS_STAMP}')
        e('v_mov_b32 v6, s59')
        e('s_mov_b64 exec, 1')
        for i in range(16):
            e(f'v_mov_b32 v{10+2*i}, s{70+2*i}')
            e(f'v_mov_b32 v{11+2*i}, s{71+2*i}')
        for i in range(16):
            e(f'global_store_dwordx2 v6, v[{10+2*i}:{11+2*i}], s[28:29] offset:{8*i}')
    e.lab('L_end')
    e('s_endpgm')
    e.raw('.section .rodata,"a"')
    e.raw('.p2align 6')
    e.raw(f'.amdhsa_kernel {KN}_kernel')
    e.raw('  .amdhsa_next_free_vgpr 256')
    e.raw('  .amdhsa_next_free_sgpr 102')
    e.raw('  .amdhsa_accum_offset 256')
    e.raw('  .amdhsa_group_segment_fixed_size 0')
    e.raw('  .amdhsa_kernarg_size 104')
    e.raw('  .amdhsa_user_sgpr_count 2')
    e.raw('  .amdhsa_user_sgpr_kernarg_segment_ptr 1')
    e.raw('  .amdhsa_system_sgpr_workgroup_id_x 1')
    e.raw('.end_amdhsa_kernel')
    open(path, 'w').write('\n'.join(e.L) + '\n')

if __name__ == '__main__':
    gen('k2.s', stamps=False)
    gen('k2s.s', stamps=True)
    gen('k2d.s', stamps=True, opts=dict(dbgst=[13,14,1,15,2,3,4,5,6,7,8,9,10,11,12]))
```

```python
import sys, struct

KN = 'concat_heads__gqa_block_cached__sliding_block_cached__decode'

def f2u(x):
    return struct.unpack('<I', struct.pack('<f', x))[0]

WS_EPOCH = 0x0
WS_QG    = 0x1000
WS_PART  = 0x20000
WS_STAT  = 0x120000
WS_OUTP  = 0x130000
WS_CLR   = 0x170000
WS_STAMP = 512 << 20
L_WQ  = 0x0
L_RES = 0x0
L_WO  = 0x8000
L_SM  = 0x10000
R_ST  = 0x000
R_QP  = 0x200
R_Q   = 0xA00
R_O   = 0x1200
R_CNT = 0x1600
LDS_BYTES = 86016

TAGC = 0x9E3779B9
SPIN = 1 << 17

class A:
    def __init__(self):
        self.L = []
    def __call__(self, s):
        for line in s.strip('\n').split('\n'):
            line = line.strip()
            if line:
                self.L.append('  ' + line)
    def lab(self, s):
        self.L.append(s + ':')
    def raw(self, s):
        self.L.append(s)

def vr(a, n=4):
    return f'v[{a}:{a+n-1}]'

SETS = [dict(KA=80, KB=96, VA=112, VB=128, tk=68), dict(KA=176, KB=192, VA=208, VB=224, tk=69)]
VT = 144
QR = 64

def gen(path, stamps=False, opts=None):
    o = dict(chk=24, pollwait=16, t1gate=True, rot=0, touch=0)
    o.update(opts or {})
    e = A()
    def stamp(i):
        if stamps:
            e(f's_memrealtime s[{70+2*i}:{71+2*i}]')
    def lds_spin(off, val, label, sleep=1):
        e(f's_mov_b32 s66, {SPIN}')
        e.lab(label)
        e(f'ds_read_b32 v27, v29 offset:{off}')
        e('s_waitcnt lgkmcnt(0)')
        e('v_readfirstlane_b32 s59, v27')
        e(f's_cmp_eq_u32 s59, {val}')
        e(f's_cbranch_scc1 {label}_ok')
        if sleep: e(f's_sleep {sleep}')
        e('s_sub_u32 s66, s66, 1')
        e(f's_cbranch_scc0 {label}')
        e.lab(label + '_ok')

    def touch_block(lab):
        e('s_cmp_lg_u32 s3, 3')
        e(f's_cbranch_scc1 {lab}')
        e('s_lshl_b32 s59, s30, 23')
        e('s_lshl_b32 s60, s31, 19')
        e('s_add_u32 s59, s59, s60')
        e('v_mov_b32 v26, s59')
        e('s_lshl_b32 s59, s40, 4')
        e('s_add_u32 s59, s59, s31')
        e('s_lshr_b32 s59, s59, 3')
        e('s_lshl_b32 s60, s41, 2')
        e('s_add_u32 s59, s59, s60')
        e('s_lshl_b32 s59, s59, 17')
        e('v_mov_b32 v27, s59')
        e('s_mov_b64 exec, 1')
        e('global_load_dword v244, v26, s[6:7] nt')
        e('global_load_dword v245, v26, s[8:9] nt')
        e('global_load_dword v246, v27, s[12:13] nt')
        e('global_load_dword v247, v27, s[22:23] nt')
        e('global_load_dword v248, v22, s[24:25]')
        e('s_mov_b64 exec, -1')
        e.lab(lab)
    e.raw(f'; @launch grid=(256,1,1) block=(256,1,1) lds={LDS_BYTES}')
    e.raw('.amdgcn_target "amdgcn-amd-amdhsa--gfx950"')
    e.raw('.text')
    e.raw(f'.globl {KN}_kernel')
    e.raw('.p2align 8')
    e.raw(f'.type {KN}_kernel,@function')
    e.raw(f'{KN}_kernel:')
    e('s_cmp_ge_u32 s2, 256')
    e('s_cbranch_scc1 L_end')
    if stamps:
        for i in range(70, 102): e(f's_mov_b32 s{i}, 0')
    stamp(0)
    e('''
    s_load_dwordx16 s[4:19], s[0:1], 0
    s_load_dwordx8 s[20:27], s[0:1], 64
    s_load_dwordx2 s[28:29], s[0:1], 96
    v_lshrrev_b32 v4, 6, v0
    v_and_b32 v1, 63, v0
    v_readfirstlane_b32 s3, v4
    s_lshr_b32 s30, s2, 4
    s_and_b32 s31, s2, 15
    s_lshr_b32 s40, s30, 3
    s_and_b32 s41, s30, 7
    v_and_b32 v4, 15, v1
    v_lshrrev_b32 v5, 4, v1
    v_lshlrev_b32 v3, 4, v1
    v_mov_b32 v22, 0
    v_mov_b32 v23, 0
    ''')
    e(f'v_mov_b32 v29, {L_SM + R_CNT}')
    e('''
    s_cmp_lg_u32 s3, 0
    s_cbranch_scc1 L_noinit
    v_mov_b32 v8, 0
    v_mov_b32 v9, 0
    v_mov_b32 v10, 0
    v_mov_b32 v11, 0
    ds_write_b128 v29, v[8:11]
    ds_write_b32 v29, v8 offset:16
    ''')
    e.lab('L_noinit')
    e('''
    v_and_b32 v6, 3, v4
    v_lshrrev_b32 v7, 2, v4
    v_lshl_add_u32 v6, v6, 2, v7
    v_lshlrev_b32 v6, 8, v6
    v_lshl_add_u32 v2, v5, 4, v6
    v_mov_b32 v30, 1
    v_lshrrev_b32 v24, 2, v1
    v_lshlrev_b32 v24, 13, v24
    v_and_b32 v11, 3, v1
    v_lshl_add_u32 v24, v11, 4, v24
    v_and_b32 v25, 1, v1
    v_lshlrev_b32 v25, 10, v25
    v_lshl_add_u32 v25, v5, 4, v25
    s_lshl_b32 s59, s3, 8
    v_add_u32 v25, s59, v25
    s_and_b32 s55, s31, 7
    s_lshl_b32 s55, s55, 1
    s_lshr_b32 s59, s31, 3
    s_or_b32 s55, s55, s59
    s_lshl_b32 s61, s3, 20
    s_lshl_b32 s60, s41, 10
    s_add_u32 s61, s61, s60
    s_lshl_b32 s60, s55, 6
    s_add_u32 s61, s61, s60
    s_lshl_b32 s62, s3, 13
    ''')
    e('s_waitcnt lgkmcnt(0)')
    e('s_barrier')
    stamp(13)
    e('''
    s_cmp_eq_u32 s40, 0
    s_cselect_b32 s52, s10, s20
    s_cselect_b32 s53, s11, s21
    s_cselect_b32 s50, s4, s14
    s_cselect_b32 s51, s5, s15
    s_add_u32 s52, s52, s61
    s_addc_u32 s53, s53, 0
    ''')
    for i in range(8):
        e(f's_add_u32 m0, s62, {L_WQ + i*1024}')
        if i > 0:
            e('s_add_u32 s52, s52, 0x20000')
            e('s_addc_u32 s53, s53, 0')
        else:
            e('s_nop 0')
        e('global_load_lds_dwordx4 v24, s[52:53] nt')
    for kk in range(4):
        e(f'global_load_dwordx4 {vr(144+4*kk)}, v25, s[50:51] offset:{64*kk}')
    e(f'global_load_dword v31, v22, s[28:29] offset:{WS_EPOCH} sc1')
    if o['touch'] == 1: touch_block('L_nt1')

    def set_srd(kp, vp):
        e('s_lshl_b32 s59, s30, 23')
        e(f's_add_u32 s32, s{kp}, s59')
        e(f's_addc_u32 s33, s{kp+1}, 0')
        e('s_and_b32 s33, s33, 0xffff')
        e(f's_add_u32 s36, s{vp}, s59')
        e(f's_addc_u32 s37, s{vp+1}, 0')
        e('s_and_b32 s37, s37, 0xffff')
        e('''
        s_mov_b32 s34, 0x800000
        s_mov_b32 s35, 0x20000
        s_mov_b32 s38, 0x800000
        s_mov_b32 s39, 0x20000
        ''')
    def issue(chunk, S):
        if chunk == 'Ka':
            for j in range(4): e(f'buffer_load_dwordx4 {vr(S["KA"]+4*j)}, v2, s[32:35], s44 offen offset:{64*j} nt')
        elif chunk == 'Kb':
            for j in range(4): e(f'buffer_load_dwordx4 {vr(S["KB"]+4*j)}, v2, s[32:35], s45 offen offset:{64*j} nt')
        elif chunk == 'Va':
            for i in range(4): e(f'buffer_load_dwordx4 {vr(S["VA"]+4*i)}, v3, s[36:39], s44 offen offset:{1024*i} nt')
        elif chunk == 'Vb':
            for i in range(4): e(f'buffer_load_dwordx4 {vr(S["VB"]+4*i)}, v3, s[36:39], s45 offen offset:{1024*i} nt')
    def issue_tile(S):
        for ch in ('Ka', 'Kb', 'Va', 'Vb'): issue(ch, S)
    def tile_off(tkreg):
        if o['rot']:
            e(f's_add_u32 s44, s{tkreg}, s46')
            e('s_and_b32 s44, s44, 63')
            e('s_lshl_b32 s44, s44, 13')
        else:
            e(f's_lshl_b32 s44, s{tkreg}, 13')
        e('s_add_u32 s44, s44, s67')
        e('s_add_u32 s45, s44, 4096')
    set_srd(16, 18)
    e('''
    s_lshl_b32 s44, s31, 16
    s_lshl_b32 s60, s3, 13
    s_add_u32 s44, s44, s60
    ''')
    e(f's_add_u32 s44, s44, {(32768-4096)*256}')
    e('s_add_u32 s45, s44, 4096')
    issue_tile(SETS[0])
    e('''
    s_add_u32 s44, s44, 0x8000
    s_add_u32 s45, s45, 0x8000
    s_mov_b32 s47, 0x05040100
    s_mov_b32 s48, 0x07060302
    ''')
    c = (128 ** -0.5) * 1.4426950408889634
    e(f's_mov_b32 s49, {f2u(c):#x}')
    e('''
    s_lshl_b32 s56, s40, 4
    s_add_u32 s56, s56, s31
    s_and_b32 s57, s56, 7
    s_lshr_b32 s56, s56, 3
    s_lshl_b32 s58, s41, 2
    s_add_u32 s58, s58, s56
    s_lshl_b32 s67, s31, 19
    ''')
    if o['rot']: e(f's_mul_i32 s46, s2, {o["rot"]}')
    e('''
    v_lshrrev_b32 v6, 2, v4
    v_lshl_add_u32 v6, v5, 3, v6
    v_lshlrev_b32 v6, 6, v6
    v_and_b32 v7, 3, v4
    v_lshl_add_u32 v6, v7, 3, v6
    v_add_u32 v6, s62, v6
    v_lshlrev_b32 v7, 7, v4
    v_lshl_add_u32 v7, v5, 4, v7
    s_lshl_b32 s59, s3, 8
    ''')
    e(f's_add_u32 s59, s59, {L_SM}')
    e('v_add_u32 v7, s59, v7')
    if o['touch'] == 2:
        touch_block('L_nt2')
        e('s_cmp_lg_u32 s3, 3')
        e('s_cbranch_scc1 L_w16')
        e('s_waitcnt vmcnt(21)')
        e('s_branch L_w16d')
        e.lab('L_w16')
        e('s_waitcnt vmcnt(16)')
        e.lab('L_w16d')
    else:
        e('s_waitcnt vmcnt(16)')
    stamp(1)
    FR = 176
    for kk in range(4):
        for ct in range(2):
            r = FR + (kk*2+ct)*4
            for h in range(2):
                e(f'ds_read_b64_tr_b16 v[{r+2*h}:{r+2*h+1}], v6 offset:{L_WQ + kk*2048 + h*256 + ct*32}')
    e('v_readfirstlane_b32 s43, v31')
    e('s_waitcnt lgkmcnt(0)')
    for kk in range(4):
        for ct in range(2):
            e(f'v_mfma_f32_16x16x32_bf16 {vr(8+4*ct)}, {vr(FR+(kk*2+ct)*4)}, {vr(144+4*kk)}, ' + ('0' if kk == 0 else vr(8+4*ct)))
    e(f's_add_u32 s42, s43, {TAGC:#x}')
    e('''
    s_nop 5
    s_mov_b32 exec_lo, 0x00030003
    s_mov_b32 exec_hi, 0x00030003
    ''')
    e(f'ds_write_b128 v7, v[8:11] offset:{R_QP}')
    e(f'ds_write_b128 v7, v[12:15] offset:{R_QP+64}')
    e('s_mov_b64 exec, 1')
    e('ds_add_u32 v29, v30 offset:4')
    e('s_mov_b64 exec, -1')
    e('s_cmp_eq_u32 s3, 0')
    e('s_cbranch_scc1 L_w0')
    e('s_cmp_lg_u32 s3, 1')
    e('s_cbranch_scc1 L_noclr')
    e('''
    v_mov_b32 v8, 0
    v_mov_b32 v9, 0
    v_mov_b32 v10, 0
    v_mov_b32 v11, 0
    s_lshl_b32 s61, s30, 6
    s_add_u32 s61, s61, s31
    s_lshl_b32 s62, s61, 9
    ''')
    e(f's_add_u32 s62, s62, {WS_PART}')
    e('''
    v_lshrrev_b32 v6, 5, v1
    v_lshlrev_b32 v6, 13, v6
    v_and_b32 v7, 31, v1
    v_lshl_add_u32 v6, v7, 4, v6
    v_add_u32 v6, s62, v6
    v_add_u32 v7, 0x4000, v6
    v_add_u32 v12, 0x80000, v6
    v_add_u32 v13, 0x84000, v6
    s_lshl_b32 s62, s61, 3
    ''')
    e(f's_add_u32 s62, s62, {WS_STAT}')
    e('''
    v_lshrrev_b32 v14, 2, v1
    v_lshlrev_b32 v14, 13, v14
    v_and_b32 v15, 3, v1
    v_lshl_add_u32 v14, v15, 7, v14
    v_add_u32 v14, s62, v14
    s_lshl_b32 s61, s57, 7
    s_add_u32 s61, s61, s58
    s_lshl_b32 s61, s61, 7
    ''')
    e(f's_add_u32 s61, s61, {WS_OUTP}')
    e('''
    v_lshrrev_b32 v15, 5, v1
    v_lshlrev_b32 v15, 17, v15
    v_bfe_u32 v16, v1, 3, 2
    v_lshl_add_u32 v15, v16, 12, v15
    v_and_b32 v16, 7, v1
    v_lshl_add_u32 v15, v16, 4, v15
    v_add_u32 v15, s61, v15
    ''')
    e.lab('L_noclr')
    if o['t1gate']:
        lds_spin(16, 1, 'L_pub')
    e('s_cmp_lg_u32 s3, 1')
    e('s_cbranch_scc1 L_noclr2')
    e('''
    global_store_dwordx4 v6, v[8:11], s[28:29] sc1
    global_store_dwordx4 v7, v[8:11], s[28:29] sc1
    global_store_dwordx4 v12, v[8:11], s[28:29] sc1
    global_store_dwordx4 v13, v[8:11], s[28:29] sc1
    global_store_dwordx4 v15, v[8:11], s[28:29] sc1
    s_mov_b64 exec, 0xff
    global_store_dwordx2 v14, v[8:9], s[28:29] sc1
    s_mov_b64 exec, -1
    ''')
    e.lab('L_noclr2')
    issue_tile(SETS[1])
    e('s_branch L_wo')
    e.lab('L_w0')
    e('''
    s_lshl_b32 s59, s40, 6
    s_lshl_b32 s60, s41, 2
    s_add_u32 s59, s59, s60
    s_lshr_b32 s60, s55, 2
    s_add_u32 s59, s59, s60
    s_lshl_b32 s59, s59, 9
    s_and_b32 s60, s55, 3
    s_lshl_b32 s60, s60, 7
    s_add_u32 s59, s59, s60
    ''')
    e(f's_add_u32 s59, s59, {WS_QG}')
    e('''
    v_bfe_u32 v6, v1, 4, 1
    v_lshlrev_b32 v8, 14, v6
    v_lshl_add_u32 v8, v4, 3, v8
    v_add_u32 v8, s59, v8
    v_lshlrev_b32 v7, 7, v6
    v_lshl_add_u32 v7, v4, 3, v7
    ''')
    e(f'v_add_u32 v7, {L_SM}, v7')
    e('''
    s_lshl_b32 s59, s40, 5
    s_lshl_b32 s60, s41, 2
    s_add_u32 s59, s59, s60
    s_lshl_b32 s59, s59, 9
    ''')
    e(f's_add_u32 s59, s59, {WS_QG}')
    e('v_add_u32 v12, s59, v3')
    e(f'v_add_u32 v13, {64*512}, v12')
    lds_spin(4, 4, 'L_lq', sleep=0)
    for w in range(4):
        e(f'ds_read_b64 v[{144+2*w}:{145+2*w}], v7 offset:{R_QP + w*256}')
    e('s_waitcnt lgkmcnt(0)')
    for k in range(2):
        e(f'v_add_f32 v{144+k}, v{144+k}, v{146+k}')
        e(f'v_add_f32 v{148+k}, v{148+k}, v{150+k}')
    for k in range(2):
        e(f'v_add_f32 v{144+k}, v{144+k}, v{148+k}')
    e('''
    v_cvt_pk_bf16_f32 v10, v144, v145
    v_mov_b32 v11, s42
    s_mov_b32 exec_hi, 0
    global_store_dwordx2 v8, v[10:11], s[28:29] sc1
    s_mov_b32 exec_hi, -1
    ds_write_b32 v29, v30 offset:16
    ''')
    stamp(2)
    issue_tile(SETS[1])
    e(f's_waitcnt vmcnt({o["pollwait"]})')
    e(f's_mov_b32 s66, {SPIN}')
    e.lab('L_qpoll')
    e('''
    global_load_dwordx4 v[144:147], v12, s[28:29] sc1
    global_load_dwordx4 v[148:151], v12, s[28:29] offset:1024 sc1
    global_load_dwordx4 v[152:155], v13, s[28:29] sc1
    global_load_dwordx4 v[156:159], v13, s[28:29] offset:1024 sc1
    s_waitcnt vmcnt(0)
    ''')
    e('v_cmp_eq_u32 vcc, s42, v145')
    for r in (147, 149, 151, 153, 155, 157, 159):
        e(f'v_cmp_eq_u32 s[64:65], s42, v{r}')
        e('s_and_b64 vcc, vcc, s[64:65]')
    e('''
    s_cmp_eq_u64 vcc, -1
    s_cbranch_scc1 L_qok
    s_sub_u32 s66, s66, 1
    s_cbranch_scc1 L_qok
    s_branch L_qpoll
    ''')
    e.lab('L_qok')
    stamp(3)
    e('v_lshlrev_b32 v6, 3, v1')
    for u in range(4):
        r = 144 + 4*u
        off = L_SM + R_Q + (u >> 1)*1024 + (u & 1)*512
        e(f'v_add_u32 v7, {off}, v6')
        e(f'ds_write2_b32 v7, v{r}, v{r+2} offset0:0 offset1:1')
    e('v_mov_b32 v9, s42')
    e('ds_write_b32 v29, v9 offset:12')
    e('ds_write_b32 v29, v30 offset:8')
    e.lab('L_wo')
    e('''
    v_lshrrev_b32 v10, 3, v1
    v_lshlrev_b32 v10, 10, v10
    v_and_b32 v11, 7, v1
    v_lshl_add_u32 v10, v11, 4, v10
    s_lshl_b32 s59, s58, 17
    s_lshl_b32 s60, s3, 15
    s_add_u32 s59, s59, s60
    s_lshl_b32 s60, s57, 7
    s_add_u32 s59, s59, s60
    s_lshl_b32 s60, s3, 12
    ''')
    for p in range(2):
        wo = 12 if p == 0 else 22
        e(f's_add_u32 s52, s{wo}, s59')
        e(f's_addc_u32 s53, s{wo+1}, 0')
        for i in range(4):
            e(f's_add_u32 m0, s60, {L_WO + p*16384 + i*1024}')
            if i > 0:
                e('s_add_u32 s52, s52, 0x2000')
                e('s_addc_u32 s53, s53, 0')
            else:
                e('s_nop 0')
            e('global_load_lds_dwordx4 v10, s[52:53] nt')
    set_srd(6, 8)
    lds_spin(8, 1, 'L_qflag')
    e('''
    v_and_b32 v6, 3, v4
    v_lshlrev_b32 v6, 8, v6
    v_lshl_add_u32 v31, v5, 4, v6
    ''')
    e(f'v_add_u32 v31, {L_SM}, v31')
    for j in range(4):
        e(f'ds_read_b128 {vr(QR+4*j)}, v31 offset:{R_Q + 1024 + 64*j}')
    for r in range(32, 64): e(f'v_mov_b32 v{r}, 0')
    e(f'v_mov_b32 v20, {f2u(-1e30):#x}')
    e('''
    v_mov_b32 v21, 0
    s_mov_b32 s54, 1
    s_mov_b32 s69, 0
    s_waitcnt lgkmcnt(0)
    ''')
    stamp(4)
    def body(S):
        KA, KB, VA, VB, tk = S['KA'], S['KB'], S['VA'], S['VB'], S['tk']
        e('''
        s_mov_b64 exec, 1
        ds_add_rtn_u32 v26, v29, v30
        s_mov_b64 exec, -1
        s_waitcnt vmcnt(28)
        ''')
        for j in range(4):
            e(f'v_mfma_f32_16x16x32_bf16 v[8:11], {vr(KA+4*j)}, {vr(QR+4*j)}, ' + ('0' if j == 0 else 'v[8:11]'))
        e('s_waitcnt lgkmcnt(0)')
        e(f'v_readfirstlane_b32 s{tk}, v26')
        e(f's_cmp_eq_u32 s{tk}, {o["chk"]}')
        e(f's_cbranch_scc1 L_chk{tk}')
        e.lab(f'L_chkret{tk}')
        tile_off(tk)
        e(f's_cmp_lt_u32 s{tk}, 64')
        e('s_cselect_b32 s34, 0x800000, 0')
        e('s_cselect_b32 s38, 0x800000, 0')
        issue('Ka', S)
        e('s_waitcnt vmcnt(28)')
        for j in range(4):
            e(f'v_mfma_f32_16x16x32_bf16 v[12:15], {vr(KB+4*j)}, {vr(QR+4*j)}, ' + ('0' if j == 0 else 'v[12:15]'))
        issue('Kb', S)
        e('''
        v_max3_f32 v22, v8, v9, v10
        v_max_f32 v22, v22, v11
        s_nop 1
        v_max3_f32 v22, v22, v12, v13
        v_max3_f32 v22, v22, v14, v15
        v_mov_b32 v23, v22
        s_nop 1
        v_permlane32_swap_b32 v23, v22
        v_max_f32 v22, v22, v23
        v_mov_b32 v23, v22
        s_nop 1
        v_permlane16_swap_b32 v23, v22
        v_max_f32 v22, v22, v23
        v_mul_f32 v22, s49, v22
        v_max_f32 v23, v20, v22
        v_sub_f32 v24, v20, v23
        v_exp_f32 v28, v24
        v_mov_b32 v20, v23
        ''')
        for i in range(8): e(f'v_fma_f32 v{8+i}, v{8+i}, s49, -v23')
        for i in range(8): e(f'v_exp_f32 v{8+i}, v{8+i}')
        e('v_mul_f32 v21, v21, v28')
        for j in range(0, 16):
            e(f'v_pk_mul_f32 v[{32+2*j}:{33+2*j}], v[{32+2*j}:{33+2*j}], v[28:29] op_sel_hi:[1,0]')
        e('''
        v_add_f32 v24, v8, v9
        v_add_f32 v25, v10, v11
        v_add_f32 v26, v12, v13
        v_add_f32 v27, v14, v15
        v_cvt_pk_bf16_f32 v16, v8, v9
        v_cvt_pk_bf16_f32 v17, v10, v11
        v_cvt_pk_bf16_f32 v18, v12, v13
        v_cvt_pk_bf16_f32 v19, v14, v15
        v_add_f32 v24, v24, v25
        v_add_f32 v26, v26, v27
        v_add_f32 v21, v21, v24
        v_add_f32 v21, v21, v26
        s_waitcnt vmcnt(28)
        ''')
        for j in range(8):
            w = j >> 1; sel = 's47' if j % 2 == 0 else 's48'
            e(f'v_perm_b32 v{VT+4*j+0}, v{VA+4*1+w}, v{VA+4*0+w}, {sel}')
            e(f'v_perm_b32 v{VT+4*j+1}, v{VA+4*3+w}, v{VA+4*2+w}, {sel}')
        issue('Va', S)
        e('s_waitcnt vmcnt(28)')
        for j in range(8):
            w = j >> 1; sel = 's47' if j % 2 == 0 else 's48'
            e(f'v_perm_b32 v{VT+4*j+2}, v{VB+4*1+w}, v{VB+4*0+w}, {sel}')
            e(f'v_perm_b32 v{VT+4*j+3}, v{VB+4*3+w}, v{VB+4*2+w}, {sel}')
        issue('Vb', S)
        for j in range(8):
            e(f'v_mfma_f32_16x16x32_bf16 {vr(32+4*j)}, {vr(VT+4*j)}, v[16:19], {vr(32+4*j)}')
    e.lab('L_t0')
    body(SETS[0])
    e('''
    s_cmp_lt_u32 s69, 64
    s_cbranch_scc0 L_flush
    ''')
    e.lab('L_t1')
    body(SETS[1])
    e('''
    s_cmp_eq_u32 s54, 1
    s_cbranch_scc1 L_flush
    s_cmp_lt_u32 s68, 64
    s_cbranch_scc1 L_t0
    ''')
    e.lab('L_flush')
    e('''
    v_mov_b32 v23, v21
    s_nop 1
    v_permlane32_swap_b32 v23, v21
    v_add_f32 v21, v21, v23
    v_mov_b32 v23, v21
    s_nop 1
    v_permlane16_swap_b32 v23, v21
    v_add_f32 v21, v21, v23
    s_lshl_b32 s59, s54, 2
    s_add_u32 s59, s59, s3
    s_lshl_b32 s59, s59, 11
    v_lshlrev_b32 v6, 9, v4
    v_lshl_add_u32 v6, v5, 4, v6
    v_add_u32 v6, s59, v6
    s_lshl_b32 s59, s54, 7
    s_lshl_b32 s60, s3, 3
    s_add_u32 s59, s59, s60
    ''')
    e(f's_add_u32 s59, s59, {L_SM}')
    e('''
    v_lshlrev_b32 v7, 5, v4
    v_add_u32 v7, s59, v7
    v_mov_b32 v22, v20
    v_mov_b32 v23, v21
    s_mov_b32 exec_lo, 0x000f000f
    s_mov_b32 exec_hi, 0x000f000f
    ''')
    for j in range(8):
        e(f'ds_write_b128 v6, {vr(32+4*j)} offset:{L_RES + 64*j}')
    e('s_mov_b64 exec, 15')
    e(f'ds_write_b64 v7, v[22:23] offset:{R_ST}')
    e('s_mov_b64 exec, -1')
    e('s_cmp_eq_u32 s54, 0')
    e('s_cbranch_scc1 L_tail')
    stamp(5)
    for j in range(4):
        e(f'ds_read_b128 {vr(QR+4*j)}, v31 offset:{R_Q + 64*j}')
    e('s_cmp_lg_u32 s3, 1')
    e('s_cbranch_scc1 L_noflag')
    e('ds_read_b32 v9, v29 offset:12')
    e('s_lshl_b32 s59, s2, 7')
    e(f's_add_u32 s59, s59, {WS_CLR}')
    e('v_mov_b32 v6, s59')
    e('s_waitcnt lgkmcnt(0)')
    e('s_mov_b64 exec, 1')
    e('global_store_dword v6, v9, s[28:29] sc1')
    e('s_mov_b64 exec, -1')
    e.lab('L_noflag')
    for r in range(32, 64): e(f'v_mov_b32 v{r}, 0')
    e(f'v_mov_b32 v20, {f2u(-1e30):#x}')
    e('''
    v_mov_b32 v21, 0
    s_mov_b32 s54, 0
    s_waitcnt lgkmcnt(0)
    s_cmp_lt_u32 s68, 64
    s_cbranch_scc1 L_t0
    s_branch L_flush
    ''')
    for tk in (68, 69):
        e.lab(f'L_chk{tk}')
        e('ds_read_b32 v27, v29 offset:12')
        e('''
        v_bfe_u32 v25, v1, 4, 1
        v_lshlrev_b32 v25, 7, v25
        v_add_u32 v25, v25, v4
        s_lshl_b32 s59, s41, 4
        v_add_u32 v25, s59, v25
        v_and_b32 v24, 31, v1
        v_bfe_u32 v240, v24, 1, 1
        v_lshlrev_b32 v240, 7, v240
        v_lshrrev_b32 v241, 2, v24
        v_lshl_add_u32 v240, v241, 4, v240
        v_and_b32 v241, 1, v24
        v_lshl_add_u32 v240, v241, 3, v240
        s_lshr_b32 s59, s2, 2
        s_and_b32 s59, s59, 7
        v_add_u32 v240, s59, v240
        v_cmp_gt_u32 vcc, 32, v1
        s_nop 1
        v_cndmask_b32 v25, v240, v25, vcc
        v_lshlrev_b32 v25, 7, v25
        ''')
        e(f'v_add_u32 v25, {WS_CLR}, v25')
        e(f's_mov_b32 s66, {SPIN}')
        e.lab(f'L_chkl{tk}')
        e('''
        global_load_dword v240, v25, s[28:29] sc1
        s_waitcnt vmcnt(0) lgkmcnt(0)
        v_cmp_eq_u32 vcc, v27, v240
        s_cmp_eq_u64 vcc, -1
        ''')
        e(f's_cbranch_scc1 L_chkret{tk}')
        e('s_sub_u32 s66, s66, 1')
        e(f's_cbranch_scc1 L_chkret{tk}')
        e('s_sleep 16')
        e(f's_branch L_chkl{tk}')
    e.lab('L_tail')
    stamp(6)
    e('s_waitcnt vmcnt(0) lgkmcnt(0)')
    e('s_barrier')
    stamp(7)
    e('''
    s_lshl_b32 s61, s3, 9
    v_lshlrev_b32 v6, 2, v1
    v_add_u32 v6, s61, v6
    s_lshl_b32 s61, s3, 5
    ''')
    e(f's_add_u32 s61, s61, {L_SM}')
    e('v_mov_b32 v7, s61')
    e('''
    s_lshl_b32 s61, s30, 2
    s_add_u32 s61, s61, s3
    s_lshl_b32 s61, s61, 4
    s_add_u32 s61, s61, s31
    s_lshl_b32 s62, s61, 9
    ''')
    e(f's_add_u32 s62, s62, {WS_PART}')
    e('v_lshlrev_b32 v9, 2, v1')
    e('v_add_u32 v9, s62, v9')
    e('s_lshl_b32 s62, s61, 3')
    e(f's_add_u32 s62, s62, {WS_STAT}')
    e('v_mov_b32 v10, s62')
    for p in range(2):
        base = 64 + 32*p
        for k in range(2):
            e(f'ds_read_b128 {vr(base+4*k)}, v7 offset:{R_ST + p*128 + 16*k}')
        for half in range(2):
            for w in range(4):
                e(f'ds_read_b32 v{base+8+4*half+w}, v6 offset:{L_RES + (p*4+w)*2048 + half*256}')
    e('s_waitcnt lgkmcnt(0)')
    for p in range(2):
        base = 64 + 32*p
        m = [base + 2*w for w in range(4)]; l = [base + 2*w + 1 for w in range(4)]
        M = base + 24; L = base + 26; a0 = base + 16; a1 = base + 17
        e(f'v_max3_f32 v{M}, v{m[0]}, v{m[1]}, v{m[2]}')
        e(f'v_max_f32 v{M}, v{M}, v{m[3]}')
        for w in range(4): e(f'v_sub_f32 v{m[w]}, v{m[w]}, v{M}')
        for w in range(4): e(f'v_exp_f32 v{m[w]}, v{m[w]}')
        e('s_nop 0')
        e(f'v_mul_f32 v{a0}, v{m[0]}, v{base+8}')
        e(f'v_mul_f32 v{a1}, v{m[0]}, v{base+12}')
        e(f'v_mul_f32 v{L}, v{m[0]}, v{l[0]}')
        for w in range(1, 4):
            e(f'v_fmac_f32 v{a0}, v{m[w]}, v{base+8+w}')
            e(f'v_fmac_f32 v{a1}, v{m[w]}, v{base+12+w}')
            e(f'v_fmac_f32 v{L}, v{m[w]}, v{l[w]}')
        e(f'v_or_b32 v{a0}, 1, v{a0}')
        e(f'v_or_b32 v{a1}, 1, v{a1}')
        e(f'v_or_b32 v{base+28}, 1, v{M}')
        e(f'v_or_b32 v{base+29}, 1, v{L}')
        if p == 1:
            e('v_add_u32 v9, 0x80000, v9')
            e('v_add_u32 v10, 0x2000, v10')
        e(f'global_store_dword v9, v{a0}, s[28:29] sc1')
        e(f'global_store_dword v9, v{a1}, s[28:29] offset:256 sc1')
        e('s_mov_b64 exec, 1')
        e(f'global_store_dwordx2 v10, v[{base+28}:{base+29}], s[28:29] sc1')
        e('s_mov_b64 exec, -1')
    stamp(8)
    e('''
    s_lshr_b32 s59, s3, 1
    s_and_b32 s60, s3, 1
    s_lshl_b32 s61, s59, 4
    s_lshl_b32 s62, s60, 3
    s_add_u32 s61, s61, s62
    s_add_u32 s61, s61, s41
    s_lshl_b32 s61, s61, 2
    s_add_u32 s61, s61, s56
    s_lshl_b32 s62, s61, 7
    ''')
    e(f's_add_u32 s62, s62, {WS_STAT}')
    e('v_lshlrev_b32 v6, 3, v4')
    e('v_add_u32 v6, s62, v6')
    e('s_lshl_b32 s62, s61, 13')
    e(f's_add_u32 s62, s62, {WS_PART}')
    e('v_lshlrev_b32 v7, 3, v1')
    e('v_add_u32 v7, s62, v7')
    e('v_add_u32 v8, 4096, v7')
    e(f's_mov_b32 s66, {SPIN}')
    e.lab('L_spoll')
    e('''
    global_load_dwordx2 v[10:11], v6, s[28:29] sc1
    s_waitcnt vmcnt(0)
    v_and_b32 v12, v10, v11
    v_and_b32 v12, 1, v12
    v_cmp_eq_u32 vcc, 1, v12
    s_cmp_eq_u64 vcc, -1
    s_cbranch_scc1 L_sok
    s_sub_u32 s66, s66, 1
    s_cbranch_scc1 L_sok
    s_sleep 2
    s_branch L_spoll
    ''')
    e.lab('L_sok')
    stamp(9)
    e.lab('L_dpoll')
    D = 64
    for s in range(16):
        va = 'v7' if s < 8 else 'v8'
        e(f'global_load_dwordx2 v[{D+2*s}:{D+2*s+1}], {va}, s[28:29] offset:{(s%8)*512} sc1')
    e('''
    v_max_f32_dpp v12, v10, v10 row_ror:8 row_mask:0xf bank_mask:0xf
    s_nop 1
    v_max_f32_dpp v13, v12, v12 row_ror:4 row_mask:0xf bank_mask:0xf
    s_nop 1
    v_max_f32_dpp v12, v13, v13 row_ror:2 row_mask:0xf bank_mask:0xf
    s_nop 1
    v_max_f32_dpp v13, v12, v12 row_ror:1 row_mask:0xf bank_mask:0xf
    v_sub_f32 v14, v10, v13
    v_exp_f32 v14, v14
    s_nop 0
    v_mul_f32 v15, v14, v11
    s_nop 1
    v_add_f32_dpp v12, v15, v15 row_ror:8 row_mask:0xf bank_mask:0xf
    s_nop 1
    v_add_f32_dpp v15, v12, v12 row_ror:4 row_mask:0xf bank_mask:0xf
    s_nop 1
    v_add_f32_dpp v12, v15, v15 row_ror:2 row_mask:0xf bank_mask:0xf
    s_nop 1
    v_add_f32_dpp v15, v12, v12 row_ror:1 row_mask:0xf bank_mask:0xf
    v_rcp_f32 v15, v15
    s_nop 0
    v_mul_f32 v14, v14, v15
    s_waitcnt vmcnt(0)
    ''')
    regs = list(range(D, D+32))
    e(f'v_bitop3_b32 v12, v{regs[0]}, v{regs[1]}, v{regs[2]} bitop3:0x80')
    k = 3
    while k + 1 < 32:
        e(f'v_bitop3_b32 v12, v12, v{regs[k]}, v{regs[k+1]} bitop3:0x80'); k += 2
    e(f'v_and_b32 v12, v12, v{regs[31]}')
    e('''
    v_and_b32 v12, 1, v12
    v_cmp_eq_u32 vcc, 1, v12
    s_cmp_eq_u64 vcc, -1
    s_cbranch_scc1 L_dok
    s_sub_u32 s66, s66, 1
    s_cbranch_scc1 L_dok
    s_branch L_dpoll
    ''')
    e.lab('L_dok')
    e('v_mov_b32 v16, 0')
    e('v_mov_b32 v17, 0')
    e('s_nop 1')
    for s in range(16):
        e(f'v_fmac_f32_dpp v16, v14, v{D+2*s} row_newbcast:{s} row_mask:0xf bank_mask:0xf')
        e(f'v_fmac_f32_dpp v17, v14, v{D+2*s+1} row_newbcast:{s} row_mask:0xf bank_mask:0xf')
    e('''
    v_cvt_pk_bf16_f32 v18, v16, v17
    v_lshrrev_b32 v12, 3, v1
    v_bfe_u32 v13, v1, 1, 2
    v_lshl_add_u32 v12, v13, 5, v12
    v_and_b32 v13, 1, v1
    v_lshl_add_u32 v12, v13, 4, v12
    v_lshlrev_b32 v12, 1, v12
    s_lshl_b32 s61, s3, 8
    ''')
    e(f's_add_u32 s61, s61, {L_SM}')
    e('v_add_u32 v12, s61, v12')
    e(f'ds_write_b16 v12, v18 offset:{R_O}')
    e(f'ds_write_b16_d16_hi v12, v18 offset:{R_O+16}')
    e('''
    v_lshrrev_b32 v6, 2, v4
    v_lshl_add_u32 v6, v5, 3, v6
    v_lshlrev_b32 v6, 7, v6
    v_and_b32 v7, 3, v4
    v_lshl_add_u32 v6, v7, 3, v6
    s_lshl_b32 s62, s3, 5
    v_add_u32 v6, s62, v6
    v_and_b32 v7, 1, v4
    v_lshlrev_b32 v7, 8, v7
    v_lshl_add_u32 v7, v5, 4, v7
    ''')
    e(f'v_add_u32 v7, {L_SM}, v7')
    e('''
    s_lshl_b32 s61, s57, 2
    s_add_u32 s61, s61, s3
    s_lshl_b32 s61, s61, 5
    s_add_u32 s61, s61, s58
    s_lshl_b32 s61, s61, 7
    ''')
    e(f's_add_u32 s63, s61, {WS_OUTP}')
    e('v_lshlrev_b32 v19, 2, v4')
    e('v_add_u32 v19, s63, v19')
    e('s_waitcnt lgkmcnt(0)')
    e('s_barrier')
    stamp(10)
    for p in range(2):
        for kk in range(4):
            e(f'ds_read_b128 {vr(96+16*p+4*kk)}, v7 offset:{R_O + p*512 + kk*64}')
            for h in range(2):
                r = 64 + 16*p + 4*kk + 2*h
                e(f'ds_read_b64_tr_b16 v[{r}:{r+1}], v6 offset:{L_WO + p*16384 + kk*4096 + h*512}')
    e('s_waitcnt lgkmcnt(0)')
    for kk in range(4):
        for p in range(2):
            e(f'v_mfma_f32_16x16x32_bf16 {vr(8+4*p)}, {vr(96+16*p+4*kk)}, {vr(64+16*p+4*kk)}, ' + ('0' if kk == 0 else vr(8+4*p)))
    e('''
    v_add_u32 v18, 0x20000, v19
    s_nop 6
    v_or_b32 v8, 1, v8
    v_or_b32 v9, 1, v9
    v_or_b32 v12, 1, v12
    v_or_b32 v13, 1, v13
    s_mov_b64 exec, 0xffff
    global_store_dword v19, v8, s[28:29] sc1
    global_store_dword v19, v9, s[28:29] offset:64 sc1
    global_store_dword v18, v12, s[28:29] sc1
    global_store_dword v18, v13, s[28:29] offset:64 sc1
    s_mov_b64 exec, -1
    ''')
    stamp(11)
    e('s_cmp_lg_u32 s3, 0')
    e('s_cbranch_scc1 ' + ('L_fin' if stamps else 'L_end'))
    e('s_cmp_ge_u32 s2, 64')
    e('s_cbranch_scc1 L_fin')
    e('s_lshl_b32 s59, s2, 12')
    e(f's_add_u32 s59, s59, {WS_OUTP}')
    e('''
    v_lshrrev_b32 v6, 5, v1
    v_lshlrev_b32 v6, 11, v6
    v_and_b32 v7, 31, v1
    v_lshl_add_u32 v6, v7, 2, v6
    v_add_u32 v6, s59, v6
    ''')
    e(f's_mov_b32 s66, {SPIN}')
    e.lab('L_opoll')
    for u in range(16):
        e(f'global_load_dword v{64+u}, v6, s[28:29] offset:{u*128} sc1')
    e('s_waitcnt vmcnt(0)')
    e('v_bitop3_b32 v12, v64, v65, v66 bitop3:0x80')
    k = 67
    while k + 1 < 80:
        e(f'v_bitop3_b32 v12, v12, v{k}, v{k+1} bitop3:0x80'); k += 2
    e('v_and_b32 v12, v12, v79')
    e('''
    v_and_b32 v12, 1, v12
    v_cmp_eq_u32 vcc, 1, v12
    s_cmp_eq_u64 vcc, -1
    s_cbranch_scc1 L_ook
    s_sub_u32 s66, s66, 1
    s_cbranch_scc1 L_ook
    s_branch L_opoll
    ''')
    e.lab('L_ook')
    for k in range(0, 16, 2): e(f'v_add_f32 v{64+k}, v{64+k}, v{65+k}')
    for k in range(0, 16, 4): e(f'v_add_f32 v{64+k}, v{64+k}, v{66+k}')
    e('''
    v_add_f32 v64, v64, v68
    v_add_f32 v72, v72, v76
    v_add_f32 v64, v64, v72
    v_mov_b32 v65, v64
    s_nop 1
    v_permlane32_swap_b32 v65, v64
    v_add_f32 v64, v64, v65
    v_cvt_pk_bf16_f32 v64, v64, v64
    v_bfe_u32 v6, v1, 4, 1
    v_lshlrev_b32 v6, 10, v6
    v_add_u32 v6, v6, v4
    s_lshl_b32 s59, s2, 4
    v_add_u32 v6, s59, v6
    v_lshlrev_b32 v6, 1, v6
    s_mov_b32 exec_hi, 0
    global_store_short v6, v64, s[24:25]
    s_mov_b32 exec_hi, -1
    s_cmp_lg_u32 s2, 0
    s_cbranch_scc1 L_fin
    s_add_u32 s59, s43, 1
    v_mov_b32 v7, s59
    v_mov_b32 v8, 0
    s_mov_b64 exec, 1
    ''')
    e(f'global_store_dword v8, v7, s[28:29] offset:{WS_EPOCH} sc1')
    e('s_mov_b64 exec, -1')
    e.lab('L_fin')
    if stamps:
        e('s_memrealtime s[94:95]')
        e('s_waitcnt lgkmcnt(0)')
        e('s_lshl_b32 s59, s2, 3')
        e('s_add_u32 s59, s59, s3')
        e(f's_mul_i32 s59, s59, {16*8}')
        e(f's_add_u32 s59, s59, {WS_STAMP}')
        e('v_mov_b32 v6, s59')
        e('s_mov_b64 exec, 1')
        for i in range(16):
            e(f'v_mov_b32 v{10+2*i}, s{70+2*i}')
            e(f'v_mov_b32 v{11+2*i}, s{71+2*i}')
        for i in range(16):
            e(f'global_store_dwordx2 v6, v[{10+2*i}:{11+2*i}], s[28:29] offset:{8*i}')
    e.lab('L_end')
    e('s_endpgm')
    e.raw('.section .rodata,"a"')
    e.raw('.p2align 6')
    e.raw(f'.amdhsa_kernel {KN}_kernel')
    e.raw('  .amdhsa_next_free_vgpr 256')
    e.raw('  .amdhsa_next_free_sgpr 102')
    e.raw('  .amdhsa_accum_offset 256')
    e.raw('  .amdhsa_group_segment_fixed_size 0')
    e.raw('  .amdhsa_kernarg_size 104')
    e.raw('  .amdhsa_user_sgpr_count 2')
    e.raw('  .amdhsa_user_sgpr_kernarg_segment_ptr 1')
    e.raw('  .amdhsa_system_sgpr_workgroup_id_x 1')
    e.raw('.end_amdhsa_kernel')
    open(path, 'w').write('\n'.join(e.L) + '\n')

if __name__ == '__main__':
    gen('k6.s')
    gen('k6s.s', stamps=True)
    gen('k6s_t1.s', stamps=True, opts=dict(touch=1))
    gen('k6s_t2.s', stamps=True, opts=dict(touch=2))
    gen('k6_t1.s', opts=dict(touch=1))
    gen('k6_t2.s', opts=dict(touch=2))
```

```python
import sys, struct

KN = 'concat_heads__gqa_block_cached__sliding_block_cached__decode'

def f2u(x):
    return struct.unpack('<I', struct.pack('<f', x))[0]

WS_EPOCH = 0x0
WS_QG    = 0x1000
WS_PART  = 0x20000
WS_STAT  = 0x120000
WS_OUTP  = 0x130000
WS_CLR   = 0x170000
WS_STAMP = 512 << 20
L_WQ  = 0x0
L_RES = 0x0
L_WO  = 0x8000
L_SM  = 0x10000
R_ST  = 0x000
R_QP  = 0x200
R_Q   = 0xA00
R_O   = 0x1200
R_CNT = 0x1600
LDS_BYTES = 86016

TAGC = 0x9E3779B9
SPIN = 1 << 17

class A:
    def __init__(self):
        self.L = []
    def __call__(self, s):
        for line in s.strip('\n').split('\n'):
            line = line.strip()
            if line:
                self.L.append('  ' + line)
    def lab(self, s):
        self.L.append(s + ':')
    def raw(self, s):
        self.L.append(s)

def vr(a, n=4):
    return f'v[{a}:{a+n-1}]'

SETS = [dict(KA=80, KB=96, VA=112, VB=128, tk=68), dict(KA=176, KB=192, VA=208, VB=224, tk=69)]
VT = 144
QR = 64

def gen(path, stamps=False, opts=None):
    o = dict(chk=24, pollwait=16, t1gate=True, rot=0, touch=0, polB='nt', polW='nt', polA='nt')
    o.update(opts or {})
    e = A()
    def stamp(i):
        if stamps:
            e(f's_memrealtime s[{70+2*i}:{71+2*i}]')
    def lds_spin(off, val, label, sleep=1):
        e(f's_mov_b32 s66, {SPIN}')
        e.lab(label)
        e(f'ds_read_b32 v27, v29 offset:{off}')
        e('s_waitcnt lgkmcnt(0)')
        e('v_readfirstlane_b32 s59, v27')
        e(f's_cmp_eq_u32 s59, {val}')
        e(f's_cbranch_scc1 {label}_ok')
        if sleep: e(f's_sleep {sleep}')
        e('s_sub_u32 s66, s66, 1')
        e(f's_cbranch_scc0 {label}')
        e.lab(label + '_ok')

    def touch_block(lab):
        e('s_cmp_lg_u32 s3, 3')
        e(f's_cbranch_scc1 {lab}')
        e('s_lshl_b32 s59, s30, 23')
        e('s_lshl_b32 s60, s31, 19')
        e('s_add_u32 s59, s59, s60')
        e('v_mov_b32 v26, s59')
        e('s_lshl_b32 s59, s40, 4')
        e('s_add_u32 s59, s59, s31')
        e('s_lshr_b32 s59, s59, 3')
        e('s_lshl_b32 s60, s41, 2')
        e('s_add_u32 s59, s59, s60')
        e('s_lshl_b32 s59, s59, 17')
        e('v_mov_b32 v27, s59')
        e('s_mov_b64 exec, 1')
        e('global_load_dword v244, v26, s[6:7] nt')
        e('global_load_dword v245, v26, s[8:9] nt')
        e('global_load_dword v246, v27, s[12:13] nt')
        e('global_load_dword v247, v27, s[22:23] nt')
        e('global_load_dword v248, v22, s[24:25]')
        e('s_mov_b64 exec, -1')
        e.lab(lab)
    e.raw(f'; @launch grid=(256,1,1) block=(256,1,1) lds={LDS_BYTES}')
    e.raw('.amdgcn_target "amdgcn-amd-amdhsa--gfx950"')
    e.raw('.text')
    e.raw(f'.globl {KN}_kernel')
    e.raw('.p2align 8')
    e.raw(f'.type {KN}_kernel,@function')
    e.raw(f'{KN}_kernel:')
    e('s_cmp_ge_u32 s2, 256')
    e('s_cbranch_scc1 L_end')
    if stamps:
        for i in range(70, 102): e(f's_mov_b32 s{i}, 0')
    stamp(0)
    e('''
    s_load_dwordx16 s[4:19], s[0:1], 0
    s_load_dwordx8 s[20:27], s[0:1], 64
    s_load_dwordx2 s[28:29], s[0:1], 96
    v_lshrrev_b32 v4, 6, v0
    v_and_b32 v1, 63, v0
    v_readfirstlane_b32 s3, v4
    s_lshr_b32 s30, s2, 4
    s_and_b32 s31, s2, 15
    s_lshr_b32 s40, s30, 3
    s_and_b32 s41, s30, 7
    v_and_b32 v4, 15, v1
    v_lshrrev_b32 v5, 4, v1
    v_lshlrev_b32 v3, 4, v1
    v_mov_b32 v22, 0
    v_mov_b32 v23, 0
    ''')
    e(f'v_mov_b32 v29, {L_SM + R_CNT}')
    e('''
    s_cmp_lg_u32 s3, 0
    s_cbranch_scc1 L_noinit
    v_mov_b32 v8, 0
    v_mov_b32 v9, 0
    v_mov_b32 v10, 0
    v_mov_b32 v11, 0
    ds_write_b128 v29, v[8:11]
    ds_write_b32 v29, v8 offset:16
    ''')
    e.lab('L_noinit')
    e('''
    v_and_b32 v6, 3, v4
    v_lshrrev_b32 v7, 2, v4
    v_lshl_add_u32 v6, v6, 2, v7
    v_lshlrev_b32 v6, 8, v6
    v_lshl_add_u32 v2, v5, 4, v6
    v_mov_b32 v30, 1
    v_lshrrev_b32 v24, 2, v1
    v_lshlrev_b32 v24, 13, v24
    v_and_b32 v11, 3, v1
    v_lshl_add_u32 v24, v11, 4, v24
    v_and_b32 v25, 1, v1
    v_lshlrev_b32 v25, 10, v25
    v_lshl_add_u32 v25, v5, 4, v25
    s_lshl_b32 s59, s3, 8
    v_add_u32 v25, s59, v25
    s_and_b32 s55, s31, 7
    s_lshl_b32 s55, s55, 1
    s_lshr_b32 s59, s31, 3
    s_or_b32 s55, s55, s59
    s_lshl_b32 s61, s3, 20
    s_lshl_b32 s60, s41, 10
    s_add_u32 s61, s61, s60
    s_lshl_b32 s60, s55, 6
    s_add_u32 s61, s61, s60
    s_lshl_b32 s62, s3, 13
    ''')
    e('s_waitcnt lgkmcnt(0)')
    e('s_barrier')
    stamp(13)
    e('''
    s_cmp_eq_u32 s40, 0
    s_cselect_b32 s52, s10, s20
    s_cselect_b32 s53, s11, s21
    s_cselect_b32 s50, s4, s14
    s_cselect_b32 s51, s5, s15
    s_add_u32 s52, s52, s61
    s_addc_u32 s53, s53, 0
    ''')
    for i in range(8):
        e(f's_add_u32 m0, s62, {L_WQ + i*1024}')
        if i > 0:
            e('s_add_u32 s52, s52, 0x20000')
            e('s_addc_u32 s53, s53, 0')
        else:
            e('s_nop 0')
        e(f'global_load_lds_dwordx4 v24, s[52:53] {o["polW"]}')
    for kk in range(4):
        e(f'global_load_dwordx4 {vr(144+4*kk)}, v25, s[50:51] offset:{64*kk}')
    e(f'global_load_dword v31, v22, s[28:29] offset:{WS_EPOCH} sc1')
    if o['touch'] == 1: touch_block('L_nt1')

    def set_srd(kp, vp):
        e('s_lshl_b32 s59, s30, 23')
        e(f's_add_u32 s32, s{kp}, s59')
        e(f's_addc_u32 s33, s{kp+1}, 0')
        e('s_and_b32 s33, s33, 0xffff')
        e(f's_add_u32 s36, s{vp}, s59')
        e(f's_addc_u32 s37, s{vp+1}, 0')
        e('s_and_b32 s37, s37, 0xffff')
        e('''
        s_mov_b32 s34, 0x800000
        s_mov_b32 s35, 0x20000
        s_mov_b32 s38, 0x800000
        s_mov_b32 s39, 0x20000
        ''')
    def issue(chunk, S, pol=None):
        pol = o['polA'] if pol is None else pol
        if chunk == 'Ka':
            for j in range(4): e(f'buffer_load_dwordx4 {vr(S["KA"]+4*j)}, v2, s[32:35], s44 offen offset:{64*j} {pol}')
        elif chunk == 'Kb':
            for j in range(4): e(f'buffer_load_dwordx4 {vr(S["KB"]+4*j)}, v2, s[32:35], s45 offen offset:{64*j} {pol}')
        elif chunk == 'Va':
            for i in range(4): e(f'buffer_load_dwordx4 {vr(S["VA"]+4*i)}, v3, s[36:39], s44 offen offset:{1024*i} {pol}')
        elif chunk == 'Vb':
            for i in range(4): e(f'buffer_load_dwordx4 {vr(S["VB"]+4*i)}, v3, s[36:39], s45 offen offset:{1024*i} {pol}')
    def issue_tile(S):
        for ch in ('Ka', 'Kb', 'Va', 'Vb'): issue(ch, S, o['polB'])
    def tile_off(tkreg):
        if o['rot']:
            e(f's_add_u32 s44, s{tkreg}, s46')
            e('s_and_b32 s44, s44, 63')
            e('s_lshl_b32 s44, s44, 13')
        else:
            e(f's_lshl_b32 s44, s{tkreg}, 13')
        e('s_add_u32 s44, s44, s67')
        e('s_add_u32 s45, s44, 4096')
    set_srd(16, 18)
    e('''
    s_lshl_b32 s44, s31, 16
    s_lshl_b32 s60, s3, 13
    s_add_u32 s44, s44, s60
    ''')
    e(f's_add_u32 s44, s44, {(32768-4096)*256}')
    e('s_add_u32 s45, s44, 4096')
    issue_tile(SETS[0])
    e('''
    s_add_u32 s44, s44, 0x8000
    s_add_u32 s45, s45, 0x8000
    s_mov_b32 s47, 0x05040100
    s_mov_b32 s48, 0x07060302
    ''')
    c = (128 ** -0.5) * 1.4426950408889634
    e(f's_mov_b32 s49, {f2u(c):#x}')
    e('''
    s_lshl_b32 s56, s40, 4
    s_add_u32 s56, s56, s31
    s_and_b32 s57, s56, 7
    s_lshr_b32 s56, s56, 3
    s_lshl_b32 s58, s41, 2
    s_add_u32 s58, s58, s56
    s_lshl_b32 s67, s31, 19
    ''')
    if o['rot']: e(f's_mul_i32 s46, s2, {o["rot"]}')
    e('''
    v_lshrrev_b32 v6, 2, v4
    v_lshl_add_u32 v6, v5, 3, v6
    v_lshlrev_b32 v6, 6, v6
    v_and_b32 v7, 3, v4
    v_lshl_add_u32 v6, v7, 3, v6
    v_add_u32 v6, s62, v6
    v_lshlrev_b32 v7, 7, v4
    v_lshl_add_u32 v7, v5, 4, v7
    s_lshl_b32 s59, s3, 8
    ''')
    e(f's_add_u32 s59, s59, {L_SM}')
    e('v_add_u32 v7, s59, v7')
    if o['touch'] == 2:
        touch_block('L_nt2')
        e('s_cmp_lg_u32 s3, 3')
        e('s_cbranch_scc1 L_w16')
        e('s_waitcnt vmcnt(21)')
        e('s_branch L_w16d')
        e.lab('L_w16')
        e('s_waitcnt vmcnt(16)')
        e.lab('L_w16d')
    else:
        e('s_waitcnt vmcnt(16)')
    stamp(1)
    FR = 176
    for kk in range(4):
        for ct in range(2):
            r = FR + (kk*2+ct)*4
            for h in range(2):
                e(f'ds_read_b64_tr_b16 v[{r+2*h}:{r+2*h+1}], v6 offset:{L_WQ + kk*2048 + h*256 + ct*32}')
    e('v_readfirstlane_b32 s43, v31')
    e('s_waitcnt lgkmcnt(0)')
    for kk in range(4):
        for ct in range(2):
            e(f'v_mfma_f32_16x16x32_bf16 {vr(8+4*ct)}, {vr(FR+(kk*2+ct)*4)}, {vr(144+4*kk)}, ' + ('0' if kk == 0 else vr(8+4*ct)))
    e(f's_add_u32 s42, s43, {TAGC:#x}')
    e('''
    s_nop 5
    s_mov_b32 exec_lo, 0x00030003
    s_mov_b32 exec_hi, 0x00030003
    ''')
    e(f'ds_write_b128 v7, v[8:11] offset:{R_QP}')
    e(f'ds_write_b128 v7, v[12:15] offset:{R_QP+64}')
    e('s_mov_b64 exec, 1')
    e('ds_add_u32 v29, v30 offset:4')
    e('s_mov_b64 exec, -1')
    e('s_cmp_eq_u32 s3, 0')
    e('s_cbranch_scc1 L_w0')
    e('s_cmp_lg_u32 s3, 1')
    e('s_cbranch_scc1 L_noclr')
    e('''
    v_mov_b32 v8, 0
    v_mov_b32 v9, 0
    v_mov_b32 v10, 0
    v_mov_b32 v11, 0
    s_lshl_b32 s61, s30, 6
    s_add_u32 s61, s61, s31
    s_lshl_b32 s62, s61, 9
    ''')
    e(f's_add_u32 s62, s62, {WS_PART}')
    e('''
    v_lshrrev_b32 v6, 5, v1
    v_lshlrev_b32 v6, 13, v6
    v_and_b32 v7, 31, v1
    v_lshl_add_u32 v6, v7, 4, v6
    v_add_u32 v6, s62, v6
    v_add_u32 v7, 0x4000, v6
    v_add_u32 v12, 0x80000, v6
    v_add_u32 v13, 0x84000, v6
    s_lshl_b32 s62, s61, 3
    ''')
    e(f's_add_u32 s62, s62, {WS_STAT}')
    e('''
    v_lshrrev_b32 v14, 2, v1
    v_lshlrev_b32 v14, 13, v14
    v_and_b32 v15, 3, v1
    v_lshl_add_u32 v14, v15, 7, v14
    v_add_u32 v14, s62, v14
    s_lshl_b32 s61, s57, 7
    s_add_u32 s61, s61, s58
    s_lshl_b32 s61, s61, 7
    ''')
    e(f's_add_u32 s61, s61, {WS_OUTP}')
    e('''
    v_lshrrev_b32 v15, 5, v1
    v_lshlrev_b32 v15, 17, v15
    v_bfe_u32 v16, v1, 3, 2
    v_lshl_add_u32 v15, v16, 12, v15
    v_and_b32 v16, 7, v1
    v_lshl_add_u32 v15, v16, 4, v15
    v_add_u32 v15, s61, v15
    ''')
    e.lab('L_noclr')
    if o['t1gate']:
        lds_spin(16, 1, 'L_pub')
    e('s_cmp_lg_u32 s3, 1')
    e('s_cbranch_scc1 L_noclr2')
    e('''
    global_store_dwordx4 v6, v[8:11], s[28:29] sc1
    global_store_dwordx4 v7, v[8:11], s[28:29] sc1
    global_store_dwordx4 v12, v[8:11], s[28:29] sc1
    global_store_dwordx4 v13, v[8:11], s[28:29] sc1
    global_store_dwordx4 v15, v[8:11], s[28:29] sc1
    s_mov_b64 exec, 0xff
    global_store_dwordx2 v14, v[8:9], s[28:29] sc1
    s_mov_b64 exec, -1
    ''')
    e.lab('L_noclr2')
    issue_tile(SETS[1])
    e('s_branch L_wo')
    e.lab('L_w0')
    e('''
    s_lshl_b32 s59, s40, 6
    s_lshl_b32 s60, s41, 2
    s_add_u32 s59, s59, s60
    s_lshr_b32 s60, s55, 2
    s_add_u32 s59, s59, s60
    s_lshl_b32 s59, s59, 9
    s_and_b32 s60, s55, 3
    s_lshl_b32 s60, s60, 7
    s_add_u32 s59, s59, s60
    ''')
    e(f's_add_u32 s59, s59, {WS_QG}')
    e('''
    v_bfe_u32 v6, v1, 4, 1
    v_lshlrev_b32 v8, 14, v6
    v_lshl_add_u32 v8, v4, 3, v8
    v_add_u32 v8, s59, v8
    v_lshlrev_b32 v7, 7, v6
    v_lshl_add_u32 v7, v4, 3, v7
    ''')
    e(f'v_add_u32 v7, {L_SM}, v7')
    e('''
    s_lshl_b32 s59, s40, 5
    s_lshl_b32 s60, s41, 2
    s_add_u32 s59, s59, s60
    s_lshl_b32 s59, s59, 9
    ''')
    e(f's_add_u32 s59, s59, {WS_QG}')
    e('v_add_u32 v12, s59, v3')
    e(f'v_add_u32 v13, {64*512}, v12')
    lds_spin(4, 4, 'L_lq', sleep=0)
    for w in range(4):
        e(f'ds_read_b64 v[{144+2*w}:{145+2*w}], v7 offset:{R_QP + w*256}')
    e('s_waitcnt lgkmcnt(0)')
    for k in range(2):
        e(f'v_add_f32 v{144+k}, v{144+k}, v{146+k}')
        e(f'v_add_f32 v{148+k}, v{148+k}, v{150+k}')
    for k in range(2):
        e(f'v_add_f32 v{144+k}, v{144+k}, v{148+k}')
    e('''
    v_cvt_pk_bf16_f32 v10, v144, v145
    v_mov_b32 v11, s42
    s_mov_b32 exec_hi, 0
    global_store_dwordx2 v8, v[10:11], s[28:29] sc1
    s_mov_b32 exec_hi, -1
    ds_write_b32 v29, v30 offset:16
    ''')
    stamp(2)
    issue_tile(SETS[1])
    e(f's_waitcnt vmcnt({o["pollwait"]})')
    e(f's_mov_b32 s66, {SPIN}')
    e.lab('L_qpoll')
    e('''
    global_load_dwordx4 v[144:147], v12, s[28:29] sc1
    global_load_dwordx4 v[148:151], v12, s[28:29] offset:1024 sc1
    global_load_dwordx4 v[152:155], v13, s[28:29] sc1
    global_load_dwordx4 v[156:159], v13, s[28:29] offset:1024 sc1
    s_waitcnt vmcnt(0)
    ''')
    e('v_cmp_eq_u32 vcc, s42, v145')
    for r in (147, 149, 151, 153, 155, 157, 159):
        e(f'v_cmp_eq_u32 s[64:65], s42, v{r}')
        e('s_and_b64 vcc, vcc, s[64:65]')
    e('''
    s_cmp_eq_u64 vcc, -1
    s_cbranch_scc1 L_qok
    s_sub_u32 s66, s66, 1
    s_cbranch_scc1 L_qok
    s_branch L_qpoll
    ''')
    e.lab('L_qok')
    stamp(3)
    e('v_lshlrev_b32 v6, 3, v1')
    for u in range(4):
        r = 144 + 4*u
        off = L_SM + R_Q + (u >> 1)*1024 + (u & 1)*512
        e(f'v_add_u32 v7, {off}, v6')
        e(f'ds_write2_b32 v7, v{r}, v{r+2} offset0:0 offset1:1')
    e('v_mov_b32 v9, s42')
    e('ds_write_b32 v29, v9 offset:12')
    e('ds_write_b32 v29, v30 offset:8')
    e.lab('L_wo')
    e('''
    v_lshrrev_b32 v10, 3, v1
    v_lshlrev_b32 v10, 10, v10
    v_and_b32 v11, 7, v1
    v_lshl_add_u32 v10, v11, 4, v10
    s_lshl_b32 s59, s58, 17
    s_lshl_b32 s60, s3, 15
    s_add_u32 s59, s59, s60
    s_lshl_b32 s60, s57, 7
    s_add_u32 s59, s59, s60
    s_lshl_b32 s60, s3, 12
    ''')
    for p in range(2):
        wo = 12 if p == 0 else 22
        e(f's_add_u32 s52, s{wo}, s59')
        e(f's_addc_u32 s53, s{wo+1}, 0')
        for i in range(4):
            e(f's_add_u32 m0, s60, {L_WO + p*16384 + i*1024}')
            if i > 0:
                e('s_add_u32 s52, s52, 0x2000')
                e('s_addc_u32 s53, s53, 0')
            else:
                e('s_nop 0')
            e(f'global_load_lds_dwordx4 v10, s[52:53] {o["polW"]}')
    set_srd(6, 8)
    lds_spin(8, 1, 'L_qflag')
    e('''
    v_and_b32 v6, 3, v4
    v_lshlrev_b32 v6, 8, v6
    v_lshl_add_u32 v31, v5, 4, v6
    ''')
    e(f'v_add_u32 v31, {L_SM}, v31')
    for j in range(4):
        e(f'ds_read_b128 {vr(QR+4*j)}, v31 offset:{R_Q + 1024 + 64*j}')
    for r in range(32, 64): e(f'v_mov_b32 v{r}, 0')
    e(f'v_mov_b32 v20, {f2u(-1e30):#x}')
    e('''
    v_mov_b32 v21, 0
    s_mov_b32 s54, 1
    s_mov_b32 s69, 0
    s_waitcnt lgkmcnt(0)
    ''')
    stamp(4)
    def body(S):
        KA, KB, VA, VB, tk = S['KA'], S['KB'], S['VA'], S['VB'], S['tk']
        e('''
        s_mov_b64 exec, 1
        ds_add_rtn_u32 v26, v29, v30
        s_mov_b64 exec, -1
        s_waitcnt vmcnt(28)
        ''')
        for j in range(4):
            e(f'v_mfma_f32_16x16x32_bf16 v[8:11], {vr(KA+4*j)}, {vr(QR+4*j)}, ' + ('0' if j == 0 else 'v[8:11]'))
        e('s_waitcnt lgkmcnt(0)')
        e(f'v_readfirstlane_b32 s{tk}, v26')
        e(f's_cmp_eq_u32 s{tk}, {o["chk"]}')
        e(f's_cbranch_scc1 L_chk{tk}')
        e.lab(f'L_chkret{tk}')
        tile_off(tk)
        e(f's_cmp_lt_u32 s{tk}, 64')
        e('s_cselect_b32 s34, 0x800000, 0')
        e('s_cselect_b32 s38, 0x800000, 0')
        issue('Ka', S)
        e('s_waitcnt vmcnt(28)')
        for j in range(4):
            e(f'v_mfma_f32_16x16x32_bf16 v[12:15], {vr(KB+4*j)}, {vr(QR+4*j)}, ' + ('0' if j == 0 else 'v[12:15]'))
        issue('Kb', S)
        e('''
        v_max3_f32 v22, v8, v9, v10
        v_max_f32 v22, v22, v11
        s_nop 1
        v_max3_f32 v22, v22, v12, v13
        v_max3_f32 v22, v22, v14, v15
        v_mov_b32 v23, v22
        s_nop 1
        v_permlane32_swap_b32 v23, v22
        v_max_f32 v22, v22, v23
        v_mov_b32 v23, v22
        s_nop 1
        v_permlane16_swap_b32 v23, v22
        v_max_f32 v22, v22, v23
        v_mul_f32 v22, s49, v22
        v_max_f32 v23, v20, v22
        v_sub_f32 v24, v20, v23
        v_exp_f32 v28, v24
        v_mov_b32 v20, v23
        ''')
        for i in range(8): e(f'v_fma_f32 v{8+i}, v{8+i}, s49, -v23')
        for i in range(8): e(f'v_exp_f32 v{8+i}, v{8+i}')
        e('v_mul_f32 v21, v21, v28')
        for j in range(0, 16):
            e(f'v_pk_mul_f32 v[{32+2*j}:{33+2*j}], v[{32+2*j}:{33+2*j}], v[28:29] op_sel_hi:[1,0]')
        e('''
        v_add_f32 v24, v8, v9
        v_add_f32 v25, v10, v11
        v_add_f32 v26, v12, v13
        v_add_f32 v27, v14, v15
        v_cvt_pk_bf16_f32 v16, v8, v9
        v_cvt_pk_bf16_f32 v17, v10, v11
        v_cvt_pk_bf16_f32 v18, v12, v13
        v_cvt_pk_bf16_f32 v19, v14, v15
        v_add_f32 v24, v24, v25
        v_add_f32 v26, v26, v27
        v_add_f32 v21, v21, v24
        v_add_f32 v21, v21, v26
        s_waitcnt vmcnt(28)
        ''')
        for j in range(8):
            w = j >> 1; sel = 's47' if j % 2 == 0 else 's48'
            e(f'v_perm_b32 v{VT+4*j+0}, v{VA+4*1+w}, v{VA+4*0+w}, {sel}')
            e(f'v_perm_b32 v{VT+4*j+1}, v{VA+4*3+w}, v{VA+4*2+w}, {sel}')
        issue('Va', S)
        e('s_waitcnt vmcnt(28)')
        for j in range(8):
            w = j >> 1; sel = 's47' if j % 2 == 0 else 's48'
            e(f'v_perm_b32 v{VT+4*j+2}, v{VB+4*1+w}, v{VB+4*0+w}, {sel}')
            e(f'v_perm_b32 v{VT+4*j+3}, v{VB+4*3+w}, v{VB+4*2+w}, {sel}')
        issue('Vb', S)
        for j in range(8):
            e(f'v_mfma_f32_16x16x32_bf16 {vr(32+4*j)}, {vr(VT+4*j)}, v[16:19], {vr(32+4*j)}')
    e.lab('L_t0')
    body(SETS[0])
    e('''
    s_cmp_lt_u32 s69, 64
    s_cbranch_scc0 L_flush
    ''')
    e.lab('L_t1')
    body(SETS[1])
    e('''
    s_cmp_eq_u32 s54, 1
    s_cbranch_scc1 L_flush
    s_cmp_lt_u32 s68, 64
    s_cbranch_scc1 L_t0
    ''')
    e.lab('L_flush')
    e('''
    v_mov_b32 v23, v21
    s_nop 1
    v_permlane32_swap_b32 v23, v21
    v_add_f32 v21, v21, v23
    v_mov_b32 v23, v21
    s_nop 1
    v_permlane16_swap_b32 v23, v21
    v_add_f32 v21, v21, v23
    s_lshl_b32 s59, s54, 2
    s_add_u32 s59, s59, s3
    s_lshl_b32 s59, s59, 11
    v_lshlrev_b32 v6, 9, v4
    v_lshl_add_u32 v6, v5, 4, v6
    v_add_u32 v6, s59, v6
    s_lshl_b32 s59, s54, 7
    s_lshl_b32 s60, s3, 3
    s_add_u32 s59, s59, s60
    ''')
    e(f's_add_u32 s59, s59, {L_SM}')
    e('''
    v_lshlrev_b32 v7, 5, v4
    v_add_u32 v7, s59, v7
    v_mov_b32 v22, v20
    v_mov_b32 v23, v21
    s_mov_b32 exec_lo, 0x000f000f
    s_mov_b32 exec_hi, 0x000f000f
    ''')
    for j in range(8):
        e(f'ds_write_b128 v6, {vr(32+4*j)} offset:{L_RES + 64*j}')
    e('s_mov_b64 exec, 15')
    e(f'ds_write_b64 v7, v[22:23] offset:{R_ST}')
    e('s_mov_b64 exec, -1')
    e('s_cmp_eq_u32 s54, 0')
    e('s_cbranch_scc1 L_tail')
    stamp(5)
    for j in range(4):
        e(f'ds_read_b128 {vr(QR+4*j)}, v31 offset:{R_Q + 64*j}')
    e('s_cmp_lg_u32 s3, 1')
    e('s_cbranch_scc1 L_noflag')
    e('ds_read_b32 v9, v29 offset:12')
    e('s_lshl_b32 s59, s2, 7')
    e(f's_add_u32 s59, s59, {WS_CLR}')
    e('v_mov_b32 v6, s59')
    e('s_waitcnt lgkmcnt(0)')
    e('s_mov_b64 exec, 1')
    e('global_store_dword v6, v9, s[28:29] sc1')
    e('s_mov_b64 exec, -1')
    e.lab('L_noflag')
    for r in range(32, 64): e(f'v_mov_b32 v{r}, 0')
    e(f'v_mov_b32 v20, {f2u(-1e30):#x}')
    e('''
    v_mov_b32 v21, 0
    s_mov_b32 s54, 0
    s_waitcnt lgkmcnt(0)
    s_cmp_lt_u32 s68, 64
    s_cbranch_scc1 L_t0
    s_branch L_flush
    ''')
    for tk in (68, 69):
        e.lab(f'L_chk{tk}')
        e('ds_read_b32 v27, v29 offset:12')
        e('''
        v_bfe_u32 v25, v1, 4, 1
        v_lshlrev_b32 v25, 7, v25
        v_add_u32 v25, v25, v4
        s_lshl_b32 s59, s41, 4
        v_add_u32 v25, s59, v25
        v_and_b32 v24, 31, v1
        v_bfe_u32 v240, v24, 1, 1
        v_lshlrev_b32 v240, 7, v240
        v_lshrrev_b32 v241, 2, v24
        v_lshl_add_u32 v240, v241, 4, v240
        v_and_b32 v241, 1, v24
        v_lshl_add_u32 v240, v241, 3, v240
        s_lshr_b32 s59, s2, 2
        s_and_b32 s59, s59, 7
        v_add_u32 v240, s59, v240
        v_cmp_gt_u32 vcc, 32, v1
        s_nop 1
        v_cndmask_b32 v25, v240, v25, vcc
        v_lshlrev_b32 v25, 7, v25
        ''')
        e(f'v_add_u32 v25, {WS_CLR}, v25')
        e(f's_mov_b32 s66, {SPIN}')
        e.lab(f'L_chkl{tk}')
        e('''
        global_load_dword v240, v25, s[28:29] sc1
        s_waitcnt vmcnt(0) lgkmcnt(0)
        v_cmp_eq_u32 vcc, v27, v240
        s_cmp_eq_u64 vcc, -1
        ''')
        e(f's_cbranch_scc1 L_chkret{tk}')
        e('s_sub_u32 s66, s66, 1')
        e(f's_cbranch_scc1 L_chkret{tk}')
        e('s_sleep 16')
        e(f's_branch L_chkl{tk}')
    e.lab('L_tail')
    stamp(6)
    e('s_waitcnt vmcnt(0) lgkmcnt(0)')
    e('s_barrier')
    stamp(7)
    e('''
    s_lshl_b32 s61, s3, 9
    v_lshlrev_b32 v6, 2, v1
    v_add_u32 v6, s61, v6
    s_lshl_b32 s61, s3, 5
    ''')
    e(f's_add_u32 s61, s61, {L_SM}')
    e('v_mov_b32 v7, s61')
    e('''
    s_lshl_b32 s61, s30, 2
    s_add_u32 s61, s61, s3
    s_lshl_b32 s61, s61, 4
    s_add_u32 s61, s61, s31
    s_lshl_b32 s62, s61, 9
    ''')
    e(f's_add_u32 s62, s62, {WS_PART}')
    e('v_lshlrev_b32 v9, 2, v1')
    e('v_add_u32 v9, s62, v9')
    e('s_lshl_b32 s62, s61, 3')
    e(f's_add_u32 s62, s62, {WS_STAT}')
    e('v_mov_b32 v10, s62')
    for p in range(2):
        base = 64 + 32*p
        for k in range(2):
            e(f'ds_read_b128 {vr(base+4*k)}, v7 offset:{R_ST + p*128 + 16*k}')
        for half in range(2):
            for w in range(4):
                e(f'ds_read_b32 v{base+8+4*half+w}, v6 offset:{L_RES + (p*4+w)*2048 + half*256}')
    e('s_waitcnt lgkmcnt(0)')
    for p in range(2):
        base = 64 + 32*p
        m = [base + 2*w for w in range(4)]; l = [base + 2*w + 1 for w in range(4)]
        M = base + 24; L = base + 26; a0 = base + 16; a1 = base + 17
        e(f'v_max3_f32 v{M}, v{m[0]}, v{m[1]}, v{m[2]}')
        e(f'v_max_f32 v{M}, v{M}, v{m[3]}')
        for w in range(4): e(f'v_sub_f32 v{m[w]}, v{m[w]}, v{M}')
        for w in range(4): e(f'v_exp_f32 v{m[w]}, v{m[w]}')
        e('s_nop 0')
        e(f'v_mul_f32 v{a0}, v{m[0]}, v{base+8}')
        e(f'v_mul_f32 v{a1}, v{m[0]}, v{base+12}')
        e(f'v_mul_f32 v{L}, v{m[0]}, v{l[0]}')
        for w in range(1, 4):
            e(f'v_fmac_f32 v{a0}, v{m[w]}, v{base+8+w}')
            e(f'v_fmac_f32 v{a1}, v{m[w]}, v{base+12+w}')
            e(f'v_fmac_f32 v{L}, v{m[w]}, v{l[w]}')
        e(f'v_or_b32 v{a0}, 1, v{a0}')
        e(f'v_or_b32 v{a1}, 1, v{a1}')
        e(f'v_or_b32 v{base+28}, 1, v{M}')
        e(f'v_or_b32 v{base+29}, 1, v{L}')
        if p == 1:
            e('v_add_u32 v9, 0x80000, v9')
            e('v_add_u32 v10, 0x2000, v10')
        e(f'global_store_dword v9, v{a0}, s[28:29] sc1')
        e(f'global_store_dword v9, v{a1}, s[28:29] offset:256 sc1')
        e('s_mov_b64 exec, 1')
        e(f'global_store_dwordx2 v10, v[{base+28}:{base+29}], s[28:29] sc1')
        e('s_mov_b64 exec, -1')
    stamp(8)
    e('''
    s_lshr_b32 s59, s3, 1
    s_and_b32 s60, s3, 1
    s_lshl_b32 s61, s59, 4
    s_lshl_b32 s62, s60, 3
    s_add_u32 s61, s61, s62
    s_add_u32 s61, s61, s41
    s_lshl_b32 s61, s61, 2
    s_add_u32 s61, s61, s56
    s_lshl_b32 s62, s61, 7
    ''')
    e(f's_add_u32 s62, s62, {WS_STAT}')
    e('v_lshlrev_b32 v6, 3, v4')
    e('v_add_u32 v6, s62, v6')
    e('s_lshl_b32 s62, s61, 13')
    e(f's_add_u32 s62, s62, {WS_PART}')
    e('v_lshlrev_b32 v7, 3, v1')
    e('v_add_u32 v7, s62, v7')
    e('v_add_u32 v8, 4096, v7')
    e(f's_mov_b32 s66, {SPIN}')
    e.lab('L_spoll')
    e('''
    global_load_dwordx2 v[10:11], v6, s[28:29] sc1
    s_waitcnt vmcnt(0)
    v_and_b32 v12, v10, v11
    v_and_b32 v12, 1, v12
    v_cmp_eq_u32 vcc, 1, v12
    s_cmp_eq_u64 vcc, -1
    s_cbranch_scc1 L_sok
    s_sub_u32 s66, s66, 1
    s_cbranch_scc1 L_sok
    s_sleep 2
    s_branch L_spoll
    ''')
    e.lab('L_sok')
    stamp(9)
    e.lab('L_dpoll')
    D = 64
    for s in range(16):
        va = 'v7' if s < 8 else 'v8'
        e(f'global_load_dwordx2 v[{D+2*s}:{D+2*s+1}], {va}, s[28:29] offset:{(s%8)*512} sc1')
    e('''
    v_max_f32_dpp v12, v10, v10 row_ror:8 row_mask:0xf bank_mask:0xf
    s_nop 1
    v_max_f32_dpp v13, v12, v12 row_ror:4 row_mask:0xf bank_mask:0xf
    s_nop 1
    v_max_f32_dpp v12, v13, v13 row_ror:2 row_mask:0xf bank_mask:0xf
    s_nop 1
    v_max_f32_dpp v13, v12, v12 row_ror:1 row_mask:0xf bank_mask:0xf
    v_sub_f32 v14, v10, v13
    v_exp_f32 v14, v14
    s_nop 0
    v_mul_f32 v15, v14, v11
    s_nop 1
    v_add_f32_dpp v12, v15, v15 row_ror:8 row_mask:0xf bank_mask:0xf
    s_nop 1
    v_add_f32_dpp v15, v12, v12 row_ror:4 row_mask:0xf bank_mask:0xf
    s_nop 1
    v_add_f32_dpp v12, v15, v15 row_ror:2 row_mask:0xf bank_mask:0xf
    s_nop 1
    v_add_f32_dpp v15, v12, v12 row_ror:1 row_mask:0xf bank_mask:0xf
    v_rcp_f32 v15, v15
    s_nop 0
    v_mul_f32 v14, v14, v15
    s_waitcnt vmcnt(0)
    ''')
    regs = list(range(D, D+32))
    e(f'v_bitop3_b32 v12, v{regs[0]}, v{regs[1]}, v{regs[2]} bitop3:0x80')
    k = 3
    while k + 1 < 32:
        e(f'v_bitop3_b32 v12, v12, v{regs[k]}, v{regs[k+1]} bitop3:0x80'); k += 2
    e(f'v_and_b32 v12, v12, v{regs[31]}')
    e('''
    v_and_b32 v12, 1, v12
    v_cmp_eq_u32 vcc, 1, v12
    s_cmp_eq_u64 vcc, -1
    s_cbranch_scc1 L_dok
    s_sub_u32 s66, s66, 1
    s_cbranch_scc1 L_dok
    s_branch L_dpoll
    ''')
    e.lab('L_dok')
    e('v_mov_b32 v16, 0')
    e('v_mov_b32 v17, 0')
    e('s_nop 1')
    for s in range(16):
        e(f'v_fmac_f32_dpp v16, v14, v{D+2*s} row_newbcast:{s} row_mask:0xf bank_mask:0xf')
        e(f'v_fmac_f32_dpp v17, v14, v{D+2*s+1} row_newbcast:{s} row_mask:0xf bank_mask:0xf')
    e('''
    v_cvt_pk_bf16_f32 v18, v16, v17
    v_lshrrev_b32 v12, 3, v1
    v_bfe_u32 v13, v1, 1, 2
    v_lshl_add_u32 v12, v13, 5, v12
    v_and_b32 v13, 1, v1
    v_lshl_add_u32 v12, v13, 4, v12
    v_lshlrev_b32 v12, 1, v12
    s_lshl_b32 s61, s3, 8
    ''')
    e(f's_add_u32 s61, s61, {L_SM}')
    e('v_add_u32 v12, s61, v12')
    e(f'ds_write_b16 v12, v18 offset:{R_O}')
    e(f'ds_write_b16_d16_hi v12, v18 offset:{R_O+16}')
    e('''
    v_lshrrev_b32 v6, 2, v4
    v_lshl_add_u32 v6, v5, 3, v6
    v_lshlrev_b32 v6, 7, v6
    v_and_b32 v7, 3, v4
    v_lshl_add_u32 v6, v7, 3, v6
    s_lshl_b32 s62, s3, 5
    v_add_u32 v6, s62, v6
    v_and_b32 v7, 1, v4
    v_lshlrev_b32 v7, 8, v7
    v_lshl_add_u32 v7, v5, 4, v7
    ''')
    e(f'v_add_u32 v7, {L_SM}, v7')
    e('''
    s_lshl_b32 s61, s57, 2
    s_add_u32 s61, s61, s3
    s_lshl_b32 s61, s61, 5
    s_add_u32 s61, s61, s58
    s_lshl_b32 s61, s61, 7
    ''')
    e(f's_add_u32 s63, s61, {WS_OUTP}')
    e('v_lshlrev_b32 v19, 2, v4')
    e('v_add_u32 v19, s63, v19')
    e('s_waitcnt lgkmcnt(0)')
    e('s_barrier')
    stamp(10)
    for p in range(2):
        for kk in range(4):
            e(f'ds_read_b128 {vr(96+16*p+4*kk)}, v7 offset:{R_O + p*512 + kk*64}')
            for h in range(2):
                r = 64 + 16*p + 4*kk + 2*h
                e(f'ds_read_b64_tr_b16 v[{r}:{r+1}], v6 offset:{L_WO + p*16384 + kk*4096 + h*512}')
    e('s_waitcnt lgkmcnt(0)')
    for kk in range(4):
        for p in range(2):
            e(f'v_mfma_f32_16x16x32_bf16 {vr(8+4*p)}, {vr(96+16*p+4*kk)}, {vr(64+16*p+4*kk)}, ' + ('0' if kk == 0 else vr(8+4*p)))
    e('''
    v_add_u32 v18, 0x20000, v19
    s_nop 6
    v_or_b32 v8, 1, v8
    v_or_b32 v9, 1, v9
    v_or_b32 v12, 1, v12
    v_or_b32 v13, 1, v13
    s_mov_b64 exec, 0xffff
    global_store_dword v19, v8, s[28:29] sc1
    global_store_dword v19, v9, s[28:29] offset:64 sc1
    global_store_dword v18, v12, s[28:29] sc1
    global_store_dword v18, v13, s[28:29] offset:64 sc1
    s_mov_b64 exec, -1
    ''')
    stamp(11)
    e('s_cmp_lg_u32 s3, 0')
    e('s_cbranch_scc1 ' + ('L_fin' if stamps else 'L_end'))
    e('s_cmp_ge_u32 s2, 64')
    e('s_cbranch_scc1 L_fin')
    e('s_lshl_b32 s59, s2, 12')
    e(f's_add_u32 s59, s59, {WS_OUTP}')
    e('''
    v_lshrrev_b32 v6, 5, v1
    v_lshlrev_b32 v6, 11, v6
    v_and_b32 v7, 31, v1
    v_lshl_add_u32 v6, v7, 2, v6
    v_add_u32 v6, s59, v6
    ''')
    e(f's_mov_b32 s66, {SPIN}')
    e.lab('L_opoll')
    for u in range(16):
        e(f'global_load_dword v{64+u}, v6, s[28:29] offset:{u*128} sc1')
    e('s_waitcnt vmcnt(0)')
    e('v_bitop3_b32 v12, v64, v65, v66 bitop3:0x80')
    k = 67
    while k + 1 < 80:
        e(f'v_bitop3_b32 v12, v12, v{k}, v{k+1} bitop3:0x80'); k += 2
    e('v_and_b32 v12, v12, v79')
    e('''
    v_and_b32 v12, 1, v12
    v_cmp_eq_u32 vcc, 1, v12
    s_cmp_eq_u64 vcc, -1
    s_cbranch_scc1 L_ook
    s_sub_u32 s66, s66, 1
    s_cbranch_scc1 L_ook
    s_branch L_opoll
    ''')
    e.lab('L_ook')
    for k in range(0, 16, 2): e(f'v_add_f32 v{64+k}, v{64+k}, v{65+k}')
    for k in range(0, 16, 4): e(f'v_add_f32 v{64+k}, v{64+k}, v{66+k}')
    e('''
    v_add_f32 v64, v64, v68
    v_add_f32 v72, v72, v76
    v_add_f32 v64, v64, v72
    v_mov_b32 v65, v64
    s_nop 1
    v_permlane32_swap_b32 v65, v64
    v_add_f32 v64, v64, v65
    v_cvt_pk_bf16_f32 v64, v64, v64
    v_bfe_u32 v6, v1, 4, 1
    v_lshlrev_b32 v6, 10, v6
    v_add_u32 v6, v6, v4
    s_lshl_b32 s59, s2, 4
    v_add_u32 v6, s59, v6
    v_lshlrev_b32 v6, 1, v6
    s_mov_b32 exec_hi, 0
    global_store_short v6, v64, s[24:25]
    s_mov_b32 exec_hi, -1
    s_cmp_lg_u32 s2, 0
    s_cbranch_scc1 L_fin
    s_add_u32 s59, s43, 1
    v_mov_b32 v7, s59
    v_mov_b32 v8, 0
    s_mov_b64 exec, 1
    ''')
    e(f'global_store_dword v8, v7, s[28:29] offset:{WS_EPOCH} sc1')
    e('s_mov_b64 exec, -1')
    e.lab('L_fin')
    if stamps:
        e('s_memrealtime s[94:95]')
        e('s_waitcnt lgkmcnt(0)')
        e('s_lshl_b32 s59, s2, 3')
        e('s_add_u32 s59, s59, s3')
        e(f's_mul_i32 s59, s59, {16*8}')
        e(f's_add_u32 s59, s59, {WS_STAMP}')
        e('v_mov_b32 v6, s59')
        e('s_mov_b64 exec, 1')
        for i in range(16):
            e(f'v_mov_b32 v{10+2*i}, s{70+2*i}')
            e(f'v_mov_b32 v{11+2*i}, s{71+2*i}')
        for i in range(16):
            e(f'global_store_dwordx2 v6, v[{10+2*i}:{11+2*i}], s[28:29] offset:{8*i}')
    e.lab('L_end')
    e('s_endpgm')
    e.raw('.section .rodata,"a"')
    e.raw('.p2align 6')
    e.raw(f'.amdhsa_kernel {KN}_kernel')
    e.raw('  .amdhsa_next_free_vgpr 256')
    e.raw('  .amdhsa_next_free_sgpr 102')
    e.raw('  .amdhsa_accum_offset 256')
    e.raw('  .amdhsa_group_segment_fixed_size 0')
    e.raw('  .amdhsa_kernarg_size 104')
    e.raw('  .amdhsa_user_sgpr_count 2')
    e.raw('  .amdhsa_user_sgpr_kernarg_segment_ptr 1')
    e.raw('  .amdhsa_system_sgpr_workgroup_id_x 1')
    e.raw('.end_amdhsa_kernel')
    open(path, 'w').write('\n'.join(e.L) + '\n')

if __name__ == '__main__':
    gen('k6.s')
    gen('k6s.s', stamps=True)
    gen('k6_bd.s', opts=dict(polB=''))
    gen('k6_wd.s', opts=dict(polW=''))
    gen('k6_bwd.s', opts=dict(polB='', polW=''))
    gen('k6_s1.s', opts=dict(polB='sc1 nt', polW='sc1 nt', polA='sc1 nt'))
    gen('k6_s01.s', opts=dict(polB='sc0 sc1 nt', polW='sc0 sc1 nt', polA='sc0 sc1 nt'))
```

```python
import sys, struct

KN = 'concat_heads__gqa_block_cached__sliding_block_cached__decode'

def f2u(x):
    return struct.unpack('<I', struct.pack('<f', x))[0]

WS_EPOCH = 0x0
WS_QG    = 0x1000
WS_PART  = 0x20000
WS_STAT  = 0x120000
WS_OUTP  = 0x130000
WS_CLR   = 0x170000
WS_STAMP = 512 << 20
L_WQ  = 0x0
L_RES = 0x0
L_WO  = 0x8000
L_SM  = 0x10000
R_ST  = 0x000
R_QP  = 0x200
R_Q   = 0xA00
R_O   = 0x1200
R_CNT = 0x1600
LDS_BYTES = 86016

TAGC = 0x9E3779B9
SPIN = 1 << 17

class A:
    def __init__(self):
        self.L = []
    def __call__(self, s):
        for line in s.strip('\n').split('\n'):
            line = line.strip()
            if line:
                self.L.append('  ' + line)
    def lab(self, s):
        self.L.append(s + ':')
    def raw(self, s):
        self.L.append(s)

def vr(a, n=4):
    return f'v[{a}:{a+n-1}]'

SETS = [dict(KA=80, KB=96, VA=112, VB=128, tk=68), dict(KA=176, KB=192, VA=208, VB=224, tk=69)]
VT = 144
QR = 64

def gen(path, stamps=False, opts=None):
    o = dict(chk=24, pollwait=16, t1gate=True, rot=0, touch=0, polB='nt', polW='nt', polA='nt', map='g16', noq=False, nowo=False, nocomp=0, p2min=15, outpol='')
    o.update(opts or {})
    e = A()
    def stamp(i):
        if stamps:
            e(f's_memrealtime s[{70+2*i}:{71+2*i}]')
    def lds_spin(off, val, label, sleep=1):
        e(f's_mov_b32 s66, {SPIN}')
        e.lab(label)
        e(f'ds_read_b32 v27, v29 offset:{off}')
        e('s_waitcnt lgkmcnt(0)')
        e('v_readfirstlane_b32 s59, v27')
        e(f's_cmp_eq_u32 s59, {val}')
        e(f's_cbranch_scc1 {label}_ok')
        if sleep: e(f's_sleep {sleep}')
        e('s_sub_u32 s66, s66, 1')
        e(f's_cbranch_scc0 {label}')
        e.lab(label + '_ok')

    def touch_block(lab):
        e('s_cmp_lg_u32 s3, 3')
        e(f's_cbranch_scc1 {lab}')
        e('s_lshl_b32 s59, s30, 23')
        e('s_lshl_b32 s60, s31, 19')
        e('s_add_u32 s59, s59, s60')
        e('v_mov_b32 v26, s59')
        e('s_lshl_b32 s59, s40, 4')
        e('s_add_u32 s59, s59, s31')
        e('s_lshr_b32 s59, s59, 3')
        e('s_lshl_b32 s60, s41, 2')
        e('s_add_u32 s59, s59, s60')
        e('s_lshl_b32 s59, s59, 17')
        e('v_mov_b32 v27, s59')
        e('s_mov_b64 exec, 1')
        e('global_load_dword v244, v26, s[6:7] nt')
        e('global_load_dword v245, v26, s[8:9] nt')
        e('global_load_dword v246, v27, s[12:13] nt')
        e('global_load_dword v247, v27, s[22:23] nt')
        e('global_load_dword v248, v22, s[24:25]')
        e('s_mov_b64 exec, -1')
        e.lab(lab)
    e.raw(f'; @launch grid=(256,1,1) block=(256,1,1) lds={LDS_BYTES}')
    e.raw('.amdgcn_target "amdgcn-amd-amdhsa--gfx950"')
    e.raw('.text')
    e.raw(f'.globl {KN}_kernel')
    e.raw('.p2align 8')
    e.raw(f'.type {KN}_kernel,@function')
    e.raw(f'{KN}_kernel:')
    e('s_cmp_ge_u32 s2, 256')
    e('s_cbranch_scc1 L_end')
    if stamps:
        for i in range(70, 102): e(f's_mov_b32 s{i}, 0')
    stamp(0)
    e('''
    s_load_dwordx16 s[4:19], s[0:1], 0
    s_load_dwordx8 s[20:27], s[0:1], 64
    s_load_dwordx2 s[28:29], s[0:1], 96
    v_lshrrev_b32 v4, 6, v0
    v_and_b32 v1, 63, v0
    v_readfirstlane_b32 s3, v4
    ''')
    if o['map'] == 'g16':
        e('s_lshr_b32 s30, s2, 4')
        e('s_and_b32 s31, s2, 15')
    else:
        e('s_lshr_b32 s31, s2, 3')
        e('s_lshr_b32 s30, s31, 4')
        e('s_lshl_b32 s30, s30, 3')
        e('s_and_b32 s59, s2, 7')
        e('s_add_u32 s30, s30, s59')
        e('s_and_b32 s31, s31, 15')
    e('''
    s_lshr_b32 s40, s30, 3
    s_and_b32 s41, s30, 7
    v_and_b32 v4, 15, v1
    v_lshrrev_b32 v5, 4, v1
    v_lshlrev_b32 v3, 4, v1
    v_mov_b32 v22, 0
    v_mov_b32 v23, 0
    ''')
    e(f'v_mov_b32 v29, {L_SM + R_CNT}')
    e('''
    s_cmp_lg_u32 s3, 0
    s_cbranch_scc1 L_noinit
    v_mov_b32 v8, 0
    v_mov_b32 v9, 0
    v_mov_b32 v10, 0
    v_mov_b32 v11, 0
    ds_write_b128 v29, v[8:11]
    ds_write_b32 v29, v8 offset:16
    ''')
    e.lab('L_noinit')
    e('''
    v_and_b32 v6, 3, v4
    v_lshrrev_b32 v7, 2, v4
    v_lshl_add_u32 v6, v6, 2, v7
    v_lshlrev_b32 v6, 8, v6
    v_lshl_add_u32 v2, v5, 4, v6
    v_mov_b32 v30, 1
    v_lshrrev_b32 v24, 2, v1
    v_lshlrev_b32 v24, 13, v24
    v_and_b32 v11, 3, v1
    v_lshl_add_u32 v24, v11, 4, v24
    v_and_b32 v25, 1, v1
    v_lshlrev_b32 v25, 10, v25
    v_lshl_add_u32 v25, v5, 4, v25
    s_lshl_b32 s59, s3, 8
    v_add_u32 v25, s59, v25
    ''')
    if o['map'] == 'g16':
        e('s_and_b32 s55, s31, 7')
        e('s_lshl_b32 s55, s55, 1')
        e('s_lshr_b32 s59, s31, 3')
        e('s_or_b32 s55, s55, s59')
    else:
        e('s_mov_b32 s55, s31')
    e('''
    s_lshl_b32 s61, s3, 20
    s_lshl_b32 s60, s41, 10
    s_add_u32 s61, s61, s60
    s_lshl_b32 s60, s55, 6
    s_add_u32 s61, s61, s60
    s_lshl_b32 s62, s3, 13
    ''')
    e('s_waitcnt lgkmcnt(0)')
    e('s_barrier')
    stamp(13)
    e('''
    s_cmp_eq_u32 s40, 0
    s_cselect_b32 s52, s10, s20
    s_cselect_b32 s53, s11, s21
    s_cselect_b32 s50, s4, s14
    s_cselect_b32 s51, s5, s15
    s_add_u32 s52, s52, s61
    s_addc_u32 s53, s53, 0
    ''')
    for i in range(8):
        e(f's_add_u32 m0, s62, {L_WQ + i*1024}')
        if i > 0:
            e('s_add_u32 s52, s52, 0x20000')
            e('s_addc_u32 s53, s53, 0')
        else:
            e('s_nop 0')
        e(f'global_load_lds_dwordx4 v24, s[52:53] {o["polW"]}')
    for kk in range(4):
        e(f'global_load_dwordx4 {vr(144+4*kk)}, v25, s[50:51] offset:{64*kk}')
    e(f'global_load_dword v31, v22, s[28:29] offset:{WS_EPOCH} sc1')
    if o['touch'] == 1: touch_block('L_nt1')

    def set_srd(kp, vp):
        e('s_lshl_b32 s59, s30, 23')
        e(f's_add_u32 s32, s{kp}, s59')
        e(f's_addc_u32 s33, s{kp+1}, 0')
        e('s_and_b32 s33, s33, 0xffff')
        e(f's_add_u32 s36, s{vp}, s59')
        e(f's_addc_u32 s37, s{vp+1}, 0')
        e('s_and_b32 s37, s37, 0xffff')
        e('''
        s_mov_b32 s34, 0x800000
        s_mov_b32 s35, 0x20000
        s_mov_b32 s38, 0x800000
        s_mov_b32 s39, 0x20000
        ''')
    def issue(chunk, S, pol=None):
        pol = o['polA'] if pol is None else pol
        if chunk == 'Ka':
            for j in range(4): e(f'buffer_load_dwordx4 {vr(S["KA"]+4*j)}, v2, s[32:35], s44 offen offset:{64*j} {pol}')
        elif chunk == 'Kb':
            for j in range(4): e(f'buffer_load_dwordx4 {vr(S["KB"]+4*j)}, v2, s[32:35], s45 offen offset:{64*j} {pol}')
        elif chunk == 'Va':
            for i in range(4): e(f'buffer_load_dwordx4 {vr(S["VA"]+4*i)}, v3, s[36:39], s44 offen offset:{1024*i} {pol}')
        elif chunk == 'Vb':
            for i in range(4): e(f'buffer_load_dwordx4 {vr(S["VB"]+4*i)}, v3, s[36:39], s45 offen offset:{1024*i} {pol}')
    def issue_tile(S):
        for ch in ('Ka', 'Kb', 'Va', 'Vb'): issue(ch, S, o['polB'])
    def tile_off(tkreg):
        if o['rot']:
            e(f's_add_u32 s44, s{tkreg}, s46')
            e('s_and_b32 s44, s44, 63')
            e('s_lshl_b32 s44, s44, 13')
        else:
            e(f's_lshl_b32 s44, s{tkreg}, 13')
        e('s_add_u32 s44, s44, s67')
        e('s_add_u32 s45, s44, 4096')
    set_srd(16, 18)
    e('''
    s_lshl_b32 s44, s31, 16
    s_lshl_b32 s60, s3, 13
    s_add_u32 s44, s44, s60
    ''')
    e(f's_add_u32 s44, s44, {(32768-4096)*256}')
    e('s_add_u32 s45, s44, 4096')
    issue_tile(SETS[0])
    e('''
    s_add_u32 s44, s44, 0x8000
    s_add_u32 s45, s45, 0x8000
    s_mov_b32 s47, 0x05040100
    s_mov_b32 s48, 0x07060302
    ''')
    c = (128 ** -0.5) * 1.4426950408889634
    e(f's_mov_b32 s49, {f2u(c):#x}')
    e('''
    s_lshl_b32 s56, s40, 4
    s_add_u32 s56, s56, s31
    s_and_b32 s57, s56, 7
    s_lshr_b32 s56, s56, 3
    s_lshl_b32 s58, s41, 2
    s_add_u32 s58, s58, s56
    s_lshl_b32 s67, s31, 19
    ''')
    if o['rot']: e(f's_mul_i32 s46, s2, {o["rot"]}')
    e('''
    v_lshrrev_b32 v6, 2, v4
    v_lshl_add_u32 v6, v5, 3, v6
    v_lshlrev_b32 v6, 6, v6
    v_and_b32 v7, 3, v4
    v_lshl_add_u32 v6, v7, 3, v6
    v_add_u32 v6, s62, v6
    v_lshlrev_b32 v7, 7, v4
    v_lshl_add_u32 v7, v5, 4, v7
    s_lshl_b32 s59, s3, 8
    ''')
    e(f's_add_u32 s59, s59, {L_SM}')
    e('v_add_u32 v7, s59, v7')
    if o['touch'] == 2:
        touch_block('L_nt2')
        e('s_cmp_lg_u32 s3, 3')
        e('s_cbranch_scc1 L_w16')
        e('s_waitcnt vmcnt(21)')
        e('s_branch L_w16d')
        e.lab('L_w16')
        e('s_waitcnt vmcnt(16)')
        e.lab('L_w16d')
    else:
        e('s_waitcnt vmcnt(16)')
    stamp(1)
    FR = 176
    for kk in range(4):
        for ct in range(2):
            r = FR + (kk*2+ct)*4
            for h in range(2):
                e(f'ds_read_b64_tr_b16 v[{r+2*h}:{r+2*h+1}], v6 offset:{L_WQ + kk*2048 + h*256 + ct*32}')
    e('v_readfirstlane_b32 s43, v31')
    e('s_waitcnt lgkmcnt(0)')
    for kk in range(4):
        for ct in range(2):
            e(f'v_mfma_f32_16x16x32_bf16 {vr(8+4*ct)}, {vr(FR+(kk*2+ct)*4)}, {vr(144+4*kk)}, ' + ('0' if kk == 0 else vr(8+4*ct)))
    e(f's_add_u32 s42, s43, {TAGC:#x}')
    e('''
    s_nop 5
    s_mov_b32 exec_lo, 0x00030003
    s_mov_b32 exec_hi, 0x00030003
    ''')
    e(f'ds_write_b128 v7, v[8:11] offset:{R_QP}')
    e(f'ds_write_b128 v7, v[12:15] offset:{R_QP+64}')
    e('s_mov_b64 exec, 1')
    e('ds_add_u32 v29, v30 offset:4')
    e('s_mov_b64 exec, -1')
    e('s_cmp_eq_u32 s3, 0')
    e('s_cbranch_scc1 L_w0')
    e('s_cmp_lg_u32 s3, 1')
    e('s_cbranch_scc1 L_noclr')
    e('''
    v_mov_b32 v8, 0
    v_mov_b32 v9, 0
    v_mov_b32 v10, 0
    v_mov_b32 v11, 0
    s_lshl_b32 s61, s30, 6
    s_add_u32 s61, s61, s31
    s_lshl_b32 s62, s61, 9
    ''')
    e(f's_add_u32 s62, s62, {WS_PART}')
    e('''
    v_lshrrev_b32 v6, 5, v1
    v_lshlrev_b32 v6, 13, v6
    v_and_b32 v7, 31, v1
    v_lshl_add_u32 v6, v7, 4, v6
    v_add_u32 v6, s62, v6
    v_add_u32 v7, 0x4000, v6
    v_add_u32 v12, 0x80000, v6
    v_add_u32 v13, 0x84000, v6
    s_lshl_b32 s62, s61, 3
    ''')
    e(f's_add_u32 s62, s62, {WS_STAT}')
    e('''
    v_lshrrev_b32 v14, 2, v1
    v_lshlrev_b32 v14, 13, v14
    v_and_b32 v15, 3, v1
    v_lshl_add_u32 v14, v15, 7, v14
    v_add_u32 v14, s62, v14
    s_lshl_b32 s61, s57, 7
    s_add_u32 s61, s61, s58
    s_lshl_b32 s61, s61, 7
    ''')
    e(f's_add_u32 s61, s61, {WS_OUTP}')
    e('''
    v_lshrrev_b32 v15, 5, v1
    v_lshlrev_b32 v15, 17, v15
    v_bfe_u32 v16, v1, 3, 2
    v_lshl_add_u32 v15, v16, 12, v15
    v_and_b32 v16, 7, v1
    v_lshl_add_u32 v15, v16, 4, v15
    v_add_u32 v15, s61, v15
    ''')
    e.lab('L_noclr')
    if o['t1gate']:
        lds_spin(16, 1, 'L_pub')
    e('s_cmp_lg_u32 s3, 1')
    e('s_cbranch_scc1 L_noclr2')
    e('''
    global_store_dwordx4 v6, v[8:11], s[28:29] sc1
    global_store_dwordx4 v7, v[8:11], s[28:29] sc1
    global_store_dwordx4 v12, v[8:11], s[28:29] sc1
    global_store_dwordx4 v13, v[8:11], s[28:29] sc1
    global_store_dwordx4 v15, v[8:11], s[28:29] sc1
    s_mov_b64 exec, 0xff
    global_store_dwordx2 v14, v[8:9], s[28:29] sc1
    s_mov_b64 exec, -1
    ''')
    e.lab('L_noclr2')
    issue_tile(SETS[1])
    e('s_branch L_wo')
    e.lab('L_w0')
    e('''
    s_lshl_b32 s59, s40, 6
    s_lshl_b32 s60, s41, 2
    s_add_u32 s59, s59, s60
    s_lshr_b32 s60, s55, 2
    s_add_u32 s59, s59, s60
    s_lshl_b32 s59, s59, 9
    s_and_b32 s60, s55, 3
    s_lshl_b32 s60, s60, 7
    s_add_u32 s59, s59, s60
    ''')
    e(f's_add_u32 s59, s59, {WS_QG}')
    e('''
    v_bfe_u32 v6, v1, 4, 1
    v_lshlrev_b32 v8, 14, v6
    v_lshl_add_u32 v8, v4, 3, v8
    v_add_u32 v8, s59, v8
    v_lshlrev_b32 v7, 7, v6
    v_lshl_add_u32 v7, v4, 3, v7
    ''')
    e(f'v_add_u32 v7, {L_SM}, v7')
    e('''
    s_lshl_b32 s59, s40, 5
    s_lshl_b32 s60, s41, 2
    s_add_u32 s59, s59, s60
    s_lshl_b32 s59, s59, 9
    ''')
    e(f's_add_u32 s59, s59, {WS_QG}')
    e('v_add_u32 v12, s59, v3')
    e(f'v_add_u32 v13, {64*512}, v12')
    lds_spin(4, 4, 'L_lq', sleep=0)
    for w in range(4):
        e(f'ds_read_b64 v[{144+2*w}:{145+2*w}], v7 offset:{R_QP + w*256}')
    e('s_waitcnt lgkmcnt(0)')
    for k in range(2):
        e(f'v_add_f32 v{144+k}, v{144+k}, v{146+k}')
        e(f'v_add_f32 v{148+k}, v{148+k}, v{150+k}')
    for k in range(2):
        e(f'v_add_f32 v{144+k}, v{144+k}, v{148+k}')
    e('''
    v_cvt_pk_bf16_f32 v10, v144, v145
    v_mov_b32 v11, s42
    s_mov_b32 exec_hi, 0
    global_store_dwordx2 v8, v[10:11], s[28:29] sc1
    s_mov_b32 exec_hi, -1
    ds_write_b32 v29, v30 offset:16
    ''')
    stamp(2)
    issue_tile(SETS[1])
    if o['noq']:
        e('s_branch L_qok')
    e(f's_waitcnt vmcnt({o["pollwait"]})')
    e(f's_mov_b32 s66, {SPIN}')
    e.lab('L_qpoll')
    e('''
    global_load_dwordx4 v[144:147], v12, s[28:29] sc1
    global_load_dwordx4 v[148:151], v12, s[28:29] offset:1024 sc1
    global_load_dwordx4 v[152:155], v13, s[28:29] sc1
    global_load_dwordx4 v[156:159], v13, s[28:29] offset:1024 sc1
    s_waitcnt vmcnt(0)
    ''')
    e('v_cmp_eq_u32 vcc, s42, v145')
    for r in (147, 149, 151, 153, 155, 157, 159):
        e(f'v_cmp_eq_u32 s[64:65], s42, v{r}')
        e('s_and_b64 vcc, vcc, s[64:65]')
    e('''
    s_cmp_eq_u64 vcc, -1
    s_cbranch_scc1 L_qok
    s_sub_u32 s66, s66, 1
    s_cbranch_scc1 L_qok
    s_branch L_qpoll
    ''')
    e.lab('L_qok')
    stamp(3)
    e('v_lshlrev_b32 v6, 3, v1')
    for u in range(4):
        r = 144 + 4*u
        off = L_SM + R_Q + (u >> 1)*1024 + (u & 1)*512
        e(f'v_add_u32 v7, {off}, v6')
        e(f'ds_write2_b32 v7, v{r}, v{r+2} offset0:0 offset1:1')
    e('v_mov_b32 v9, s42')
    e('ds_write_b32 v29, v9 offset:12')
    e('ds_write_b32 v29, v30 offset:8')
    e.lab('L_wo')
    e('''
    v_lshrrev_b32 v10, 3, v1
    v_lshlrev_b32 v10, 10, v10
    v_and_b32 v11, 7, v1
    v_lshl_add_u32 v10, v11, 4, v10
    s_lshl_b32 s59, s58, 17
    s_lshl_b32 s60, s3, 15
    s_add_u32 s59, s59, s60
    s_lshl_b32 s60, s57, 7
    s_add_u32 s59, s59, s60
    s_lshl_b32 s60, s3, 12
    ''')
    for p in range(2):
        wo = 12 if p == 0 else 22
        e(f's_add_u32 s52, s{wo}, s59')
        e(f's_addc_u32 s53, s{wo+1}, 0')
        for i in range(4):
            e(f's_add_u32 m0, s60, {L_WO + p*16384 + i*1024}')
            if i > 0:
                e('s_add_u32 s52, s52, 0x2000')
                e('s_addc_u32 s53, s53, 0')
            else:
                e('s_nop 0')
            e(f'global_load_lds_dwordx4 v10, s[52:53] {o["polW"]}')
    set_srd(6, 8)
    if not o['noq']:
        lds_spin(8, 1, 'L_qflag')
    e('''
    v_and_b32 v6, 3, v4
    v_lshlrev_b32 v6, 8, v6
    v_lshl_add_u32 v31, v5, 4, v6
    ''')
    e(f'v_add_u32 v31, {L_SM}, v31')
    for j in range(4):
        e(f'ds_read_b128 {vr(QR+4*j)}, v31 offset:{R_Q + 1024 + 64*j}')
    for r in range(32, 64): e(f'v_mov_b32 v{r}, 0')
    e(f'v_mov_b32 v20, {f2u(-1e30):#x}')
    e('''
    v_mov_b32 v21, 0
    s_mov_b32 s54, 1
    s_mov_b32 s69, 0
    s_waitcnt lgkmcnt(0)
    ''')
    stamp(4)
    def body(S):
        KA, KB, VA, VB, tk = S['KA'], S['KB'], S['VA'], S['VB'], S['tk']
        nc = o['nocomp']
        e("""
        s_mov_b64 exec, 1
        ds_add_rtn_u32 v26, v29, v30
        s_mov_b64 exec, -1
        s_waitcnt vmcnt(28)
        """)
        if nc < 2:
          for j in range(4):
            e(f'v_mfma_f32_16x16x32_bf16 v[8:11], {vr(KA+4*j)}, {vr(QR+4*j)}, ' + ('0' if j == 0 else 'v[8:11]'))
        e('s_waitcnt lgkmcnt(0)')
        e(f'v_readfirstlane_b32 s{tk}, v26')
        e(f's_cmp_eq_u32 s{tk}, {o["chk"]}')
        e(f's_cbranch_scc1 L_chk{tk}')
        e.lab(f'L_chkret{tk}')
        tile_off(tk)
        e(f's_cmp_lt_u32 s{tk}, 64')
        e('s_cselect_b32 s34, 0x800000, 0')
        e('s_cselect_b32 s38, 0x800000, 0')
        issue('Ka', S)
        e('s_waitcnt vmcnt(28)')
        if nc < 2:
          for j in range(4):
            e(f'v_mfma_f32_16x16x32_bf16 v[12:15], {vr(KB+4*j)}, {vr(QR+4*j)}, ' + ('0' if j == 0 else 'v[12:15]'))
        issue('Kb', S)
        if nc < 1:
          e("""
        v_max3_f32 v22, v8, v9, v10
        v_max_f32 v22, v22, v11
        s_nop 1
        v_max3_f32 v22, v22, v12, v13
        v_max3_f32 v22, v22, v14, v15
        v_mov_b32 v23, v22
        s_nop 1
        v_permlane32_swap_b32 v23, v22
        v_max_f32 v22, v22, v23
        v_mov_b32 v23, v22
        s_nop 1
        v_permlane16_swap_b32 v23, v22
        v_max_f32 v22, v22, v23
        v_mul_f32 v22, s49, v22
        v_max_f32 v23, v20, v22
        v_sub_f32 v24, v20, v23
        v_exp_f32 v28, v24
        v_mov_b32 v20, v23
          """)
          for i in range(8): e(f'v_fma_f32 v{8+i}, v{8+i}, s49, -v23')
          for i in range(8): e(f'v_exp_f32 v{8+i}, v{8+i}')
          e('v_mul_f32 v21, v21, v28')
          for j in range(0, 16):
            e(f'v_pk_mul_f32 v[{32+2*j}:{33+2*j}], v[{32+2*j}:{33+2*j}], v[28:29] op_sel_hi:[1,0]')
          e("""
        v_add_f32 v24, v8, v9
        v_add_f32 v25, v10, v11
        v_add_f32 v26, v12, v13
        v_add_f32 v27, v14, v15
        v_cvt_pk_bf16_f32 v16, v8, v9
        v_cvt_pk_bf16_f32 v17, v10, v11
        v_cvt_pk_bf16_f32 v18, v12, v13
        v_cvt_pk_bf16_f32 v19, v14, v15
        v_add_f32 v24, v24, v25
        v_add_f32 v26, v26, v27
        v_add_f32 v21, v21, v24
        v_add_f32 v21, v21, v26
          """)
        e('s_waitcnt vmcnt(28)')
        if nc < 1:
          for j in range(8):
            w = j >> 1; sel = 's47' if j % 2 == 0 else 's48'
            e(f'v_perm_b32 v{VT+4*j+0}, v{VA+4*1+w}, v{VA+4*0+w}, {sel}')
            e(f'v_perm_b32 v{VT+4*j+1}, v{VA+4*3+w}, v{VA+4*2+w}, {sel}')
        issue('Va', S)
        e('s_waitcnt vmcnt(28)')
        if nc < 1:
          for j in range(8):
            w = j >> 1; sel = 's47' if j % 2 == 0 else 's48'
            e(f'v_perm_b32 v{VT+4*j+2}, v{VB+4*1+w}, v{VB+4*0+w}, {sel}')
            e(f'v_perm_b32 v{VT+4*j+3}, v{VB+4*3+w}, v{VB+4*2+w}, {sel}')
        issue('Vb', S)
        if nc < 2:
          for j in range(8):
            e(f'v_mfma_f32_16x16x32_bf16 {vr(32+4*j)}, {vr(VT+4*j)}, v[16:19], {vr(32+4*j)}')
    e.lab('L_t0')
    body(SETS[0])
    e('''
    s_cmp_lt_u32 s69, 64
    s_cbranch_scc0 L_flush
    ''')
    e.lab('L_t1')
    body(SETS[1])
    e('''
    s_cmp_eq_u32 s54, 1
    s_cbranch_scc1 L_flush
    s_cmp_lt_u32 s68, 64
    s_cbranch_scc1 L_t0
    ''')
    e.lab('L_flush')
    e('''
    v_mov_b32 v23, v21
    s_nop 1
    v_permlane32_swap_b32 v23, v21
    v_add_f32 v21, v21, v23
    v_mov_b32 v23, v21
    s_nop 1
    v_permlane16_swap_b32 v23, v21
    v_add_f32 v21, v21, v23
    s_lshl_b32 s59, s54, 2
    s_add_u32 s59, s59, s3
    s_lshl_b32 s59, s59, 11
    v_lshlrev_b32 v6, 9, v4
    v_lshl_add_u32 v6, v5, 4, v6
    v_add_u32 v6, s59, v6
    s_lshl_b32 s59, s54, 7
    s_lshl_b32 s60, s3, 3
    s_add_u32 s59, s59, s60
    ''')
    e(f's_add_u32 s59, s59, {L_SM}')
    e('''
    v_lshlrev_b32 v7, 5, v4
    v_add_u32 v7, s59, v7
    v_mov_b32 v22, v20
    v_mov_b32 v23, v21
    s_mov_b32 exec_lo, 0x000f000f
    s_mov_b32 exec_hi, 0x000f000f
    ''')
    for j in range(8):
        e(f'ds_write_b128 v6, {vr(32+4*j)} offset:{L_RES + 64*j}')
    e('s_mov_b64 exec, 15')
    e(f'ds_write_b64 v7, v[22:23] offset:{R_ST}')
    e('s_mov_b64 exec, -1')
    e('s_cmp_eq_u32 s54, 0')
    e('s_cbranch_scc1 L_tail')
    stamp(5)
    for j in range(4):
        e(f'ds_read_b128 {vr(QR+4*j)}, v31 offset:{R_Q + 64*j}')
    e('s_cmp_lg_u32 s3, 1')
    e('s_cbranch_scc1 L_noflag')
    e('ds_read_b32 v9, v29 offset:12')
    e('s_lshl_b32 s59, s30, 4')
    e('s_add_u32 s59, s59, s31')
    e('s_lshl_b32 s59, s59, 7')
    e(f's_add_u32 s59, s59, {WS_CLR}')
    e('v_mov_b32 v6, s59')
    e('s_waitcnt lgkmcnt(0)')
    e('s_mov_b64 exec, 1')
    e('global_store_dword v6, v9, s[28:29] sc1')
    e('s_mov_b64 exec, -1')
    e.lab('L_noflag')
    e("""
    s_lshl_b32 s61, s3, 9
    v_lshlrev_b32 v240, 2, v1
    v_add_u32 v240, s61, v240
    s_lshl_b32 s61, s3, 5
    """)
    e(f's_add_u32 s61, s61, {L_SM}')
    e('v_mov_b32 v241, s61')
    e("""
    s_lshl_b32 s61, s30, 2
    s_add_u32 s61, s61, s3
    s_lshl_b32 s61, s61, 4
    s_add_u32 s61, s61, s31
    s_lshl_b32 s62, s61, 9
    """)
    e(f's_add_u32 s62, s62, {WS_PART}')
    e('v_lshlrev_b32 v242, 2, v1')
    e('v_add_u32 v242, s62, v242')
    e('s_lshl_b32 s62, s61, 3')
    e(f's_add_u32 s62, s62, {WS_STAT}')
    e('v_mov_b32 v243, s62')
    e("""
    s_lshr_b32 s59, s3, 1
    s_and_b32 s60, s3, 1
    s_lshl_b32 s61, s59, 4
    s_lshl_b32 s62, s60, 3
    s_add_u32 s61, s61, s62
    s_add_u32 s61, s61, s41
    s_lshl_b32 s61, s61, 2
    s_add_u32 s61, s61, s56
    s_lshl_b32 s62, s61, 7
    """)
    e(f's_add_u32 s62, s62, {WS_STAT}')
    e('v_lshlrev_b32 v244, 3, v4')
    e('v_add_u32 v244, s62, v244')
    e('s_lshl_b32 s62, s61, 13')
    e(f's_add_u32 s62, s62, {WS_PART}')
    e('v_lshlrev_b32 v245, 3, v1')
    e('v_add_u32 v245, s62, v245')
    e('v_add_u32 v246, 4096, v245')
    e("""
    v_lshrrev_b32 v247, 3, v1
    v_bfe_u32 v13, v1, 1, 2
    v_lshl_add_u32 v247, v13, 5, v247
    v_and_b32 v13, 1, v1
    v_lshl_add_u32 v247, v13, 4, v247
    v_lshlrev_b32 v247, 1, v247
    s_lshl_b32 s61, s3, 8
    """)
    e(f's_add_u32 s61, s61, {L_SM}')
    e('v_add_u32 v247, s61, v247')
    e("""
    v_lshrrev_b32 v248, 2, v4
    v_lshl_add_u32 v248, v5, 3, v248
    v_lshlrev_b32 v248, 7, v248
    v_and_b32 v13, 3, v4
    v_lshl_add_u32 v248, v13, 3, v248
    s_lshl_b32 s62, s3, 5
    v_add_u32 v248, s62, v248
    v_and_b32 v249, 1, v4
    v_lshlrev_b32 v249, 8, v249
    v_lshl_add_u32 v249, v5, 4, v249
    """)
    e(f'v_add_u32 v249, {L_SM}, v249')
    e("""
    s_lshl_b32 s61, s57, 2
    s_add_u32 s61, s61, s3
    s_lshl_b32 s61, s61, 5
    s_add_u32 s61, s61, s58
    s_lshl_b32 s61, s61, 7
    """)
    e(f's_add_u32 s63, s61, {WS_OUTP}')
    e('v_lshlrev_b32 v250, 2, v4')
    e('v_add_u32 v250, s63, v250')
    e('s_lshl_b32 s59, s2, 12')
    e(f's_add_u32 s59, s59, {WS_OUTP}')
    e("""
    v_lshrrev_b32 v251, 5, v1
    v_lshlrev_b32 v251, 11, v251
    v_and_b32 v13, 31, v1
    v_lshl_add_u32 v251, v13, 2, v251
    v_add_u32 v251, s59, v251
    v_bfe_u32 v252, v1, 4, 1
    v_lshlrev_b32 v252, 10, v252
    v_add_u32 v252, v252, v4
    s_lshl_b32 s59, s2, 4
    v_add_u32 v252, s59, v252
    v_lshlrev_b32 v252, 1, v252
    v_add_u32 v253, 0x80000, v242
    v_add_u32 v254, 0x2000, v243
    v_add_u32 v255, 0x20000, v250
    """)
    for r in range(32, 64): e(f'v_mov_b32 v{r}, 0')
    e(f'v_mov_b32 v20, {f2u(-1e30):#x}')
    e('''
    v_mov_b32 v21, 0
    s_mov_b32 s54, 0
    s_waitcnt lgkmcnt(0)
    s_cmp_lt_u32 s68, 64
    s_cbranch_scc1 L_t0
    s_branch L_flush
    ''')
    for tk in (68, 69):
        e.lab(f'L_chk{tk}')
        e('ds_read_b32 v27, v29 offset:12')
        e('''
        v_bfe_u32 v25, v1, 4, 1
        v_lshlrev_b32 v25, 7, v25
        v_add_u32 v25, v25, v4
        s_lshl_b32 s59, s41, 4
        v_add_u32 v25, s59, v25
        v_and_b32 v24, 31, v1
        v_bfe_u32 v16, v24, 1, 1
        v_lshlrev_b32 v16, 7, v16
        v_lshrrev_b32 v17, 2, v24
        v_lshl_add_u32 v16, v17, 4, v16
        v_and_b32 v17, 1, v24
        v_lshl_add_u32 v16, v17, 3, v16
        s_lshr_b32 s59, s2, 2
        s_and_b32 s59, s59, 7
        v_add_u32 v16, s59, v16
        v_cmp_gt_u32 vcc, 32, v1
        s_nop 1
        v_cndmask_b32 v25, v16, v25, vcc
        v_lshlrev_b32 v25, 7, v25
        ''')
        e(f'v_add_u32 v25, {WS_CLR}, v25')
        e(f's_mov_b32 s66, {SPIN}')
        e.lab(f'L_chkl{tk}')
        e('''
        global_load_dword v16, v25, s[28:29] sc1
        s_waitcnt vmcnt(0) lgkmcnt(0)
        v_cmp_eq_u32 vcc, v27, v16
        s_cmp_eq_u64 vcc, -1
        ''')
        e(f's_cbranch_scc1 L_chkret{tk}')
        e('s_sub_u32 s66, s66, 1')
        e(f's_cbranch_scc1 L_chkret{tk}')
        e('s_sleep 16')
        e(f's_branch L_chkl{tk}')
    e.lab('L_tail')
    stamp(6)
    e('s_waitcnt vmcnt(0) lgkmcnt(0)')
    e('s_barrier')
    stamp(7)
    for p in range(2):
        base = 64 + 32*p
        for k in range(2):
            e(f'ds_read_b128 {vr(base+4*k)}, v241 offset:{R_ST + p*128 + 16*k}')
        for half in range(2):
            for w in range(4):
                e(f'ds_read_b32 v{base+8+4*half+w}, v240 offset:{L_RES + (p*4+w)*2048 + half*256}')
    for p in range(2):
        base = 64 + 32*p
        e('s_waitcnt lgkmcnt(%d)' % (0 if (p == 1 or stamps) else 10))
        m = [base + 2*w for w in range(4)]; l = [base + 2*w + 1 for w in range(4)]
        M = base + 24; L = base + 26; a0 = base + 16; a1 = base + 17
        e(f'v_max3_f32 v{M}, v{m[0]}, v{m[1]}, v{m[2]}')
        e(f'v_max_f32 v{M}, v{M}, v{m[3]}')
        for w in range(4): e(f'v_sub_f32 v{m[w]}, v{m[w]}, v{M}')
        for w in range(4): e(f'v_exp_f32 v{m[w]}, v{m[w]}')
        e(f'v_or_b32 v{base+28}, 1, v{M}')
        e(f'v_mul_f32 v{a0}, v{m[0]}, v{base+8}')
        e(f'v_mul_f32 v{a1}, v{m[0]}, v{base+12}')
        e(f'v_mul_f32 v{L}, v{m[0]}, v{l[0]}')
        for w in range(1, 4):
            e(f'v_fmac_f32 v{a0}, v{m[w]}, v{base+8+w}')
            e(f'v_fmac_f32 v{a1}, v{m[w]}, v{base+12+w}')
            e(f'v_fmac_f32 v{L}, v{m[w]}, v{l[w]}')
        e(f'v_or_b32 v{a0}, 1, v{a0}')
        e(f'v_or_b32 v{a1}, 1, v{a1}')
        e(f'v_or_b32 v{base+29}, 1, v{L}')
        pa = 'v242' if p == 0 else 'v253'
        sa = 'v243' if p == 0 else 'v254'
        e(f'global_store_dword {pa}, v{a0}, s[28:29] sc1')
        e(f'global_store_dword {pa}, v{a1}, s[28:29] offset:256 sc1')
        e('s_mov_b64 exec, 1')
        e(f'global_store_dwordx2 {sa}, v[{base+28}:{base+29}], s[28:29] sc1')
        e('s_mov_b64 exec, -1')
    stamp(8)
    e(f's_mov_b32 s66, {SPIN}')
    e.lab('L_spoll')
    e("""
    global_load_dwordx2 v[10:11], v244, s[28:29] sc1
    s_waitcnt vmcnt(0)
    v_and_b32 v12, v10, v11
    v_and_b32 v12, 1, v12
    v_cmp_eq_u32 vcc, 1, v12
    s_and_b32 s59, vcc_lo, 0xffff
    s_bcnt1_i32_b32 s59, s59
    """)
    e(f's_cmp_ge_u32 s59, {o["p2min"]}')
    e("""
    s_cbranch_scc1 L_sok
    s_sub_u32 s66, s66, 1
    s_cbranch_scc1 L_sok
    s_sleep 2
    s_branch L_spoll
    """)
    e.lab('L_sok')
    stamp(9)
    e.lab('L_dpoll')
    D = 64
    e('global_load_dwordx2 v[10:11], v244, s[28:29] sc1')
    for s in range(16):
        va = 'v245' if s < 8 else 'v246'
        e(f'global_load_dwordx2 v[{D+2*s}:{D+2*s+1}], {va}, s[28:29] offset:{(s%8)*512} sc1')
    e("""
    s_waitcnt vmcnt(16)
    v_max_f32_dpp v12, v10, v10 row_ror:8 row_mask:0xf bank_mask:0xf
    v_and_b32 v19, v10, v11
    s_nop 0
    v_max_f32_dpp v13, v12, v12 row_ror:4 row_mask:0xf bank_mask:0xf
    s_nop 1
    v_max_f32_dpp v12, v13, v13 row_ror:2 row_mask:0xf bank_mask:0xf
    s_nop 1
    v_max_f32_dpp v13, v12, v12 row_ror:1 row_mask:0xf bank_mask:0xf
    v_sub_f32 v14, v10, v13
    v_exp_f32 v14, v14
    s_nop 0
    v_mul_f32 v15, v14, v11
    s_nop 1
    v_add_f32_dpp v12, v15, v15 row_ror:8 row_mask:0xf bank_mask:0xf
    s_nop 1
    v_add_f32_dpp v15, v12, v12 row_ror:4 row_mask:0xf bank_mask:0xf
    s_nop 1
    v_add_f32_dpp v12, v15, v15 row_ror:2 row_mask:0xf bank_mask:0xf
    s_nop 1
    v_add_f32_dpp v15, v12, v12 row_ror:1 row_mask:0xf bank_mask:0xf
    v_rcp_f32 v15, v15
    v_mov_b32 v16, 0
    v_mul_f32 v14, v14, v15
    v_mov_b32 v17, 0
    s_waitcnt vmcnt(0)
    """)
    regs = list(range(D, D+32))
    e(f'v_bitop3_b32 v12, v19, v{regs[0]}, v{regs[1]} bitop3:0x80')
    k = 2
    while k + 1 < 32:
        e(f'v_bitop3_b32 v12, v12, v{regs[k]}, v{regs[k+1]} bitop3:0x80'); k += 2
    e("""
    v_and_b32 v12, 1, v12
    v_cmp_eq_u32 vcc, 1, v12
    s_cmp_eq_u64 vcc, -1
    s_cbranch_scc1 L_dok
    s_sub_u32 s66, s66, 1
    s_cbranch_scc1 L_dok
    s_branch L_dpoll
    """)
    e.lab('L_dok')
    for s in range(16):
        e(f'v_fmac_f32_dpp v16, v14, v{D+2*s} row_newbcast:{s} row_mask:0xf bank_mask:0xf')
        e(f'v_fmac_f32_dpp v17, v14, v{D+2*s+1} row_newbcast:{s} row_mask:0xf bank_mask:0xf')
    e('v_cvt_pk_bf16_f32 v18, v16, v17')
    e(f'ds_write_b16 v247, v18 offset:{R_O}')
    e(f'ds_write_b16_d16_hi v247, v18 offset:{R_O+16}')
    for p in range(2):
        for kk in range(4):
            for h in range(2):
                r = 128 + 16*p + 4*kk + 2*h
                e(f'ds_read_b64_tr_b16 v[{r}:{r+1}], v248 offset:{L_WO + p*16384 + kk*4096 + h*512}')
    e('s_waitcnt lgkmcnt(0)')
    e('s_barrier')
    stamp(10)
    for p in range(2):
        for kk in range(4):
            e(f'ds_read_b128 {vr(96+16*p+4*kk)}, v249 offset:{R_O + p*512 + kk*64}')
    e('s_waitcnt lgkmcnt(0)')
    for kk in range(4):
        for p in range(2):
            e(f'v_mfma_f32_16x16x32_bf16 {vr(8+4*p)}, {vr(96+16*p+4*kk)}, {vr(128+16*p+4*kk)}, ' + ('0' if kk == 0 else vr(8+4*p)))
    e("""
    s_nop 7
    v_or_b32 v8, 1, v8
    v_or_b32 v9, 1, v9
    v_or_b32 v12, 1, v12
    v_or_b32 v13, 1, v13
    s_mov_b64 exec, 0xffff
    global_store_dword v250, v8, s[28:29] sc1
    global_store_dword v250, v9, s[28:29] offset:64 sc1
    global_store_dword v255, v12, s[28:29] sc1
    global_store_dword v255, v13, s[28:29] offset:64 sc1
    s_mov_b64 exec, -1
    """)
    stamp(11)
    e('s_cmp_lg_u32 s3, 0')
    e('s_cbranch_scc1 ' + ('L_fin' if stamps else 'L_end'))
    e('s_cmp_ge_u32 s2, 64')
    e('s_cbranch_scc1 L_fin')
    e(f's_mov_b32 s66, {SPIN}')
    e.lab('L_opoll')
    for u in range(16):
        e(f'global_load_dword v{64+u}, v251, s[28:29] offset:{u*128} sc1')
    e('s_waitcnt vmcnt(0)')
    e('v_bitop3_b32 v12, v64, v65, v66 bitop3:0x80')
    k = 67
    while k + 1 < 80:
        e(f'v_bitop3_b32 v12, v12, v{k}, v{k+1} bitop3:0x80'); k += 2
    e('v_and_b32 v12, v12, v79')
    e('''
    v_and_b32 v12, 1, v12
    v_cmp_eq_u32 vcc, 1, v12
    s_cmp_eq_u64 vcc, -1
    s_cbranch_scc1 L_ook
    s_sub_u32 s66, s66, 1
    s_cbranch_scc1 L_ook
    s_branch L_opoll
    ''')
    e.lab('L_ook')
    for k in range(0, 16, 2): e(f'v_add_f32 v{64+k}, v{64+k}, v{65+k}')
    for k in range(0, 16, 4): e(f'v_add_f32 v{64+k}, v{64+k}, v{66+k}')
    e('''
    v_add_f32 v64, v64, v68
    v_add_f32 v72, v72, v76
    v_add_f32 v64, v64, v72
    v_mov_b32 v65, v64
    s_nop 1
    v_permlane32_swap_b32 v65, v64
    v_add_f32 v64, v64, v65
    v_cvt_pk_bf16_f32 v64, v64, v64
    s_mov_b32 exec_hi, 0
    global_store_short v252, v64, s[24:25] OUTPOL
    s_mov_b32 exec_hi, -1
    s_cmp_lg_u32 s2, 0
    s_cbranch_scc1 L_fin
    s_add_u32 s59, s43, 1
    v_mov_b32 v7, s59
    v_mov_b32 v8, 0
    s_mov_b64 exec, 1
    ''')
    e(f'global_store_dword v8, v7, s[28:29] offset:{WS_EPOCH} sc1')
    e('s_mov_b64 exec, -1')
    e.lab('L_fin')
    if stamps:
        e('s_memrealtime s[94:95]')
        e('s_waitcnt lgkmcnt(0)')
        e('s_lshl_b32 s59, s2, 3')
        e('s_add_u32 s59, s59, s3')
        e(f's_mul_i32 s59, s59, {16*8}')
        e(f's_add_u32 s59, s59, {WS_STAMP}')
        e('v_mov_b32 v6, s59')
        e('s_mov_b64 exec, 1')
        for i in range(16):
            e(f'v_mov_b32 v{10+2*i}, s{70+2*i}')
            e(f'v_mov_b32 v{11+2*i}, s{71+2*i}')
        for i in range(16):
            e(f'global_store_dwordx2 v6, v[{10+2*i}:{11+2*i}], s[28:29] offset:{8*i}')
    e.lab('L_end')
    e('s_endpgm')
    e.raw('.section .rodata,"a"')
    e.raw('.p2align 6')
    e.raw(f'.amdhsa_kernel {KN}_kernel')
    e.raw('  .amdhsa_next_free_vgpr 256')
    e.raw('  .amdhsa_next_free_sgpr 102')
    e.raw('  .amdhsa_accum_offset 256')
    e.raw('  .amdhsa_group_segment_fixed_size 0')
    e.raw('  .amdhsa_kernarg_size 104')
    e.raw('  .amdhsa_user_sgpr_count 2')
    e.raw('  .amdhsa_user_sgpr_kernarg_segment_ptr 1')
    e.raw('  .amdhsa_system_sgpr_workgroup_id_x 1')
    e.raw('.end_amdhsa_kernel')
    open(path, 'w').write(('\n'.join(e.L) + '\n').replace('OUTPOL', o['outpol']))

if __name__ == '__main__':
    gen('k7.s')
    gen('k7s.s', stamps=True)
    gen('k7s_p16.s', stamps=True, opts=dict(p2min=16))
    gen('k7s_p14.s', stamps=True, opts=dict(p2min=14))
    gen('k7s_p12.s', stamps=True, opts=dict(p2min=12))
    gen('k7_o1.s', opts=dict(outpol='sc1'))
    gen('k7_o01.s', opts=dict(outpol='sc0 sc1'))
    gen('k7_p16.s', opts=dict(p2min=16))
    gen('k7_p14.s', opts=dict(p2min=14))
```

```python
import sys, struct

KN = 'concat_heads__gqa_block_cached__sliding_block_cached__decode'

def f2u(x):
    return struct.unpack('<I', struct.pack('<f', x))[0]

WS_EPOCH = 0x0
WS_QG    = 0x1000
WS_PART  = 0x20000
WS_STAT  = 0x120000
WS_OUTP  = 0x130000
WS_CLR   = 0x170000
WS_POOL  = 0x180000
WS_STAMP = 512 << 20
L_WQ  = 0x0
L_RES = 0x0
L_WO  = 0x8000
L_SM  = 0x10000
R_ST  = 0x000
R_QP  = 0x200
R_Q   = 0xA00
R_O   = 0x1200
R_CNT = 0x1600
LDS_BYTES = 86016

TAGC = 0x9E3779B9
SPIN = 1 << 17

class A:
    def __init__(self):
        self.L = []
    def __call__(self, s):
        for line in s.strip('\n').split('\n'):
            line = line.strip()
            if line:
                self.L.append('  ' + line)
    def lab(self, s):
        self.L.append(s + ':')
    def raw(self, s):
        self.L.append(s)

def vr(a, n=4):
    return f'v[{a}:{a+n-1}]'

SETS = [dict(KA=80, KB=96, VA=112, VB=128, tk=68), dict(KA=176, KB=192, VA=208, VB=224, tk=69)]
VT = 144
QR = 64

def gen(path, stamps=False, opts=None):
    o = dict(chk=24, pollwait=16, t1gate=True, rot=0, touch=0, polB='nt', polW='nt', polA='nt', map='g16', noq=False, nowo=False, nocomp=0, p2min=15, outpol='', holdus=0, holdmul=0, tloc=52, wcnt=12)
    o.update(opts or {})
    e = A()
    def stamp(i):
        if stamps:
            e(f's_memrealtime s[{70+2*i}:{71+2*i}]')
    def lds_spin(off, val, label, sleep=1):
        e(f's_mov_b32 s66, {SPIN}')
        e.lab(label)
        e(f'ds_read_b32 v27, v29 offset:{off}')
        e('s_waitcnt lgkmcnt(0)')
        e('v_readfirstlane_b32 s59, v27')
        e(f's_cmp_eq_u32 s59, {val}')
        e(f's_cbranch_scc1 {label}_ok')
        if sleep: e(f's_sleep {sleep}')
        e('s_sub_u32 s66, s66, 1')
        e(f's_cbranch_scc0 {label}')
        e.lab(label + '_ok')

    def touch_block(lab):
        e('s_cmp_lg_u32 s3, 3')
        e(f's_cbranch_scc1 {lab}')
        e('s_lshl_b32 s59, s30, 23')
        e('s_lshl_b32 s60, s31, 19')
        e('s_add_u32 s59, s59, s60')
        e('v_mov_b32 v26, s59')
        e('s_lshl_b32 s59, s40, 4')
        e('s_add_u32 s59, s59, s31')
        e('s_lshr_b32 s59, s59, 3')
        e('s_lshl_b32 s60, s41, 2')
        e('s_add_u32 s59, s59, s60')
        e('s_lshl_b32 s59, s59, 17')
        e('v_mov_b32 v27, s59')
        e('s_mov_b64 exec, 1')
        e('global_load_dword v244, v26, s[6:7] nt')
        e('global_load_dword v245, v26, s[8:9] nt')
        e('global_load_dword v246, v27, s[12:13] nt')
        e('global_load_dword v247, v27, s[22:23] nt')
        e('global_load_dword v248, v22, s[24:25]')
        e('s_mov_b64 exec, -1')
        e.lab(lab)
    e.raw(f'; @launch grid=(256,1,1) block=(256,1,1) lds={LDS_BYTES}')
    e.raw('.amdgcn_target "amdgcn-amd-amdhsa--gfx950"')
    e.raw('.text')
    e.raw(f'.globl {KN}_kernel')
    e.raw('.p2align 8')
    e.raw(f'.type {KN}_kernel,@function')
    e.raw(f'{KN}_kernel:')
    e('s_cmp_ge_u32 s2, 256')
    e('s_cbranch_scc1 L_end')
    if stamps:
        for i in range(70, 102): e(f's_mov_b32 s{i}, 0')
    stamp(0)
    if o['holdus']:
        e('s_memrealtime s[70:71]')
    e('''
    s_load_dwordx16 s[4:19], s[0:1], 0
    s_load_dwordx8 s[20:27], s[0:1], 64
    s_load_dwordx2 s[28:29], s[0:1], 96
    v_lshrrev_b32 v4, 6, v0
    v_and_b32 v1, 63, v0
    v_readfirstlane_b32 s3, v4
    ''')
    if o['map'] == 'g16':
        e('s_lshr_b32 s30, s2, 4')
        e('s_and_b32 s31, s2, 15')
    else:
        e('s_lshr_b32 s31, s2, 3')
        e('s_lshr_b32 s30, s31, 4')
        e('s_lshl_b32 s30, s30, 3')
        e('s_and_b32 s59, s2, 7')
        e('s_add_u32 s30, s30, s59')
        e('s_and_b32 s31, s31, 15')
    e('''
    s_lshr_b32 s40, s30, 3
    s_and_b32 s41, s30, 7
    v_and_b32 v4, 15, v1
    v_lshrrev_b32 v5, 4, v1
    v_lshlrev_b32 v3, 4, v1
    v_mov_b32 v22, 0
    v_mov_b32 v23, 0
    ''')
    e(f'v_mov_b32 v29, {L_SM + R_CNT}')
    e('''
    s_cmp_lg_u32 s3, 0
    s_cbranch_scc1 L_noinit
    v_mov_b32 v8, 0
    v_mov_b32 v9, 0
    v_mov_b32 v10, 0
    v_mov_b32 v11, 0
    ds_write_b128 v29, v[8:11]
    ds_write_b64 v29, v[8:9] offset:16
    ''')
    e.lab('L_noinit')
    e('''
    v_and_b32 v6, 3, v4
    v_lshrrev_b32 v7, 2, v4
    v_lshl_add_u32 v6, v6, 2, v7
    v_lshlrev_b32 v6, 8, v6
    v_lshl_add_u32 v2, v5, 4, v6
    v_mov_b32 v30, 1
    v_lshrrev_b32 v24, 2, v1
    v_lshlrev_b32 v24, 13, v24
    v_and_b32 v11, 3, v1
    v_lshl_add_u32 v24, v11, 4, v24
    v_and_b32 v25, 1, v1
    v_lshlrev_b32 v25, 10, v25
    v_lshl_add_u32 v25, v5, 4, v25
    s_lshl_b32 s59, s3, 8
    v_add_u32 v25, s59, v25
    ''')
    if o['map'] == 'g16':
        e('s_and_b32 s55, s31, 7')
        e('s_lshl_b32 s55, s55, 1')
        e('s_lshr_b32 s59, s31, 3')
        e('s_or_b32 s55, s55, s59')
    else:
        e('s_mov_b32 s55, s31')
    e('''
    s_lshl_b32 s61, s3, 20
    s_lshl_b32 s60, s41, 10
    s_add_u32 s61, s61, s60
    s_lshl_b32 s60, s55, 6
    s_add_u32 s61, s61, s60
    s_lshl_b32 s62, s3, 13
    ''')
    e('s_waitcnt lgkmcnt(0)')
    e('s_barrier')
    stamp(13)
    e('''
    s_cmp_eq_u32 s40, 0
    s_cselect_b32 s52, s10, s20
    s_cselect_b32 s53, s11, s21
    s_cselect_b32 s50, s4, s14
    s_cselect_b32 s51, s5, s15
    s_add_u32 s52, s52, s61
    s_addc_u32 s53, s53, 0
    ''')
    for i in range(8):
        e(f's_add_u32 m0, s62, {L_WQ + i*1024}')
        if i > 0:
            e('s_add_u32 s52, s52, 0x20000')
            e('s_addc_u32 s53, s53, 0')
        else:
            e('s_nop 0')
        e(f'global_load_lds_dwordx4 v24, s[52:53] {o["polW"]}')
    for kk in range(4):
        e(f'global_load_dwordx4 {vr(144+4*kk)}, v25, s[50:51] offset:{64*kk}')
    e(f'global_load_dword v31, v22, s[28:29] offset:{WS_EPOCH} sc1')
    if o['touch'] == 1: touch_block('L_nt1')

    def set_srd(kp, vp):
        e('s_lshl_b32 s59, s30, 23')
        e(f's_add_u32 s32, s{kp}, s59')
        e(f's_addc_u32 s33, s{kp+1}, 0')
        e('s_and_b32 s33, s33, 0xffff')
        e(f's_add_u32 s36, s{vp}, s59')
        e(f's_addc_u32 s37, s{vp+1}, 0')
        e('s_and_b32 s37, s37, 0xffff')
        e('''
        s_mov_b32 s34, 0x800000
        s_mov_b32 s35, 0x20000
        s_mov_b32 s38, 0x800000
        s_mov_b32 s39, 0x20000
        ''')
    def issue(chunk, S, pol=None):
        pol = o['polA'] if pol is None else pol
        if chunk == 'Ka':
            for j in range(4): e(f'buffer_load_dwordx4 {vr(S["KA"]+4*j)}, v2, s[32:35], s44 offen offset:{64*j} {pol}')
        elif chunk == 'Kb':
            for j in range(4): e(f'buffer_load_dwordx4 {vr(S["KB"]+4*j)}, v2, s[32:35], s45 offen offset:{64*j} {pol}')
        elif chunk == 'Va':
            for i in range(4): e(f'buffer_load_dwordx4 {vr(S["VA"]+4*i)}, v3, s[36:39], s44 offen offset:{1024*i} {pol}')
        elif chunk == 'Vb':
            for i in range(4): e(f'buffer_load_dwordx4 {vr(S["VB"]+4*i)}, v3, s[36:39], s45 offen offset:{1024*i} {pol}')
    def issue_tile(S):
        for ch in ('Ka', 'Kb', 'Va', 'Vb'): issue(ch, S, o['polB'])
    def tile_off(tkreg):
        if o['rot']:
            e(f's_add_u32 s44, s{tkreg}, s46')
            e('s_and_b32 s44, s44, 63')
            e('s_lshl_b32 s44, s44, 13')
        else:
            e(f's_lshl_b32 s44, s{tkreg}, 13')
        e('s_add_u32 s44, s44, s67')
        e('s_add_u32 s45, s44, 4096')
    set_srd(16, 18)
    e('''
    s_lshl_b32 s44, s31, 16
    s_lshl_b32 s60, s3, 13
    s_add_u32 s44, s44, s60
    ''')
    e(f's_add_u32 s44, s44, {(32768-4096)*256}')
    e('s_add_u32 s45, s44, 4096')
    issue_tile(SETS[0])
    e('''
    s_add_u32 s44, s44, 0x8000
    s_add_u32 s45, s45, 0x8000
    s_mov_b32 s47, 0x05040100
    s_mov_b32 s48, 0x07060302
    ''')
    c = (128 ** -0.5) * 1.4426950408889634
    e(f's_mov_b32 s49, {f2u(c):#x}')
    e('''
    s_lshl_b32 s56, s40, 4
    s_add_u32 s56, s56, s31
    s_and_b32 s57, s56, 7
    s_lshr_b32 s56, s56, 3
    s_lshl_b32 s58, s41, 2
    s_add_u32 s58, s58, s56
    s_lshl_b32 s67, s31, 19
    ''')
    if o['rot']: e(f's_mul_i32 s46, s2, {o["rot"]}')
    e('''
    v_lshrrev_b32 v6, 2, v4
    v_lshl_add_u32 v6, v5, 3, v6
    v_lshlrev_b32 v6, 6, v6
    v_and_b32 v7, 3, v4
    v_lshl_add_u32 v6, v7, 3, v6
    v_add_u32 v6, s62, v6
    v_lshlrev_b32 v7, 7, v4
    v_lshl_add_u32 v7, v5, 4, v7
    s_lshl_b32 s59, s3, 8
    ''')
    e(f's_add_u32 s59, s59, {L_SM}')
    e('v_add_u32 v7, s59, v7')
    if o['touch'] == 2:
        touch_block('L_nt2')
        e('s_cmp_lg_u32 s3, 3')
        e('s_cbranch_scc1 L_w16')
        e('s_waitcnt vmcnt(21)')
        e('s_branch L_w16d')
        e.lab('L_w16')
        e('s_waitcnt vmcnt(16)')
        e.lab('L_w16d')
    else:
        e('s_waitcnt vmcnt(16)')
    stamp(1)
    FR = 176
    for kk in range(4):
        for ct in range(2):
            r = FR + (kk*2+ct)*4
            for h in range(2):
                e(f'ds_read_b64_tr_b16 v[{r+2*h}:{r+2*h+1}], v6 offset:{L_WQ + kk*2048 + h*256 + ct*32}')
    e('v_readfirstlane_b32 s43, v31')
    e('s_waitcnt lgkmcnt(0)')
    for kk in range(4):
        for ct in range(2):
            e(f'v_mfma_f32_16x16x32_bf16 {vr(8+4*ct)}, {vr(FR+(kk*2+ct)*4)}, {vr(144+4*kk)}, ' + ('0' if kk == 0 else vr(8+4*ct)))
    e(f's_add_u32 s42, s43, {TAGC:#x}')
    e('''
    s_nop 5
    s_mov_b32 exec_lo, 0x00030003
    s_mov_b32 exec_hi, 0x00030003
    ''')
    e(f'ds_write_b128 v7, v[8:11] offset:{R_QP}')
    e(f'ds_write_b128 v7, v[12:15] offset:{R_QP+64}')
    e('s_mov_b64 exec, 1')
    e('ds_add_u32 v29, v30 offset:4')
    e('s_mov_b64 exec, -1')
    e('s_cmp_eq_u32 s3, 0')
    e('s_cbranch_scc1 L_w0')
    e('s_cmp_lg_u32 s3, 1')
    e('s_cbranch_scc1 L_noclr')
    e('''
    v_mov_b32 v8, 0
    v_mov_b32 v9, 0
    v_mov_b32 v10, 0
    v_mov_b32 v11, 0
    s_lshl_b32 s61, s30, 6
    s_add_u32 s61, s61, s31
    s_lshl_b32 s62, s61, 9
    ''')
    e(f's_add_u32 s62, s62, {WS_PART}')
    e('''
    v_lshrrev_b32 v6, 5, v1
    v_lshlrev_b32 v6, 13, v6
    v_and_b32 v7, 31, v1
    v_lshl_add_u32 v6, v7, 4, v6
    v_add_u32 v6, s62, v6
    v_add_u32 v7, 0x4000, v6
    v_add_u32 v12, 0x80000, v6
    v_add_u32 v13, 0x84000, v6
    s_lshl_b32 s62, s61, 3
    ''')
    e(f's_add_u32 s62, s62, {WS_STAT}')
    e('''
    v_lshrrev_b32 v14, 2, v1
    v_lshlrev_b32 v14, 13, v14
    v_and_b32 v15, 3, v1
    v_lshl_add_u32 v14, v15, 7, v14
    v_add_u32 v14, s62, v14
    s_lshl_b32 s61, s57, 7
    s_add_u32 s61, s61, s58
    s_lshl_b32 s61, s61, 7
    ''')
    e(f's_add_u32 s61, s61, {WS_OUTP}')
    e('''
    v_lshrrev_b32 v15, 5, v1
    v_lshlrev_b32 v15, 17, v15
    v_bfe_u32 v16, v1, 3, 2
    v_lshl_add_u32 v15, v16, 12, v15
    v_and_b32 v16, 7, v1
    v_lshl_add_u32 v15, v16, 4, v15
    v_add_u32 v15, s61, v15
    ''')
    e.lab('L_noclr')
    if o['t1gate']:
        lds_spin(16, 1, 'L_pub')
    e('s_cmp_lg_u32 s3, 1')
    e('s_cbranch_scc1 L_noclr2')
    e('''
    global_store_dwordx4 v6, v[8:11], s[28:29] sc1
    global_store_dwordx4 v7, v[8:11], s[28:29] sc1
    global_store_dwordx4 v12, v[8:11], s[28:29] sc1
    global_store_dwordx4 v13, v[8:11], s[28:29] sc1
    global_store_dwordx4 v15, v[8:11], s[28:29] sc1
    s_mov_b64 exec, 0xff
    global_store_dwordx2 v14, v[8:9], s[28:29] sc1
    s_mov_b64 exec, -1
    ''')
    if o['tloc'] < 64:
        e('s_cmp_lg_u32 s31, 0')
        e('s_cbranch_scc1 L_noclr2')
        e('s_lshl_b32 s59, s30, 8')
        e(f's_add_u32 s59, s59, {WS_POOL}')
        e('v_mov_b32 v16, s59')
        e('s_mov_b64 exec, 1')
        e('global_store_dword v16, v8, s[28:29] sc1')
        e('s_mov_b64 exec, -1')
    e.lab('L_noclr2')
    issue_tile(SETS[1])
    e('s_branch L_wo')
    e.lab('L_w0')
    e('''
    s_lshl_b32 s59, s40, 6
    s_lshl_b32 s60, s41, 2
    s_add_u32 s59, s59, s60
    s_lshr_b32 s60, s55, 2
    s_add_u32 s59, s59, s60
    s_lshl_b32 s59, s59, 9
    s_and_b32 s60, s55, 3
    s_lshl_b32 s60, s60, 7
    s_add_u32 s59, s59, s60
    ''')
    e(f's_add_u32 s59, s59, {WS_QG}')
    e('''
    v_bfe_u32 v6, v1, 4, 1
    v_lshlrev_b32 v8, 14, v6
    v_lshl_add_u32 v8, v4, 3, v8
    v_add_u32 v8, s59, v8
    v_lshlrev_b32 v7, 7, v6
    v_lshl_add_u32 v7, v4, 3, v7
    ''')
    e(f'v_add_u32 v7, {L_SM}, v7')
    e('''
    s_lshl_b32 s59, s40, 5
    s_lshl_b32 s60, s41, 2
    s_add_u32 s59, s59, s60
    s_lshl_b32 s59, s59, 9
    ''')
    e(f's_add_u32 s59, s59, {WS_QG}')
    e('v_add_u32 v12, s59, v3')
    e(f'v_add_u32 v13, {64*512}, v12')
    lds_spin(4, 4, 'L_lq', sleep=0)
    for w in range(4):
        e(f'ds_read_b64 v[{144+2*w}:{145+2*w}], v7 offset:{R_QP + w*256}')
    e('s_waitcnt lgkmcnt(0)')
    for k in range(2):
        e(f'v_add_f32 v{144+k}, v{144+k}, v{146+k}')
        e(f'v_add_f32 v{148+k}, v{148+k}, v{150+k}')
    for k in range(2):
        e(f'v_add_f32 v{144+k}, v{144+k}, v{148+k}')
    e('''
    v_cvt_pk_bf16_f32 v10, v144, v145
    v_mov_b32 v11, s42
    s_mov_b32 exec_hi, 0
    global_store_dwordx2 v8, v[10:11], s[28:29] sc1
    s_mov_b32 exec_hi, -1
    ds_write_b32 v29, v30 offset:16
    ''')
    stamp(2)
    issue_tile(SETS[1])
    if o['noq']:
        e('s_branch L_qok')
    e(f's_waitcnt vmcnt({o["pollwait"]})')
    e(f's_mov_b32 s66, {SPIN}')
    e.lab('L_qpoll')
    e('''
    global_load_dwordx4 v[144:147], v12, s[28:29] sc1
    global_load_dwordx4 v[148:151], v12, s[28:29] offset:1024 sc1
    global_load_dwordx4 v[152:155], v13, s[28:29] sc1
    global_load_dwordx4 v[156:159], v13, s[28:29] offset:1024 sc1
    s_waitcnt vmcnt(0)
    ''')
    e('v_cmp_eq_u32 vcc, s42, v145')
    for r in (147, 149, 151, 153, 155, 157, 159):
        e(f'v_cmp_eq_u32 s[64:65], s42, v{r}')
        e('s_and_b64 vcc, vcc, s[64:65]')
    e('''
    s_cmp_eq_u64 vcc, -1
    s_cbranch_scc1 L_qok
    s_sub_u32 s66, s66, 1
    s_cbranch_scc1 L_qok
    s_branch L_qpoll
    ''')
    e.lab('L_qok')
    stamp(3)
    e('v_lshlrev_b32 v6, 3, v1')
    for u in range(4):
        r = 144 + 4*u
        off = L_SM + R_Q + (u >> 1)*1024 + (u & 1)*512
        e(f'v_add_u32 v7, {off}, v6')
        e(f'ds_write2_b32 v7, v{r}, v{r+2} offset0:0 offset1:1')
    e('v_mov_b32 v9, s42')
    e('ds_write_b32 v29, v9 offset:12')
    e('ds_write_b32 v29, v30 offset:8')
    e.lab('L_wo')
    e('''
    v_lshrrev_b32 v10, 3, v1
    v_lshlrev_b32 v10, 10, v10
    v_and_b32 v11, 7, v1
    v_lshl_add_u32 v10, v11, 4, v10
    s_lshl_b32 s59, s58, 17
    s_lshl_b32 s60, s3, 15
    s_add_u32 s59, s59, s60
    s_lshl_b32 s60, s57, 7
    s_add_u32 s59, s59, s60
    s_lshl_b32 s60, s3, 12
    ''')
    for p in range(2):
        wo = 12 if p == 0 else 22
        e(f's_add_u32 s52, s{wo}, s59')
        e(f's_addc_u32 s53, s{wo+1}, 0')
        for i in range(4):
            e(f's_add_u32 m0, s60, {L_WO + p*16384 + i*1024}')
            if i > 0:
                e('s_add_u32 s52, s52, 0x2000')
                e('s_addc_u32 s53, s53, 0')
            else:
                e('s_nop 0')
            e(f'global_load_lds_dwordx4 v10, s[52:53] {o["polW"]}')
    set_srd(6, 8)
    if not o['noq']:
        lds_spin(8, 1, 'L_qflag')
    e('''
    v_and_b32 v6, 3, v4
    v_lshlrev_b32 v6, 8, v6
    v_lshl_add_u32 v31, v5, 4, v6
    ''')
    e(f'v_add_u32 v31, {L_SM}, v31')
    for j in range(4):
        e(f'ds_read_b128 {vr(QR+4*j)}, v31 offset:{R_Q + 1024 + 64*j}')
    for r in range(32, 64): e(f'v_mov_b32 v{r}, 0')
    e(f'v_mov_b32 v20, {f2u(-1e30):#x}')
    e('''
    v_mov_b32 v21, 0
    s_mov_b32 s54, 1
    s_mov_b32 s69, 0
    s_mov_b32 s46, 0
    v_mov_b32 v7, 0
    s_lshl_b32 s59, s30, 8
    s_add_u32 s50, s28, s59
    s_addc_u32 s51, s29, 0
    ''')
    e(f's_add_u32 s50, s50, {WS_POOL}')
    e('s_addc_u32 s51, s51, 0')
    e('s_waitcnt lgkmcnt(0)')
    stamp(4)
    def body(S, once=False):
        KA, KB, VA, VB, tk = S['KA'], S['KB'], S['VA'], S['VB'], S['tk']
        W = o['wcnt']
        def wait():
            if not once: e(f's_waitcnt vmcnt({W})')
        def iss(ch):
            if not once: issue(ch, S)
        nc = o['nocomp']
        TL = o['tloc']
        pool = TL < 64
        if not once:
            if pool:
                e('s_cmp_lg_u32 s46, 0')
                e(f's_cbranch_scc1 L_pool{tk}')
            e("""
            s_mov_b64 exec, 1
            ds_add_rtn_u32 v26, v29, v30
            s_mov_b64 exec, -1
            """)
        wait()
        for j in range(4):
            e(f'v_mfma_f32_16x16x32_bf16 v[8:11], {vr(KA+4*j)}, {vr(QR+4*j)}, ' + ('0' if j == 0 else 'v[8:11]'))
        if not once:
            e('s_waitcnt lgkmcnt(0)')
            e(f'v_readfirstlane_b32 s{tk}, v26')
            e(f's_cmp_eq_u32 s{tk}, {o["chk"]}')
            e(f's_cbranch_scc1 L_chk{tk}')
            e.lab(f'L_chkret{tk}')
            if pool:
                e(f's_cmp_ge_u32 s{tk}, {TL-4}')
                e(f's_cbranch_scc1 L_sw{tk}')
                e.lab(f'L_swret{tk}')
            tile_off(tk)
            e(f's_cmp_lt_u32 s{tk}, 64')
            e.lab(f'L_join{tk}')
            e('s_cselect_b32 s34, 0x800000, 0')
            e('s_cselect_b32 s38, 0x800000, 0')
        iss('Ka')
        wait()
        for j in range(4):
            e(f'v_mfma_f32_16x16x32_bf16 v[12:15], {vr(KB+4*j)}, {vr(QR+4*j)}, ' + ('0' if j == 0 else 'v[12:15]'))
        iss('Kb')
        if once: e('s_nop 3')
        if nc < 1:
          e("""
        v_max3_f32 v22, v8, v9, v10
        v_max_f32 v22, v22, v11
        s_nop 1
        v_max3_f32 v22, v22, v12, v13
        v_max3_f32 v22, v22, v14, v15
        v_mov_b32 v23, v22
        s_nop 1
        v_permlane32_swap_b32 v23, v22
        v_max_f32 v22, v22, v23
        v_mov_b32 v23, v22
        s_nop 1
        v_permlane16_swap_b32 v23, v22
        v_max_f32 v22, v22, v23
        v_mul_f32 v22, s49, v22
        v_max_f32 v23, v20, v22
        v_sub_f32 v24, v20, v23
        v_exp_f32 v28, v24
        v_mov_b32 v20, v23
          """)
          for i in range(8): e(f'v_fma_f32 v{8+i}, v{8+i}, s49, -v23')
          for i in range(8): e(f'v_exp_f32 v{8+i}, v{8+i}')
          e('v_mul_f32 v21, v21, v28')
          for j in range(0, 16):
            e(f'v_pk_mul_f32 v[{32+2*j}:{33+2*j}], v[{32+2*j}:{33+2*j}], v[28:29] op_sel_hi:[1,0]')
          e("""
        v_add_f32 v24, v8, v9
        v_add_f32 v25, v10, v11
        v_add_f32 v26, v12, v13
        v_add_f32 v27, v14, v15
        v_cvt_pk_bf16_f32 v16, v8, v9
        v_cvt_pk_bf16_f32 v17, v10, v11
        v_cvt_pk_bf16_f32 v18, v12, v13
        v_cvt_pk_bf16_f32 v19, v14, v15
        v_add_f32 v24, v24, v25
        v_add_f32 v26, v26, v27
        v_add_f32 v21, v21, v24
        v_add_f32 v21, v21, v26
          """)
        wait()
        if nc < 1:
          for j in range(8):
            w = j >> 1; sel = 's47' if j % 2 == 0 else 's48'
            e(f'v_perm_b32 v{VT+4*j+0}, v{VA+4*1+w}, v{VA+4*0+w}, {sel}')
            e(f'v_perm_b32 v{VT+4*j+1}, v{VA+4*3+w}, v{VA+4*2+w}, {sel}')
        iss('Va')
        wait()
        if nc < 1:
          for j in range(8):
            w = j >> 1; sel = 's47' if j % 2 == 0 else 's48'
            e(f'v_perm_b32 v{VT+4*j+2}, v{VB+4*1+w}, v{VB+4*0+w}, {sel}')
            e(f'v_perm_b32 v{VT+4*j+3}, v{VB+4*3+w}, v{VB+4*2+w}, {sel}')
        iss('Vb')
        if once: e('s_nop 1')
        if nc < 2:
          for j in range(8):
            e(f'v_mfma_f32_16x16x32_bf16 {vr(32+4*j)}, {vr(VT+4*j)}, v[16:19], {vr(32+4*j)}')
    e.lab('L_t0')
    body(SETS[0])
    e("""
    s_cmp_eq_u32 s54, 1
    s_cbranch_scc1 L_t1
    s_cmp_lt_u32 s68, 64
    s_cbranch_scc1 L_t0
    s_branch L_flush
    """)
    e.lab('L_t1')
    body(SETS[1], once=True)
    e.lab('L_flush')
    e('''
    v_mov_b32 v23, v21
    s_nop 1
    v_permlane32_swap_b32 v23, v21
    v_add_f32 v21, v21, v23
    v_mov_b32 v23, v21
    s_nop 1
    v_permlane16_swap_b32 v23, v21
    v_add_f32 v21, v21, v23
    s_lshl_b32 s59, s54, 2
    s_add_u32 s59, s59, s3
    s_lshl_b32 s59, s59, 11
    v_lshlrev_b32 v6, 9, v4
    v_lshl_add_u32 v6, v5, 4, v6
    v_add_u32 v6, s59, v6
    s_lshl_b32 s59, s54, 7
    s_lshl_b32 s60, s3, 3
    s_add_u32 s59, s59, s60
    ''')
    e(f's_add_u32 s59, s59, {L_SM}')
    e('''
    v_lshlrev_b32 v7, 5, v4
    v_add_u32 v7, s59, v7
    v_mov_b32 v22, v20
    v_mov_b32 v23, v21
    s_mov_b32 exec_lo, 0x000f000f
    s_mov_b32 exec_hi, 0x000f000f
    ''')
    for j in range(8):
        e(f'ds_write_b128 v6, {vr(32+4*j)} offset:{L_RES + 64*j}')
    e('s_mov_b64 exec, 15')
    e(f'ds_write_b64 v7, v[22:23] offset:{R_ST}')
    e('s_mov_b64 exec, -1')
    e('s_cmp_eq_u32 s54, 0')
    e('s_cbranch_scc1 L_tail')
    stamp(5)
    for j in range(4):
        e(f'ds_read_b128 {vr(QR+4*j)}, v31 offset:{R_Q + 64*j}')
    e('s_cmp_lg_u32 s3, 1')
    e('s_cbranch_scc1 L_noflag')
    e('ds_read_b32 v9, v29 offset:12')
    e('s_lshl_b32 s59, s30, 4')
    e('s_add_u32 s59, s59, s31')
    e('s_lshl_b32 s59, s59, 7')
    e(f's_add_u32 s59, s59, {WS_CLR}')
    e('v_mov_b32 v6, s59')
    e('s_waitcnt lgkmcnt(0)')
    e('s_mov_b64 exec, 1')
    e('global_store_dword v6, v9, s[28:29] sc1')
    e('s_mov_b64 exec, -1')
    e.lab('L_noflag')
    e("""
    s_lshl_b32 s61, s3, 9
    v_lshlrev_b32 v240, 2, v1
    v_add_u32 v240, s61, v240
    s_lshl_b32 s61, s3, 5
    """)
    e(f's_add_u32 s61, s61, {L_SM}')
    e('v_mov_b32 v241, s61')
    e("""
    s_lshl_b32 s61, s30, 2
    s_add_u32 s61, s61, s3
    s_lshl_b32 s61, s61, 4
    s_add_u32 s61, s61, s31
    s_lshl_b32 s62, s61, 9
    """)
    e(f's_add_u32 s62, s62, {WS_PART}')
    e('v_lshlrev_b32 v242, 2, v1')
    e('v_add_u32 v242, s62, v242')
    e('s_lshl_b32 s62, s61, 3')
    e(f's_add_u32 s62, s62, {WS_STAT}')
    e('v_mov_b32 v243, s62')
    e("""
    s_lshr_b32 s59, s3, 1
    s_and_b32 s60, s3, 1
    s_lshl_b32 s61, s59, 4
    s_lshl_b32 s62, s60, 3
    s_add_u32 s61, s61, s62
    s_add_u32 s61, s61, s41
    s_lshl_b32 s61, s61, 2
    s_add_u32 s61, s61, s56
    s_lshl_b32 s62, s61, 7
    """)
    e(f's_add_u32 s62, s62, {WS_STAT}')
    e('v_lshlrev_b32 v244, 3, v4')
    e('v_add_u32 v244, s62, v244')
    e('s_lshl_b32 s62, s61, 13')
    e(f's_add_u32 s62, s62, {WS_PART}')
    e('v_lshlrev_b32 v245, 3, v1')
    e('v_add_u32 v245, s62, v245')
    e('v_add_u32 v246, 4096, v245')
    e("""
    v_lshrrev_b32 v247, 3, v1
    v_bfe_u32 v13, v1, 1, 2
    v_lshl_add_u32 v247, v13, 5, v247
    v_and_b32 v13, 1, v1
    v_lshl_add_u32 v247, v13, 4, v247
    v_lshlrev_b32 v247, 1, v247
    s_lshl_b32 s61, s3, 8
    """)
    e(f's_add_u32 s61, s61, {L_SM}')
    e('v_add_u32 v247, s61, v247')
    e("""
    v_lshrrev_b32 v248, 2, v4
    v_lshl_add_u32 v248, v5, 3, v248
    v_lshlrev_b32 v248, 7, v248
    v_and_b32 v13, 3, v4
    v_lshl_add_u32 v248, v13, 3, v248
    s_lshl_b32 s62, s3, 5
    v_add_u32 v248, s62, v248
    v_and_b32 v249, 1, v4
    v_lshlrev_b32 v249, 8, v249
    v_lshl_add_u32 v249, v5, 4, v249
    """)
    e(f'v_add_u32 v249, {L_SM}, v249')
    e("""
    s_lshl_b32 s61, s57, 2
    s_add_u32 s61, s61, s3
    s_lshl_b32 s61, s61, 5
    s_add_u32 s61, s61, s58
    s_lshl_b32 s61, s61, 7
    """)
    e(f's_add_u32 s63, s61, {WS_OUTP}')
    e('v_lshlrev_b32 v250, 2, v4')
    e('v_add_u32 v250, s63, v250')
    e('s_lshl_b32 s59, s2, 12')
    e(f's_add_u32 s59, s59, {WS_OUTP}')
    e("""
    v_lshrrev_b32 v251, 5, v1
    v_lshlrev_b32 v251, 11, v251
    v_and_b32 v13, 31, v1
    v_lshl_add_u32 v251, v13, 2, v251
    v_add_u32 v251, s59, v251
    v_bfe_u32 v252, v1, 4, 1
    v_lshlrev_b32 v252, 10, v252
    v_add_u32 v252, v252, v4
    s_lshl_b32 s59, s2, 4
    v_add_u32 v252, s59, v252
    v_lshlrev_b32 v252, 1, v252
    v_add_u32 v253, 0x80000, v242
    v_add_u32 v254, 0x2000, v243
    v_add_u32 v255, 0x20000, v250
    """)
    for r in range(32, 64): e(f'v_mov_b32 v{r}, 0')
    e(f'v_mov_b32 v20, {f2u(-1e30):#x}')
    e('''
    v_mov_b32 v21, 0
    s_mov_b32 s54, 0
    s_waitcnt lgkmcnt(0)
    s_cmp_lt_u32 s68, 64
    s_cbranch_scc1 L_t0
    s_branch L_flush
    ''')
    if o['tloc'] < 64:
        TL = o['tloc']; NP = 16*(64-TL)
        for S in SETS[:1]:
            tk = S['tk']
            e.lab(f'L_sw{tk}')
            lds_spin(20, 1, f'L_swsp{tk}', sleep=16)
            e('s_mov_b32 s46, 1')
            e('v_mov_b32 v7, 0')
            e('s_mov_b64 exec, 1')
            e('global_atomic_add v6, v7, v30, s[50:51] sc0 sc1')
            e('s_mov_b64 exec, -1')
            e(f's_branch L_swret{tk}')
            e.lab(f'L_pool{tk}')
            e(f's_waitcnt vmcnt({o["wcnt"]})')
            e('v_readfirstlane_b32 s59, v6')
            for j in range(4):
                e(f'v_mfma_f32_16x16x32_bf16 v[8:11], {vr(S["KA"]+4*j)}, {vr(QR+4*j)}, ' + ('0' if j == 0 else 'v[8:11]'))
            e('s_and_b32 s44, s59, 15')
            e('s_lshl_b32 s44, s44, 19')
            e('s_lshr_b32 s60, s59, 4')
            e(f's_add_u32 s60, s60, {TL}')
            e('s_lshl_b32 s60, s60, 13')
            e('s_add_u32 s44, s44, s60')
            e('s_add_u32 s45, s44, 4096')
            e(f's_cmp_lt_u32 s59, {NP}')
            e(f's_cselect_b32 s{tk}, 0, 64')
            e(f's_cbranch_scc0 L_join{tk}')
            e('s_mov_b64 exec, 1')
            e('global_atomic_add v6, v7, v30, s[50:51] sc0 sc1')
            e('s_mov_b64 exec, -1')
            e(f's_branch L_join{tk}')
    for tk in (68,):
        e.lab(f'L_chk{tk}')
        e('ds_read_b32 v27, v29 offset:12')
        e('''
        v_bfe_u32 v25, v1, 4, 1
        v_lshlrev_b32 v25, 7, v25
        v_add_u32 v25, v25, v4
        s_lshl_b32 s59, s41, 4
        v_add_u32 v25, s59, v25
        v_and_b32 v24, 31, v1
        v_bfe_u32 v16, v24, 1, 1
        v_lshlrev_b32 v16, 7, v16
        v_lshrrev_b32 v17, 2, v24
        v_lshl_add_u32 v16, v17, 4, v16
        v_and_b32 v17, 1, v24
        v_lshl_add_u32 v16, v17, 3, v16
        s_lshr_b32 s59, s2, 2
        s_and_b32 s59, s59, 7
        v_add_u32 v16, s59, v16
        v_cmp_gt_u32 vcc, 32, v1
        s_nop 1
        v_cndmask_b32 v25, v16, v25, vcc
        v_lshlrev_b32 v25, 7, v25
        ''')
        e(f'v_add_u32 v25, {WS_CLR}, v25')
        e(f's_mov_b32 s66, {SPIN}')
        e.lab(f'L_chkl{tk}')
        e('''
        global_load_dword v16, v25, s[28:29] sc1
        s_waitcnt vmcnt(0) lgkmcnt(0)
        v_cmp_eq_u32 vcc, v27, v16
        s_cmp_eq_u64 vcc, -1
        ''')
        e(f's_cbranch_scc1 L_chkok{tk}')
        e('s_sub_u32 s66, s66, 1')
        e(f's_cbranch_scc1 L_chkok{tk}')
        e('s_sleep 16')
        e(f's_branch L_chkl{tk}')
        e.lab(f'L_chkok{tk}')
        e('ds_write_b32 v29, v30 offset:20')
        e(f's_branch L_chkret{tk}')
    e.lab('L_tail')
    stamp(6)
    e('s_waitcnt vmcnt(0) lgkmcnt(0)')
    e('s_barrier')
    stamp(7)
    for p in range(2):
        base = 64 + 32*p
        for k in range(2):
            e(f'ds_read_b128 {vr(base+4*k)}, v241 offset:{R_ST + p*128 + 16*k}')
        for half in range(2):
            for w in range(4):
                e(f'ds_read_b32 v{base+8+4*half+w}, v240 offset:{L_RES + (p*4+w)*2048 + half*256}')
    for p in range(2):
        base = 64 + 32*p
        e('s_waitcnt lgkmcnt(%d)' % (0 if (p == 1 or stamps) else 10))
        m = [base + 2*w for w in range(4)]; l = [base + 2*w + 1 for w in range(4)]
        M = base + 24; L = base + 26; a0 = base + 16; a1 = base + 17
        e(f'v_max3_f32 v{M}, v{m[0]}, v{m[1]}, v{m[2]}')
        e(f'v_max_f32 v{M}, v{M}, v{m[3]}')
        for w in range(4): e(f'v_sub_f32 v{m[w]}, v{m[w]}, v{M}')
        for w in range(4): e(f'v_exp_f32 v{m[w]}, v{m[w]}')
        e(f'v_or_b32 v{base+28}, 1, v{M}')
        e(f'v_mul_f32 v{a0}, v{m[0]}, v{base+8}')
        e(f'v_mul_f32 v{a1}, v{m[0]}, v{base+12}')
        e(f'v_mul_f32 v{L}, v{m[0]}, v{l[0]}')
        for w in range(1, 4):
            e(f'v_fmac_f32 v{a0}, v{m[w]}, v{base+8+w}')
            e(f'v_fmac_f32 v{a1}, v{m[w]}, v{base+12+w}')
            e(f'v_fmac_f32 v{L}, v{m[w]}, v{l[w]}')
        e(f'v_or_b32 v{a0}, 1, v{a0}')
        e(f'v_or_b32 v{a1}, 1, v{a1}')
        e(f'v_or_b32 v{base+29}, 1, v{L}')
        pa = 'v242' if p == 0 else 'v253'
        sa = 'v243' if p == 0 else 'v254'
        e(f'global_store_dword {pa}, v{a0}, s[28:29] sc1')
        e(f'global_store_dword {pa}, v{a1}, s[28:29] offset:256 sc1')
        e('s_mov_b64 exec, 1')
        e(f'global_store_dwordx2 {sa}, v[{base+28}:{base+29}], s[28:29] sc1')
        e('s_mov_b64 exec, -1')
    stamp(8)
    e(f's_mov_b32 s66, {SPIN}')
    e.lab('L_spoll')
    e("""
    global_load_dwordx2 v[10:11], v244, s[28:29] sc1
    s_waitcnt vmcnt(0)
    v_and_b32 v12, v10, v11
    v_and_b32 v12, 1, v12
    v_cmp_eq_u32 vcc, 1, v12
    s_and_b32 s59, vcc_lo, 0xffff
    s_bcnt1_i32_b32 s59, s59
    """)
    e(f's_cmp_ge_u32 s59, {o["p2min"]}')
    e("""
    s_cbranch_scc1 L_sok
    s_sub_u32 s66, s66, 1
    s_cbranch_scc1 L_sok
    s_sleep 2
    s_branch L_spoll
    """)
    e.lab('L_sok')
    stamp(9)
    e.lab('L_dpoll')
    D = 64
    e('global_load_dwordx2 v[10:11], v244, s[28:29] sc1')
    for s in range(16):
        va = 'v245' if s < 8 else 'v246'
        e(f'global_load_dwordx2 v[{D+2*s}:{D+2*s+1}], {va}, s[28:29] offset:{(s%8)*512} sc1')
    e("""
    s_waitcnt vmcnt(16)
    v_max_f32_dpp v12, v10, v10 row_ror:8 row_mask:0xf bank_mask:0xf
    v_and_b32 v19, v10, v11
    s_nop 0
    v_max_f32_dpp v13, v12, v12 row_ror:4 row_mask:0xf bank_mask:0xf
    s_nop 1
    v_max_f32_dpp v12, v13, v13 row_ror:2 row_mask:0xf bank_mask:0xf
    s_nop 1
    v_max_f32_dpp v13, v12, v12 row_ror:1 row_mask:0xf bank_mask:0xf
    v_sub_f32 v14, v10, v13
    v_exp_f32 v14, v14
    s_nop 0
    v_mul_f32 v15, v14, v11
    s_nop 1
    v_add_f32_dpp v12, v15, v15 row_ror:8 row_mask:0xf bank_mask:0xf
    s_nop 1
    v_add_f32_dpp v15, v12, v12 row_ror:4 row_mask:0xf bank_mask:0xf
    s_nop 1
    v_add_f32_dpp v12, v15, v15 row_ror:2 row_mask:0xf bank_mask:0xf
    s_nop 1
    v_add_f32_dpp v15, v12, v12 row_ror:1 row_mask:0xf bank_mask:0xf
    v_rcp_f32 v15, v15
    v_mov_b32 v16, 0
    v_mul_f32 v14, v14, v15
    v_mov_b32 v17, 0
    s_waitcnt vmcnt(0)
    """)
    regs = list(range(D, D+32))
    e(f'v_bitop3_b32 v12, v19, v{regs[0]}, v{regs[1]} bitop3:0x80')
    k = 2
    while k + 1 < 32:
        e(f'v_bitop3_b32 v12, v12, v{regs[k]}, v{regs[k+1]} bitop3:0x80'); k += 2
    e("""
    v_and_b32 v12, 1, v12
    v_cmp_eq_u32 vcc, 1, v12
    s_cmp_eq_u64 vcc, -1
    s_cbranch_scc1 L_dok
    s_sub_u32 s66, s66, 1
    s_cbranch_scc1 L_dok
    s_branch L_dpoll
    """)
    e.lab('L_dok')
    for s in range(16):
        e(f'v_fmac_f32_dpp v16, v14, v{D+2*s} row_newbcast:{s} row_mask:0xf bank_mask:0xf')
        e(f'v_fmac_f32_dpp v17, v14, v{D+2*s+1} row_newbcast:{s} row_mask:0xf bank_mask:0xf')
    e('v_cvt_pk_bf16_f32 v18, v16, v17')
    e(f'ds_write_b16 v247, v18 offset:{R_O}')
    e(f'ds_write_b16_d16_hi v247, v18 offset:{R_O+16}')
    for p in range(2):
        for kk in range(4):
            for h in range(2):
                r = 128 + 16*p + 4*kk + 2*h
                e(f'ds_read_b64_tr_b16 v[{r}:{r+1}], v248 offset:{L_WO + p*16384 + kk*4096 + h*512}')
    e('s_waitcnt lgkmcnt(0)')
    e('s_barrier')
    stamp(10)
    for p in range(2):
        for kk in range(4):
            e(f'ds_read_b128 {vr(96+16*p+4*kk)}, v249 offset:{R_O + p*512 + kk*64}')
    e('s_waitcnt lgkmcnt(0)')
    for kk in range(4):
        for p in range(2):
            e(f'v_mfma_f32_16x16x32_bf16 {vr(8+4*p)}, {vr(96+16*p+4*kk)}, {vr(128+16*p+4*kk)}, ' + ('0' if kk == 0 else vr(8+4*p)))
    e("""
    s_nop 7
    v_or_b32 v8, 1, v8
    v_or_b32 v9, 1, v9
    v_or_b32 v12, 1, v12
    v_or_b32 v13, 1, v13
    s_mov_b64 exec, 0xffff
    global_store_dword v250, v8, s[28:29] sc1
    global_store_dword v250, v9, s[28:29] offset:64 sc1
    global_store_dword v255, v12, s[28:29] sc1
    global_store_dword v255, v13, s[28:29] offset:64 sc1
    s_mov_b64 exec, -1
    """)
    stamp(11)
    e('s_cmp_lg_u32 s3, 0')
    e('s_cbranch_scc1 ' + ('L_fin' if stamps else 'L_end'))
    e('s_cmp_ge_u32 s2, 64')
    e('s_cbranch_scc1 L_fin')
    e(f's_mov_b32 s66, {SPIN}')
    e.lab('L_opoll')
    for u in range(16):
        e(f'global_load_dword v{64+u}, v251, s[28:29] offset:{u*128} sc1')
    e('s_waitcnt vmcnt(0)')
    e('v_bitop3_b32 v12, v64, v65, v66 bitop3:0x80')
    k = 67
    while k + 1 < 80:
        e(f'v_bitop3_b32 v12, v12, v{k}, v{k+1} bitop3:0x80'); k += 2
    e('v_and_b32 v12, v12, v79')
    e('''
    v_and_b32 v12, 1, v12
    v_cmp_eq_u32 vcc, 1, v12
    s_cmp_eq_u64 vcc, -1
    s_cbranch_scc1 L_ook
    s_sub_u32 s66, s66, 1
    s_cbranch_scc1 L_ook
    s_branch L_opoll
    ''')
    e.lab('L_ook')
    for k in range(0, 16, 2): e(f'v_add_f32 v{64+k}, v{64+k}, v{65+k}')
    for k in range(0, 16, 4): e(f'v_add_f32 v{64+k}, v{64+k}, v{66+k}')
    e('''
    v_add_f32 v64, v64, v68
    v_add_f32 v72, v72, v76
    v_add_f32 v64, v64, v72
    v_mov_b32 v65, v64
    s_nop 1
    v_permlane32_swap_b32 v65, v64
    v_add_f32 v64, v64, v65
    v_cvt_pk_bf16_f32 v64, v64, v64
    s_mov_b32 exec_hi, 0
    global_store_short v252, v64, s[24:25] OUTPOL
    s_mov_b32 exec_hi, -1
    s_cmp_lg_u32 s2, 0
    s_cbranch_scc1 L_fin
    s_add_u32 s59, s43, 1
    v_mov_b32 v7, s59
    v_mov_b32 v8, 0
    s_mov_b64 exec, 1
    ''')
    e(f'global_store_dword v8, v7, s[28:29] offset:{WS_EPOCH} sc1')
    e('s_mov_b64 exec, -1')
    e.lab('L_fin')
    if o['holdus']:
        e('s_cmp_lg_u32 s2, 0')
        e('s_cbranch_scc1 L_end')
        e('s_waitcnt vmcnt(0) lgkmcnt(0)')
        e('s_memrealtime s[72:73]')
        e('s_waitcnt lgkmcnt(0)')
        e('s_sub_u32 s74, s72, s70')
        e(f's_mul_i32 s74, s74, {o["holdmul"]}')
        e(f's_add_u32 s74, s74, {o["holdus"]*100}')
        e.lab('L_hold')
        e('s_memrealtime s[72:73]')
        e('s_waitcnt lgkmcnt(0)')
        e('s_sub_u32 s75, s72, s70')
        e('s_cmp_lt_u32 s75, s74')
        e('s_cbranch_scc1 L_hold')
    if stamps:
        e('s_memrealtime s[94:95]')
        e('s_waitcnt lgkmcnt(0)')
        e('s_lshl_b32 s59, s2, 3')
        e('s_add_u32 s59, s59, s3')
        e(f's_mul_i32 s59, s59, {16*8}')
        e(f's_add_u32 s59, s59, {WS_STAMP}')
        e('v_mov_b32 v6, s59')
        e('s_mov_b64 exec, 1')
        for i in range(16):
            e(f'v_mov_b32 v{10+2*i}, s{70+2*i}')
            e(f'v_mov_b32 v{11+2*i}, s{71+2*i}')
        for i in range(16):
            e(f'global_store_dwordx2 v6, v[{10+2*i}:{11+2*i}], s[28:29] offset:{8*i}')
    e.lab('L_end')
    e('s_endpgm')
    e.raw('.section .rodata,"a"')
    e.raw('.p2align 6')
    e.raw(f'.amdhsa_kernel {KN}_kernel')
    e.raw('  .amdhsa_next_free_vgpr 256')
    e.raw('  .amdhsa_next_free_sgpr 102')
    e.raw('  .amdhsa_accum_offset 256')
    e.raw('  .amdhsa_group_segment_fixed_size 0')
    e.raw('  .amdhsa_kernarg_size 104')
    e.raw('  .amdhsa_user_sgpr_count 2')
    e.raw('  .amdhsa_user_sgpr_kernarg_segment_ptr 1')
    e.raw('  .amdhsa_system_sgpr_workgroup_id_x 1')
    e.raw('.end_amdhsa_kernel')
    open(path, 'w').write(('\n'.join(e.L) + '\n').replace('OUTPOL', o['outpol']))

if __name__ == '__main__':
    gen('k9.s')
    gen('k9s.s', stamps=True)
    gen('k9s_64.s', stamps=True, opts=dict(tloc=64))
    gen('k9s_56.s', stamps=True, opts=dict(tloc=56))
    gen('k9s_48.s', stamps=True, opts=dict(tloc=48))
    gen('k9s_40.s', stamps=True, opts=dict(tloc=40))
    gen('k9_56.s', opts=dict(tloc=56))
    gen('k9_64.s', opts=dict(tloc=64))
    gen('k9_48.s', opts=dict(tloc=48))
```

```python
import sys, struct

KN = 'concat_heads__gqa_block_cached__sliding_block_cached__decode'

def f2u(x):
    return struct.unpack('<I', struct.pack('<f', x))[0]

WS_EPOCH = 0x0
WS_QG    = 0x1000
WS_PART  = 0x20000
WS_STAT  = 0x1A0000
WS_OUTP  = 0x130000
WS_CLR   = 0x170000
WS_POOL  = 0x180000
WS_STAMP = 512 << 20
L_WQ  = 0x0
L_RES = 0x0
L_WO  = 0x8000
L_SM  = 0x10000
R_ST  = 0x000
R_QP  = 0x200
R_Q   = 0xA00
R_O   = 0x1200
R_CNT = 0x1600
LDS_BYTES = 86016

TAGC = 0x9E3779B9
SPIN = 1 << 17

class A:
    def __init__(self):
        self.L = []
    def __call__(self, s):
        for line in s.strip('\n').split('\n'):
            line = line.strip()
            if line:
                self.L.append('  ' + line)
    def lab(self, s):
        self.L.append(s + ':')
    def raw(self, s):
        self.L.append(s)

def vr(a, n=4):
    return f'v[{a}:{a+n-1}]'

SETS = [dict(KA=80, KB=96, VA=112, VB=128, tk=68), dict(KA=176, KB=192, VA=208, VB=224, tk=69)]
VT = 144
QR = 64

def gen(path, stamps=False, opts=None):
    o = dict(chk=24, pollwait=16, t1gate=True, rot=0, touch=0, polB='nt', polW='nt', polA='nt', map='g16', noq=False, nowo=False, nocomp=0, p2min=15, outpol='', holdus=0, holdmul=0, tloc=56, wcnt=12, aonly=False, psleep=2)
    o.update(opts or {})
    e = A()
    def stamp(i):
        if stamps:
            e(f's_memrealtime s[{70+2*i}:{71+2*i}]')
    def lds_spin(off, val, label, sleep=1):
        e(f's_mov_b32 s66, {SPIN}')
        e.lab(label)
        e(f'ds_read_b32 v27, v29 offset:{off}')
        e('s_waitcnt lgkmcnt(0)')
        e('v_readfirstlane_b32 s59, v27')
        e(f's_cmp_eq_u32 s59, {val}')
        e(f's_cbranch_scc1 {label}_ok')
        if sleep: e(f's_sleep {sleep}')
        e('s_sub_u32 s66, s66, 1')
        e(f's_cbranch_scc0 {label}')
        e.lab(label + '_ok')

    def touch_block(lab):
        e('s_cmp_lg_u32 s3, 3')
        e(f's_cbranch_scc1 {lab}')
        e('s_lshl_b32 s59, s30, 23')
        e('s_lshl_b32 s60, s31, 19')
        e('s_add_u32 s59, s59, s60')
        e('v_mov_b32 v26, s59')
        e('s_lshl_b32 s59, s40, 4')
        e('s_add_u32 s59, s59, s31')
        e('s_lshr_b32 s59, s59, 3')
        e('s_lshl_b32 s60, s41, 2')
        e('s_add_u32 s59, s59, s60')
        e('s_lshl_b32 s59, s59, 17')
        e('v_mov_b32 v27, s59')
        e('s_mov_b64 exec, 1')
        e('global_load_dword v244, v26, s[6:7] nt')
        e('global_load_dword v245, v26, s[8:9] nt')
        e('global_load_dword v246, v27, s[12:13] nt')
        e('global_load_dword v247, v27, s[22:23] nt')
        e('global_load_dword v248, v22, s[24:25]')
        e('s_mov_b64 exec, -1')
        e.lab(lab)
    e.raw(f'; @launch grid=(256,1,1) block=(256,1,1) lds={LDS_BYTES}')
    e.raw('.amdgcn_target "amdgcn-amd-amdhsa--gfx950"')
    e.raw('.text')
    e.raw(f'.globl {KN}_kernel')
    e.raw('.p2align 8')
    e.raw(f'.type {KN}_kernel,@function')
    e.raw(f'{KN}_kernel:')
    e('s_cmp_ge_u32 s2, 256')
    e('s_cbranch_scc1 L_end')
    if stamps:
        for i in range(70, 102): e(f's_mov_b32 s{i}, 0')
    stamp(0)
    if o['holdus']:
        e('s_memrealtime s[70:71]')
    e('''
    s_load_dwordx16 s[4:19], s[0:1], 0
    s_load_dwordx8 s[20:27], s[0:1], 64
    s_load_dwordx2 s[28:29], s[0:1], 96
    v_lshrrev_b32 v4, 6, v0
    v_and_b32 v1, 63, v0
    v_readfirstlane_b32 s3, v4
    ''')
    if o['map'] == 'g16':
        e('s_lshr_b32 s30, s2, 4')
        e('s_and_b32 s31, s2, 15')
    else:
        e('s_lshr_b32 s31, s2, 3')
        e('s_lshr_b32 s30, s31, 4')
        e('s_lshl_b32 s30, s30, 3')
        e('s_and_b32 s59, s2, 7')
        e('s_add_u32 s30, s30, s59')
        e('s_and_b32 s31, s31, 15')
    e('''
    s_lshr_b32 s40, s30, 3
    s_and_b32 s41, s30, 7
    v_and_b32 v4, 15, v1
    v_lshrrev_b32 v5, 4, v1
    v_lshlrev_b32 v3, 4, v1
    v_mov_b32 v22, 0
    v_mov_b32 v23, 0
    ''')
    e(f'v_mov_b32 v29, {L_SM + R_CNT}')
    e('''
    s_cmp_lg_u32 s3, 0
    s_cbranch_scc1 L_noinit
    v_mov_b32 v8, 0
    v_mov_b32 v9, 0
    v_mov_b32 v10, 0
    v_mov_b32 v11, 0
    ds_write_b128 v29, v[8:11]
    ds_write_b64 v29, v[8:9] offset:16
    ''')
    e.lab('L_noinit')
    e('''
    v_and_b32 v6, 3, v4
    v_lshrrev_b32 v7, 2, v4
    v_lshl_add_u32 v6, v6, 2, v7
    v_lshlrev_b32 v6, 8, v6
    v_lshl_add_u32 v2, v5, 4, v6
    v_mov_b32 v30, 1
    v_lshrrev_b32 v24, 2, v1
    v_lshlrev_b32 v24, 13, v24
    v_and_b32 v11, 3, v1
    v_lshl_add_u32 v24, v11, 4, v24
    v_and_b32 v25, 1, v1
    v_lshlrev_b32 v25, 10, v25
    v_lshl_add_u32 v25, v5, 4, v25
    s_lshl_b32 s59, s3, 8
    v_add_u32 v25, s59, v25
    ''')
    if o['map'] == 'g16':
        e('s_and_b32 s55, s31, 7')
        e('s_lshl_b32 s55, s55, 1')
        e('s_lshr_b32 s59, s31, 3')
        e('s_or_b32 s55, s55, s59')
    else:
        e('s_mov_b32 s55, s31')
    e('''
    s_lshl_b32 s61, s3, 20
    s_lshl_b32 s60, s41, 10
    s_add_u32 s61, s61, s60
    s_lshl_b32 s60, s55, 6
    s_add_u32 s61, s61, s60
    s_lshl_b32 s62, s3, 13
    ''')
    e('s_waitcnt lgkmcnt(0)')
    e('s_barrier')
    stamp(13)
    e('''
    s_cmp_eq_u32 s40, 0
    s_cselect_b32 s52, s10, s20
    s_cselect_b32 s53, s11, s21
    s_cselect_b32 s50, s4, s14
    s_cselect_b32 s51, s5, s15
    s_add_u32 s52, s52, s61
    s_addc_u32 s53, s53, 0
    ''')
    for i in range(8):
        e(f's_add_u32 m0, s62, {L_WQ + i*1024}')
        if i > 0:
            e('s_add_u32 s52, s52, 0x20000')
            e('s_addc_u32 s53, s53, 0')
        else:
            e('s_nop 0')
        e(f'global_load_lds_dwordx4 v24, s[52:53] {o["polW"]}')
    for kk in range(4):
        e(f'global_load_dwordx4 {vr(144+4*kk)}, v25, s[50:51] offset:{64*kk}')
    e(f'global_load_dword v31, v22, s[28:29] offset:{WS_EPOCH} sc1')
    if o['touch'] == 1: touch_block('L_nt1')

    def set_srd(kp, vp):
        e('s_lshl_b32 s59, s30, 23')
        e(f's_add_u32 s32, s{kp}, s59')
        e(f's_addc_u32 s33, s{kp+1}, 0')
        e('s_and_b32 s33, s33, 0xffff')
        e(f's_add_u32 s36, s{vp}, s59')
        e(f's_addc_u32 s37, s{vp+1}, 0')
        e('s_and_b32 s37, s37, 0xffff')
        e('''
        s_mov_b32 s34, 0x800000
        s_mov_b32 s35, 0x20000
        s_mov_b32 s38, 0x800000
        s_mov_b32 s39, 0x20000
        ''')
    def issue(chunk, S, pol=None):
        pol = o['polA'] if pol is None else pol
        if chunk == 'Ka':
            for j in range(4): e(f'buffer_load_dwordx4 {vr(S["KA"]+4*j)}, v2, s[32:35], s44 offen offset:{64*j} {pol}')
        elif chunk == 'Kb':
            for j in range(4): e(f'buffer_load_dwordx4 {vr(S["KB"]+4*j)}, v2, s[32:35], s45 offen offset:{64*j} {pol}')
        elif chunk == 'Va':
            for i in range(4): e(f'buffer_load_dwordx4 {vr(S["VA"]+4*i)}, v3, s[36:39], s44 offen offset:{1024*i} {pol}')
        elif chunk == 'Vb':
            for i in range(4): e(f'buffer_load_dwordx4 {vr(S["VB"]+4*i)}, v3, s[36:39], s45 offen offset:{1024*i} {pol}')
    def issue_tile(S):
        for ch in ('Ka', 'Kb', 'Va', 'Vb'): issue(ch, S, o['polB'])
    def tile_off(tkreg):
        if o['rot']:
            e(f's_add_u32 s44, s{tkreg}, s46')
            e('s_and_b32 s44, s44, 63')
            e('s_lshl_b32 s44, s44, 13')
        else:
            e(f's_lshl_b32 s44, s{tkreg}, 13')
        e('s_add_u32 s44, s44, s67')
        e('s_add_u32 s45, s44, 4096')
    set_srd(16, 18)
    e('''
    s_lshl_b32 s44, s31, 16
    s_lshl_b32 s60, s3, 13
    s_add_u32 s44, s44, s60
    ''')
    e(f's_add_u32 s44, s44, {(32768-4096)*256}')
    e('s_add_u32 s45, s44, 4096')
    issue_tile(SETS[0])
    e('''
    s_add_u32 s44, s44, 0x8000
    s_add_u32 s45, s45, 0x8000
    s_mov_b32 s47, 0x05040100
    s_mov_b32 s48, 0x07060302
    ''')
    c = (128 ** -0.5) * 1.4426950408889634
    e(f's_mov_b32 s49, {f2u(c):#x}')
    e('''
    s_lshl_b32 s56, s40, 4
    s_add_u32 s56, s56, s31
    s_and_b32 s57, s56, 7
    s_lshr_b32 s56, s56, 3
    s_lshl_b32 s58, s41, 2
    s_add_u32 s58, s58, s56
    s_lshl_b32 s67, s31, 19
    ''')
    if o['rot']: e(f's_mul_i32 s46, s2, {o["rot"]}')
    e('''
    v_lshrrev_b32 v6, 2, v4
    v_lshl_add_u32 v6, v5, 3, v6
    v_lshlrev_b32 v6, 6, v6
    v_and_b32 v7, 3, v4
    v_lshl_add_u32 v6, v7, 3, v6
    v_add_u32 v6, s62, v6
    v_lshlrev_b32 v7, 7, v4
    v_lshl_add_u32 v7, v5, 4, v7
    s_lshl_b32 s59, s3, 8
    ''')
    e(f's_add_u32 s59, s59, {L_SM}')
    e('v_add_u32 v7, s59, v7')
    if o['touch'] == 2:
        touch_block('L_nt2')
        e('s_cmp_lg_u32 s3, 3')
        e('s_cbranch_scc1 L_w16')
        e('s_waitcnt vmcnt(21)')
        e('s_branch L_w16d')
        e.lab('L_w16')
        e('s_waitcnt vmcnt(16)')
        e.lab('L_w16d')
    else:
        e('s_waitcnt vmcnt(16)')
    stamp(1)
    FR = 176
    for kk in range(4):
        for ct in range(2):
            r = FR + (kk*2+ct)*4
            for h in range(2):
                e(f'ds_read_b64_tr_b16 v[{r+2*h}:{r+2*h+1}], v6 offset:{L_WQ + kk*2048 + h*256 + ct*32}')
    e('v_readfirstlane_b32 s43, v31')
    e('s_waitcnt lgkmcnt(0)')
    for kk in range(4):
        for ct in range(2):
            e(f'v_mfma_f32_16x16x32_bf16 {vr(8+4*ct)}, {vr(FR+(kk*2+ct)*4)}, {vr(144+4*kk)}, ' + ('0' if kk == 0 else vr(8+4*ct)))
    e(f's_add_u32 s42, s43, {TAGC:#x}')
    e('''
    s_nop 5
    s_mov_b32 exec_lo, 0x00030003
    s_mov_b32 exec_hi, 0x00030003
    ''')
    e(f'ds_write_b128 v7, v[8:11] offset:{R_QP}')
    e(f'ds_write_b128 v7, v[12:15] offset:{R_QP+64}')
    e('s_mov_b64 exec, 1')
    e('ds_add_u32 v29, v30 offset:4')
    e('s_mov_b64 exec, -1')
    e('s_cmp_eq_u32 s3, 0')
    e('s_cbranch_scc1 L_w0')
    e('s_cmp_lg_u32 s3, 1')
    e('s_cbranch_scc1 L_noclr')
    e('''
    v_mov_b32 v8, 0
    v_mov_b32 v9, 0
    v_mov_b32 v10, 0
    v_mov_b32 v11, 0
    s_lshl_b32 s61, s30, 6
    s_add_u32 s61, s61, s31
    s_lshl_b32 s62, s61, 9
    ''')
    e(f's_add_u32 s62, s62, {WS_PART}')
    e('''
    v_lshrrev_b32 v6, 5, v1
    v_lshlrev_b32 v6, 13, v6
    v_and_b32 v7, 31, v1
    v_lshl_add_u32 v6, v7, 4, v6
    v_add_u32 v6, s62, v6
    v_add_u32 v7, 0x4000, v6
    v_add_u32 v12, 0x80000, v6
    v_add_u32 v13, 0x84000, v6
    s_lshl_b32 s62, s61, 7
    ''')
    e(f's_add_u32 s62, s62, {WS_STAT}')
    e('''
    v_lshrrev_b32 v14, 5, v1
    v_lshlrev_b32 v14, 17, v14
    v_bfe_u32 v15, v1, 3, 2
    v_lshl_add_u32 v14, v15, 11, v14
    v_and_b32 v15, 7, v1
    v_lshl_add_u32 v14, v15, 4, v14
    v_add_u32 v14, s62, v14
    s_lshl_b32 s61, s57, 7
    s_add_u32 s61, s61, s58
    s_lshl_b32 s61, s61, 7
    ''')
    e(f's_add_u32 s61, s61, {WS_OUTP}')
    e('''
    v_lshrrev_b32 v15, 5, v1
    v_lshlrev_b32 v15, 17, v15
    v_bfe_u32 v16, v1, 3, 2
    v_lshl_add_u32 v15, v16, 12, v15
    v_and_b32 v16, 7, v1
    v_lshl_add_u32 v15, v16, 4, v15
    v_add_u32 v15, s61, v15
    ''')
    e.lab('L_noclr')
    if o['t1gate']:
        lds_spin(16, 1, 'L_pub')
    e('s_cmp_lg_u32 s3, 1')
    e('s_cbranch_scc1 L_noclr2')
    e('''
    global_store_dwordx4 v6, v[8:11], s[28:29] sc1
    global_store_dwordx4 v7, v[8:11], s[28:29] sc1
    global_store_dwordx4 v12, v[8:11], s[28:29] sc1
    global_store_dwordx4 v13, v[8:11], s[28:29] sc1
    global_store_dwordx4 v15, v[8:11], s[28:29] sc1
    global_store_dwordx4 v14, v[8:11], s[28:29] sc1
    ''')
    if o['tloc'] < 64:
        e('s_cmp_lg_u32 s31, 0')
        e('s_cbranch_scc1 L_noclr2')
        e('s_lshl_b32 s59, s30, 8')
        e(f's_add_u32 s59, s59, {WS_POOL}')
        e('v_mov_b32 v16, s59')
        e('s_mov_b64 exec, 1')
        e('global_store_dword v16, v8, s[28:29] sc1')
        e('s_mov_b64 exec, -1')
    e.lab('L_noclr2')
    issue_tile(SETS[1])
    e('s_branch L_wo')
    e.lab('L_w0')
    e('''
    s_lshl_b32 s59, s40, 6
    s_lshl_b32 s60, s41, 2
    s_add_u32 s59, s59, s60
    s_lshr_b32 s60, s55, 2
    s_add_u32 s59, s59, s60
    s_lshl_b32 s59, s59, 9
    s_and_b32 s60, s55, 3
    s_lshl_b32 s60, s60, 7
    s_add_u32 s59, s59, s60
    ''')
    e(f's_add_u32 s59, s59, {WS_QG}')
    e('''
    v_bfe_u32 v6, v1, 4, 1
    v_lshlrev_b32 v8, 14, v6
    v_lshl_add_u32 v8, v4, 3, v8
    v_add_u32 v8, s59, v8
    v_lshlrev_b32 v7, 7, v6
    v_lshl_add_u32 v7, v4, 3, v7
    ''')
    e(f'v_add_u32 v7, {L_SM}, v7')
    e('''
    s_lshl_b32 s59, s40, 5
    s_lshl_b32 s60, s41, 2
    s_add_u32 s59, s59, s60
    s_lshl_b32 s59, s59, 9
    ''')
    e(f's_add_u32 s59, s59, {WS_QG}')
    e('v_add_u32 v12, s59, v3')
    e(f'v_add_u32 v13, {64*512}, v12')
    lds_spin(4, 4, 'L_lq', sleep=0)
    for w in range(4):
        e(f'ds_read_b64 v[{144+2*w}:{145+2*w}], v7 offset:{R_QP + w*256}')
    e('s_waitcnt lgkmcnt(0)')
    for k in range(2):
        e(f'v_add_f32 v{144+k}, v{144+k}, v{146+k}')
        e(f'v_add_f32 v{148+k}, v{148+k}, v{150+k}')
    for k in range(2):
        e(f'v_add_f32 v{144+k}, v{144+k}, v{148+k}')
    e('''
    v_cvt_pk_bf16_f32 v10, v144, v145
    v_mov_b32 v11, s42
    s_mov_b32 exec_hi, 0
    global_store_dwordx2 v8, v[10:11], s[28:29] sc1
    s_mov_b32 exec_hi, -1
    ds_write_b32 v29, v30 offset:16
    ''')
    stamp(2)
    issue_tile(SETS[1])
    if o['noq']:
        e('s_branch L_qok')
    e(f's_waitcnt vmcnt({o["pollwait"]})')
    e(f's_mov_b32 s66, {SPIN}')
    e.lab('L_qpoll')
    e('''
    global_load_dwordx4 v[144:147], v12, s[28:29] sc1
    global_load_dwordx4 v[148:151], v12, s[28:29] offset:1024 sc1
    global_load_dwordx4 v[152:155], v13, s[28:29] sc1
    global_load_dwordx4 v[156:159], v13, s[28:29] offset:1024 sc1
    s_waitcnt vmcnt(0)
    ''')
    e('v_cmp_eq_u32 vcc, s42, v145')
    for r in (147, 149, 151, 153, 155, 157, 159):
        e(f'v_cmp_eq_u32 s[64:65], s42, v{r}')
        e('s_and_b64 vcc, vcc, s[64:65]')
    e('''
    s_cmp_eq_u64 vcc, -1
    s_cbranch_scc1 L_qok
    s_sub_u32 s66, s66, 1
    s_cbranch_scc1 L_qok
    s_branch L_qpoll
    ''')
    e.lab('L_qok')
    stamp(3)
    e('v_lshlrev_b32 v6, 3, v1')
    for u in range(4):
        r = 144 + 4*u
        off = L_SM + R_Q + (u >> 1)*1024 + (u & 1)*512
        e(f'v_add_u32 v7, {off}, v6')
        e(f'ds_write2_b32 v7, v{r}, v{r+2} offset0:0 offset1:1')
    e('v_mov_b32 v9, s42')
    e('ds_write_b32 v29, v9 offset:12')
    e('ds_write_b32 v29, v30 offset:8')
    e.lab('L_wo')
    e('''
    v_lshrrev_b32 v10, 3, v1
    v_lshlrev_b32 v10, 10, v10
    v_and_b32 v11, 7, v1
    v_lshl_add_u32 v10, v11, 4, v10
    s_lshl_b32 s59, s58, 17
    s_lshl_b32 s60, s3, 15
    s_add_u32 s59, s59, s60
    s_lshl_b32 s60, s57, 7
    s_add_u32 s59, s59, s60
    s_lshl_b32 s60, s3, 12
    ''')
    for p in range(2):
        wo = 12 if p == 0 else 22
        e(f's_add_u32 s52, s{wo}, s59')
        e(f's_addc_u32 s53, s{wo+1}, 0')
        for i in range(4):
            e(f's_add_u32 m0, s60, {L_WO + p*16384 + i*1024}')
            if i > 0:
                e('s_add_u32 s52, s52, 0x2000')
                e('s_addc_u32 s53, s53, 0')
            else:
                e('s_nop 0')
            e(f'global_load_lds_dwordx4 v10, s[52:53] {o["polW"]}')
    set_srd(6, 8)
    if not o['noq']:
        lds_spin(8, 1, 'L_qflag')
    e('''
    v_and_b32 v6, 3, v4
    v_lshlrev_b32 v6, 8, v6
    v_lshl_add_u32 v31, v5, 4, v6
    ''')
    e(f'v_add_u32 v31, {L_SM}, v31')
    for j in range(4):
        e(f'ds_read_b128 {vr(QR+4*j)}, v31 offset:{R_Q + 1024 + 64*j}')
    for r in range(32, 64): e(f'v_mov_b32 v{r}, 0')
    e(f'v_mov_b32 v20, {f2u(-1e30):#x}')
    e('''
    v_mov_b32 v21, 0
    s_mov_b32 s54, 1
    s_mov_b32 s69, 0
    s_mov_b32 s46, 0
    v_mov_b32 v7, 0
    s_lshl_b32 s59, s30, 8
    s_add_u32 s50, s28, s59
    s_addc_u32 s51, s29, 0
    ''')
    e(f's_add_u32 s50, s50, {WS_POOL}')
    e('s_addc_u32 s51, s51, 0')
    e('s_waitcnt lgkmcnt(0)')
    stamp(4)
    def body(S, once=False):
        KA, KB, VA, VB, tk = S['KA'], S['KB'], S['VA'], S['VB'], S['tk']
        W = o['wcnt']
        def wait():
            if not once: e(f's_waitcnt vmcnt({W})')
        def iss(ch):
            if not once: issue(ch, S)
        nc = o['nocomp']
        TL = o['tloc']
        pool = TL < 64
        if not once:
            if pool:
                e('s_cmp_lg_u32 s46, 0')
                e(f's_cbranch_scc1 L_pool{tk}')
            e("""
            s_mov_b64 exec, 1
            ds_add_rtn_u32 v26, v29, v30
            s_mov_b64 exec, -1
            """)
        wait()
        for j in range(4):
            e(f'v_mfma_f32_16x16x32_bf16 v[8:11], {vr(KA+4*j)}, {vr(QR+4*j)}, ' + ('0' if j == 0 else 'v[8:11]'))
        if not once:
            e('s_waitcnt lgkmcnt(0)')
            e(f'v_readfirstlane_b32 s{tk}, v26')
            e(f's_cmp_eq_u32 s{tk}, {o["chk"]}')
            e(f's_cbranch_scc1 L_chk{tk}')
            e.lab(f'L_chkret{tk}')
            if pool:
                e(f's_cmp_ge_u32 s{tk}, {TL-4}')
                e(f's_cbranch_scc1 L_sw{tk}')
                e.lab(f'L_swret{tk}')
            tile_off(tk)
            e(f's_cmp_lt_u32 s{tk}, 64')
            e.lab(f'L_join{tk}')
            e('s_cselect_b32 s34, 0x800000, 0')
            e('s_cselect_b32 s38, 0x800000, 0')
        iss('Ka')
        wait()
        for j in range(4):
            e(f'v_mfma_f32_16x16x32_bf16 v[12:15], {vr(KB+4*j)}, {vr(QR+4*j)}, ' + ('0' if j == 0 else 'v[12:15]'))
        iss('Kb')
        if once: e('s_nop 3')
        if nc < 1:
          e("""
        v_max3_f32 v22, v8, v9, v10
        v_max_f32 v22, v22, v11
        s_nop 1
        v_max3_f32 v22, v22, v12, v13
        v_max3_f32 v22, v22, v14, v15
        v_mov_b32 v23, v22
        s_nop 1
        v_permlane32_swap_b32 v23, v22
        v_max_f32 v22, v22, v23
        v_mov_b32 v23, v22
        s_nop 1
        v_permlane16_swap_b32 v23, v22
        v_max_f32 v22, v22, v23
        v_mul_f32 v22, s49, v22
        v_max_f32 v23, v20, v22
        v_sub_f32 v24, v20, v23
        v_exp_f32 v28, v24
        v_mov_b32 v20, v23
          """)
          for i in range(8): e(f'v_fma_f32 v{8+i}, v{8+i}, s49, -v23')
          for i in range(8): e(f'v_exp_f32 v{8+i}, v{8+i}')
          e('v_mul_f32 v21, v21, v28')
          for j in range(0, 16):
            e(f'v_pk_mul_f32 v[{32+2*j}:{33+2*j}], v[{32+2*j}:{33+2*j}], v[28:29] op_sel_hi:[1,0]')
          e("""
        v_add_f32 v24, v8, v9
        v_add_f32 v25, v10, v11
        v_add_f32 v26, v12, v13
        v_add_f32 v27, v14, v15
        v_cvt_pk_bf16_f32 v16, v8, v9
        v_cvt_pk_bf16_f32 v17, v10, v11
        v_cvt_pk_bf16_f32 v18, v12, v13
        v_cvt_pk_bf16_f32 v19, v14, v15
        v_add_f32 v24, v24, v25
        v_add_f32 v26, v26, v27
        v_add_f32 v21, v21, v24
        v_add_f32 v21, v21, v26
          """)
        wait()
        if nc < 1:
          for j in range(8):
            w = j >> 1; sel = 's47' if j % 2 == 0 else 's48'
            e(f'v_perm_b32 v{VT+4*j+0}, v{VA+4*1+w}, v{VA+4*0+w}, {sel}')
            e(f'v_perm_b32 v{VT+4*j+1}, v{VA+4*3+w}, v{VA+4*2+w}, {sel}')
        iss('Va')
        wait()
        if nc < 1:
          for j in range(8):
            w = j >> 1; sel = 's47' if j % 2 == 0 else 's48'
            e(f'v_perm_b32 v{VT+4*j+2}, v{VB+4*1+w}, v{VB+4*0+w}, {sel}')
            e(f'v_perm_b32 v{VT+4*j+3}, v{VB+4*3+w}, v{VB+4*2+w}, {sel}')
        iss('Vb')
        if once: e('s_nop 1')
        if nc < 2:
          for j in range(8):
            e(f'v_mfma_f32_16x16x32_bf16 {vr(32+4*j)}, {vr(VT+4*j)}, v[16:19], {vr(32+4*j)}')
    e.lab('L_t0')
    body(SETS[0])
    e("""
    s_cmp_eq_u32 s54, 1
    s_cbranch_scc1 L_t1
    s_cmp_lt_u32 s68, 64
    s_cbranch_scc1 L_t0
    s_branch L_flush
    """)
    e.lab('L_t1')
    body(SETS[1], once=True)
    e.lab('L_flush')
    e('''
    v_mov_b32 v23, v21
    s_nop 1
    v_permlane32_swap_b32 v23, v21
    v_add_f32 v21, v21, v23
    v_mov_b32 v23, v21
    s_nop 1
    v_permlane16_swap_b32 v23, v21
    v_add_f32 v21, v21, v23
    s_lshl_b32 s59, s54, 2
    s_add_u32 s59, s59, s3
    s_lshl_b32 s59, s59, 11
    v_lshlrev_b32 v6, 9, v4
    v_lshl_add_u32 v6, v5, 4, v6
    v_add_u32 v6, s59, v6
    s_lshl_b32 s59, s54, 7
    s_lshl_b32 s60, s3, 3
    s_add_u32 s59, s59, s60
    ''')
    e(f's_add_u32 s59, s59, {L_SM}')
    e('''
    v_lshlrev_b32 v7, 5, v4
    v_add_u32 v7, s59, v7
    v_mov_b32 v22, v20
    v_mov_b32 v23, v21
    s_mov_b32 exec_lo, 0x000f000f
    s_mov_b32 exec_hi, 0x000f000f
    ''')
    for j in range(8):
        e(f'ds_write_b128 v6, {vr(32+4*j)} offset:{L_RES + 64*j}')
    e('s_mov_b64 exec, 15')
    e(f'ds_write_b64 v7, v[22:23] offset:{R_ST}')
    e('s_mov_b64 exec, -1')
    e('s_cmp_eq_u32 s54, 0')
    e('s_cbranch_scc1 L_tail')
    stamp(5)
    for j in range(4):
        e(f'ds_read_b128 {vr(QR+4*j)}, v31 offset:{R_Q + 64*j}')
    e('s_cmp_lg_u32 s3, 1')
    e('s_cbranch_scc1 L_noflag')
    e('ds_read_b32 v9, v29 offset:12')
    e('s_lshl_b32 s59, s30, 4')
    e('s_add_u32 s59, s59, s31')
    e('s_lshl_b32 s59, s59, 7')
    e(f's_add_u32 s59, s59, {WS_CLR}')
    e('v_mov_b32 v6, s59')
    e('s_waitcnt lgkmcnt(0)')
    e('s_mov_b64 exec, 1')
    e('global_store_dword v6, v9, s[28:29] sc1')
    e('s_mov_b64 exec, -1')
    e.lab('L_noflag')
    e("""
    v_lshrrev_b32 v13, 5, v1
    v_and_b32 v14, 31, v1
    v_lshlrev_b32 v240, 13, v13
    v_lshl_add_u32 v240, v14, 4, v240
    s_lshl_b32 s61, s3, 9
    v_add_u32 v240, s61, v240
    v_lshlrev_b32 v241, 7, v13
    s_lshl_b32 s61, s3, 5
    """)
    e(f's_add_u32 s61, s61, {L_SM}')
    e('v_add_u32 v241, s61, v241')
    e("""
    s_lshl_b32 s61, s30, 2
    s_add_u32 s61, s61, s3
    s_lshl_b32 s61, s61, 4
    s_add_u32 s61, s61, s31
    s_lshl_b32 s62, s61, 9
    """)
    e(f's_add_u32 s62, s62, {WS_PART}')
    e("""
    v_lshlrev_b32 v242, 19, v13
    v_lshl_add_u32 v242, v14, 4, v242
    v_add_u32 v242, s62, v242
    s_lshl_b32 s62, s61, 7
    """)
    e(f's_add_u32 s62, s62, {WS_STAT}')
    e("""
    v_lshlrev_b32 v243, 17, v13
    v_and_b32 v15, 7, v1
    v_lshl_add_u32 v243, v15, 4, v243
    v_add_u32 v243, s62, v243
    """)
    e("""
    s_lshr_b32 s59, s3, 1
    s_and_b32 s60, s3, 1
    s_lshl_b32 s61, s59, 4
    s_lshl_b32 s62, s60, 3
    s_add_u32 s61, s61, s62
    s_add_u32 s61, s61, s41
    s_lshl_b32 s61, s61, 2
    s_add_u32 s61, s61, s56
    s_lshl_b32 s62, s61, 11
    """)
    e(f's_add_u32 s62, s62, {WS_STAT}')
    e("""
    v_and_b32 v244, 7, v1
    v_lshl_add_u32 v244, v244, 1, v13
    v_lshlrev_b32 v244, 7, v244
    v_add_u32 v244, s62, v244
    s_lshl_b32 s62, s61, 13
    """)
    e(f's_add_u32 s62, s62, {WS_PART}')
    e('v_add_u32 v245, s62, v3')
    e('v_add_u32 v246, 4096, v245')
    e("""
    v_and_b32 v15, 3, v14
    v_lshlrev_b32 v247, 5, v15
    v_lshrrev_b32 v15, 2, v14
    v_add_u32 v247, v247, v15
    v_lshlrev_b32 v247, 1, v247
    s_lshl_b32 s61, s3, 8
    """)
    e(f's_add_u32 s61, s61, {L_SM}')
    e('v_add_u32 v247, s61, v247')
    e("""
    v_lshrrev_b32 v248, 2, v4
    v_lshl_add_u32 v248, v5, 3, v248
    v_lshlrev_b32 v248, 7, v248
    v_and_b32 v13, 3, v4
    v_lshl_add_u32 v248, v13, 3, v248
    s_lshl_b32 s62, s3, 5
    v_add_u32 v248, s62, v248
    v_and_b32 v249, 1, v4
    v_lshlrev_b32 v249, 8, v249
    v_lshl_add_u32 v249, v5, 4, v249
    """)
    e(f'v_add_u32 v249, {L_SM}, v249')
    e("""
    s_lshl_b32 s61, s57, 2
    s_add_u32 s61, s61, s3
    s_lshl_b32 s61, s61, 5
    s_add_u32 s61, s61, s58
    s_lshl_b32 s61, s61, 7
    """)
    e(f's_add_u32 s63, s61, {WS_OUTP}')
    e("""
    v_and_b32 v250, 1, v4
    v_lshlrev_b32 v250, 6, v250
    v_lshl_add_u32 v250, v5, 4, v250
    v_add_u32 v250, s63, v250
    v_add_u32 v255, 0x20000, v250
    s_lshl_b32 s59, s2, 12
    """)
    e(f's_add_u32 s59, s59, {WS_OUTP}')
    e("""
    v_add_u32 v251, s59, v3
    v_bfe_u32 v252, v1, 2, 1
    v_lshlrev_b32 v252, 10, v252
    v_and_b32 v13, 3, v1
    v_lshl_add_u32 v252, v13, 2, v252
    s_lshl_b32 s59, s2, 4
    v_add_u32 v252, s59, v252
    v_lshlrev_b32 v252, 1, v252
    """)
    for r in range(32, 64): e(f'v_mov_b32 v{r}, 0')
    e(f'v_mov_b32 v20, {f2u(-1e30):#x}')
    e('''
    v_mov_b32 v21, 0
    s_mov_b32 s54, 0
    s_waitcnt lgkmcnt(0)
    s_cmp_lt_u32 s68, 64
    s_cbranch_scc1 L_t0
    s_branch L_flush
    ''')
    if o['tloc'] < 64:
        TL = o['tloc']; NP = 16*(64-TL)
        for S in SETS[:1]:
            tk = S['tk']
            e.lab(f'L_sw{tk}')
            lds_spin(20, 1, f'L_swsp{tk}', sleep=16)
            e('s_mov_b32 s46, 1')
            e('v_mov_b32 v7, 0')
            e('s_mov_b64 exec, 1')
            e('global_atomic_add v6, v7, v30, s[50:51] sc0 sc1')
            e('s_mov_b64 exec, -1')
            e(f's_branch L_swret{tk}')
            e.lab(f'L_pool{tk}')
            e(f's_waitcnt vmcnt({o["wcnt"]})')
            e('v_readfirstlane_b32 s59, v6')
            for j in range(4):
                e(f'v_mfma_f32_16x16x32_bf16 v[8:11], {vr(S["KA"]+4*j)}, {vr(QR+4*j)}, ' + ('0' if j == 0 else 'v[8:11]'))
            e('s_and_b32 s44, s59, 15')
            e('s_lshl_b32 s44, s44, 19')
            e('s_lshr_b32 s60, s59, 4')
            e(f's_add_u32 s60, s60, {TL}')
            e('s_lshl_b32 s60, s60, 13')
            e('s_add_u32 s44, s44, s60')
            e('s_add_u32 s45, s44, 4096')
            e(f's_cmp_lt_u32 s59, {NP}')
            e(f's_cselect_b32 s{tk}, 0, 64')
            e(f's_cbranch_scc0 L_join{tk}')
            e('s_mov_b64 exec, 1')
            e('global_atomic_add v6, v7, v30, s[50:51] sc0 sc1')
            e('s_mov_b64 exec, -1')
            e(f's_branch L_join{tk}')
    for tk in (68,):
        e.lab(f'L_chk{tk}')
        e('ds_read_b32 v27, v29 offset:12')
        e('''
        v_bfe_u32 v25, v1, 4, 1
        v_lshlrev_b32 v25, 7, v25
        v_add_u32 v25, v25, v4
        s_lshl_b32 s59, s41, 4
        v_add_u32 v25, s59, v25
        v_and_b32 v24, 31, v1
        v_bfe_u32 v16, v24, 1, 1
        v_lshlrev_b32 v16, 7, v16
        v_lshrrev_b32 v17, 2, v24
        v_lshl_add_u32 v16, v17, 4, v16
        v_and_b32 v17, 1, v24
        v_lshl_add_u32 v16, v17, 3, v16
        s_lshr_b32 s59, s2, 2
        s_and_b32 s59, s59, 7
        v_add_u32 v16, s59, v16
        v_cmp_gt_u32 vcc, 32, v1
        s_nop 1
        v_cndmask_b32 v25, v16, v25, vcc
        v_lshlrev_b32 v25, 7, v25
        ''')
        e(f'v_add_u32 v25, {WS_CLR}, v25')
        e(f's_mov_b32 s66, {SPIN}')
        e.lab(f'L_chkl{tk}')
        e('''
        global_load_dword v16, v25, s[28:29] sc1
        s_waitcnt vmcnt(0) lgkmcnt(0)
        v_cmp_eq_u32 vcc, v27, v16
        s_cmp_eq_u64 vcc, -1
        ''')
        e(f's_cbranch_scc1 L_chkok{tk}')
        e('s_sub_u32 s66, s66, 1')
        e(f's_cbranch_scc1 L_chkok{tk}')
        e('s_sleep 16')
        e(f's_branch L_chkl{tk}')
        e.lab(f'L_chkok{tk}')
        e('ds_write_b32 v29, v30 offset:20')
        e(f's_branch L_chkret{tk}')
    e.lab('L_tail')
    stamp(6)
    e('s_waitcnt vmcnt(0) lgkmcnt(0)')
    e('s_barrier')
    stamp(7)
    for k in range(2):
        e(f'ds_read_b128 {vr(64+4*k)}, v241 offset:{R_ST + 16*k}')
    for w in range(4):
        e(f'ds_read_b128 {vr(72+4*w)}, v240 offset:{L_RES + w*2048}')
    e('s_waitcnt lgkmcnt(%d)' % (0 if stamps else 4))
    e("""
    v_max3_f32 v88, v64, v66, v68
    v_max_f32 v88, v88, v70
    v_sub_f32 v64, v64, v88
    v_sub_f32 v66, v66, v88
    v_sub_f32 v68, v68, v88
    v_sub_f32 v70, v70, v88
    v_exp_f32 v64, v64
    v_exp_f32 v66, v66
    v_exp_f32 v68, v68
    v_exp_f32 v70, v70
    v_or_b32 v92, 1, v88
    v_mul_f32 v90, v64, v65
    v_fmac_f32 v90, v66, v67
    v_fmac_f32 v90, v68, v69
    v_fmac_f32 v90, v70, v71
    v_or_b32 v94, 1, v88
    s_waitcnt lgkmcnt(0)
    """)
    for k in range(4): e(f'v_mul_f32 v{96+k}, v64, v{72+k}')
    for w in range(1, 4):
        for k in range(4): e(f'v_fmac_f32 v{96+k}, v{64+2*w}, v{72+4*w+k}')
    e('v_or_b32 v93, 1, v90')
    e('v_or_b32 v95, 1, v90')
    for k in range(4): e(f'v_or_b32 v{96+k}, 1, v{96+k}')
    e('global_store_dwordx4 v242, v[96:99], s[28:29] sc1')
    e("""
    s_mov_b32 exec_lo, 0xff
    s_mov_b32 exec_hi, 0xff
    global_store_dwordx4 v243, v[92:95], s[28:29] sc1
    s_mov_b64 exec, -1
    """)
    stamp(8)
    e(f's_mov_b32 s66, {SPIN}')
    e.lab('L_spoll')
    e("""
    global_load_dwordx2 v[10:11], v244, s[28:29] sc1
    s_waitcnt vmcnt(0)
    v_and_b32 v12, v10, v11
    v_and_b32 v12, 1, v12
    v_cmp_eq_u32 vcc, 1, v12
    s_and_b32 s59, vcc_lo, 0xff
    s_and_b32 s60, vcc_hi, 0xff
    s_bcnt1_i32_b32 s59, s59
    s_bcnt1_i32_b32 s60, s60
    s_add_u32 s59, s59, s60
    """)
    e(f's_cmp_ge_u32 s59, {o["p2min"]}')
    e('s_cbranch_scc1 L_sok')
    e('s_sub_u32 s66, s66, 1')
    e('s_cbranch_scc1 L_sok')
    e(f's_sleep {o["psleep"]}')
    e('s_branch L_spoll')
    e.lab('L_sok')
    stamp(9)
    e.lab('L_dpoll')
    D = 64
    e('global_load_dwordx2 v[10:11], v244, s[28:29] sc1')
    for i in range(8):
        va = 'v245' if i < 4 else 'v246'
        e(f'global_load_dwordx4 {vr(D+4*i)}, {va}, s[28:29] offset:{(i%4)*1024} sc1')
    e("""
    s_waitcnt vmcnt(8)
    v_max_f32_dpp v12, v10, v10 row_ror:4 row_mask:0xf bank_mask:0xf
    v_and_b32 v19, v10, v11
    s_nop 0
    v_max_f32_dpp v13, v12, v12 row_ror:2 row_mask:0xf bank_mask:0xf
    s_nop 1
    v_max_f32_dpp v12, v13, v13 row_ror:1 row_mask:0xf bank_mask:0xf
    v_mov_b32 v16, 0
    v_mov_b32 v13, v12
    s_nop 1
    v_permlane32_swap_b32 v13, v12
    v_max_f32 v13, v13, v12
    v_sub_f32 v14, v10, v13
    v_exp_f32 v14, v14
    v_mov_b32 v17, 0
    v_mul_f32 v15, v14, v11
    v_mov_b32 v8, 0
    v_mov_b32 v9, 0
    v_add_f32_dpp v12, v15, v15 row_ror:4 row_mask:0xf bank_mask:0xf
    s_nop 1
    v_add_f32_dpp v15, v12, v12 row_ror:2 row_mask:0xf bank_mask:0xf
    s_nop 1
    v_add_f32_dpp v12, v15, v15 row_ror:1 row_mask:0xf bank_mask:0xf
    s_nop 0
    v_mov_b32 v15, v12
    s_nop 1
    v_permlane32_swap_b32 v15, v12
    v_add_f32 v15, v15, v12
    v_rcp_f32 v15, v15
    s_nop 0
    v_mul_f32 v14, v14, v15
    s_waitcnt vmcnt(0)
    """)
    regs = list(range(D, D+32))
    e(f'v_bitop3_b32 v12, v19, v{regs[0]}, v{regs[1]} bitop3:0x80')
    k = 2
    while k + 1 < 32:
        e(f'v_bitop3_b32 v12, v12, v{regs[k]}, v{regs[k+1]} bitop3:0x80'); k += 2
    e("""
    v_and_b32 v12, 1, v12
    v_cmp_eq_u32 vcc, 1, v12
    s_cmp_eq_u64 vcc, -1
    s_cbranch_scc1 L_dok
    s_sub_u32 s66, s66, 1
    s_cbranch_scc1 L_dok
    s_branch L_dpoll
    """)
    e.lab('L_dok')
    acc = [8, 9, 16, 17]
    for i in range(8):
        for k in range(4):
            e(f'v_fmac_f32_dpp v{acc[k]}, v14, v{D+4*i+k} row_newbcast:{i} row_mask:0xf bank_mask:0xf')
    for k in range(4): e(f'v_mov_b32 v{20+k}, v{acc[k]}')
    e('s_nop 0')
    for k in range(4): e(f'v_permlane32_swap_b32 v{20+k}, v{acc[k]}')
    for k in range(4): e(f'v_add_f32 v{acc[k]}, v{acc[k]}, v{20+k}')
    e('v_cvt_pk_bf16_f32 v18, v8, v9')
    e('v_cvt_pk_bf16_f32 v19, v16, v17')
    e(f'ds_write_b16 v247, v18 offset:{R_O}')
    e(f'ds_write_b16_d16_hi v247, v18 offset:{R_O+16}')
    e(f'ds_write_b16 v247, v19 offset:{R_O+32}')
    e(f'ds_write_b16_d16_hi v247, v19 offset:{R_O+48}')
    for p in range(2):
        for kk in range(4):
            for h in range(2):
                r = 128 + 16*p + 4*kk + 2*h
                e(f'ds_read_b64_tr_b16 v[{r}:{r+1}], v248 offset:{L_WO + p*16384 + kk*4096 + h*512}')
    e('s_waitcnt lgkmcnt(0)')
    e('s_barrier')
    stamp(10)
    for p in range(2):
        for kk in range(4):
            e(f'ds_read_b128 {vr(96+16*p+4*kk)}, v249 offset:{R_O + p*512 + kk*64}')
    e('s_waitcnt lgkmcnt(0)')
    for kk in range(4):
        for p in range(2):
            e(f'v_mfma_f32_16x16x32_bf16 {vr(8+4*p)}, {vr(128+16*p+4*kk)}, {vr(96+16*p+4*kk)}, ' + ('0' if kk == 0 else vr(8+4*p)))
    e("""
    s_mov_b32 exec_lo, 0x00030003
    s_mov_b32 exec_hi, 0x00030003
    s_nop 5
    v_or_b32 v8, 1, v8
    v_or_b32 v9, 1, v9
    v_or_b32 v10, 1, v10
    v_or_b32 v11, 1, v11
    v_or_b32 v12, 1, v12
    v_or_b32 v13, 1, v13
    v_or_b32 v14, 1, v14
    v_or_b32 v15, 1, v15
    global_store_dwordx4 v250, v[8:11], s[28:29] sc1
    global_store_dwordx4 v255, v[12:15], s[28:29] sc1
    s_mov_b64 exec, -1
    """)
    stamp(11)
    e('s_cmp_lg_u32 s3, 0')
    e('s_cbranch_scc1 ' + ('L_fin' if stamps else 'L_end'))
    e('s_cmp_ge_u32 s2, %d' % (32 if o['aonly'] else 64))
    e('s_cbranch_scc1 L_fin')
    e(f's_mov_b32 s66, {SPIN}')
    e.lab('L_opoll')
    for i in range(4):
        e(f'global_load_dwordx4 {vr(64+4*i)}, v251, s[28:29] offset:{i*1024} sc1')
    e('s_waitcnt vmcnt(0)')
    e('v_bitop3_b32 v12, v64, v65, v66 bitop3:0x80')
    k = 67
    while k + 1 < 80:
        e(f'v_bitop3_b32 v12, v12, v{k}, v{k+1} bitop3:0x80'); k += 2
    e('v_and_b32 v12, v12, v79')
    e("""
    v_and_b32 v12, 1, v12
    v_cmp_eq_u32 vcc, 1, v12
    s_cmp_eq_u64 vcc, -1
    s_cbranch_scc1 L_ook
    s_sub_u32 s66, s66, 1
    s_cbranch_scc1 L_ook
    s_branch L_opoll
    """)
    e.lab('L_ook')
    for k in range(4):
        e(f'v_add_f32 v{64+k}, v{64+k}, v{68+k}')
        e(f'v_add_f32 v{72+k}, v{72+k}, v{76+k}')
    for k in range(4): e(f'v_add_f32 v{64+k}, v{64+k}, v{72+k}')
    e('s_nop 0')
    for k in range(4): e(f'v_add_f32_dpp v{68+k}, v{64+k}, v{64+k} row_ror:8 row_mask:0xf bank_mask:0xf')
    for k in range(4): e(f'v_mov_b32 v{72+k}, v{68+k}')
    e('s_nop 0')
    for k in range(4): e(f'v_permlane16_swap_b32 v{72+k}, v{68+k}')
    for k in range(4): e(f'v_add_f32 v{68+k}, v{68+k}, v{72+k}')
    for k in range(4): e(f'v_mov_b32 v{72+k}, v{68+k}')
    e('s_nop 0')
    for k in range(4): e(f'v_permlane32_swap_b32 v{72+k}, v{68+k}')
    for k in range(4): e(f'v_add_f32 v{68+k}, v{68+k}, v{72+k}')
    e("""
    v_cvt_pk_bf16_f32 v64, v68, v69
    v_cvt_pk_bf16_f32 v65, v70, v71
    s_mov_b64 exec, 0xff
    global_store_dwordx2 v252, v[64:65], s[24:25] OUTPOL
    s_mov_b64 exec, -1
    """)
    e('''
    s_cmp_lg_u32 s2, 0
    s_cbranch_scc1 L_fin
    s_add_u32 s59, s43, 1
    v_mov_b32 v7, s59
    v_mov_b32 v8, 0
    s_mov_b64 exec, 1
    ''')
    e(f'global_store_dword v8, v7, s[28:29] offset:{WS_EPOCH} sc1')
    e('s_mov_b64 exec, -1')
    e.lab('L_fin')
    if o['holdus']:
        e('s_cmp_lg_u32 s2, 0')
        e('s_cbranch_scc1 L_end')
        e('s_waitcnt vmcnt(0) lgkmcnt(0)')
        e('s_memrealtime s[72:73]')
        e('s_waitcnt lgkmcnt(0)')
        e('s_sub_u32 s74, s72, s70')
        e(f's_mul_i32 s74, s74, {o["holdmul"]}')
        e(f's_add_u32 s74, s74, {o["holdus"]*100}')
        e.lab('L_hold')
        e('s_memrealtime s[72:73]')
        e('s_waitcnt lgkmcnt(0)')
        e('s_sub_u32 s75, s72, s70')
        e('s_cmp_lt_u32 s75, s74')
        e('s_cbranch_scc1 L_hold')
    if stamps:
        e('s_memrealtime s[94:95]')
        e('s_waitcnt lgkmcnt(0)')
        e('s_lshl_b32 s59, s2, 3')
        e('s_add_u32 s59, s59, s3')
        e(f's_mul_i32 s59, s59, {16*8}')
        e(f's_add_u32 s59, s59, {WS_STAMP}')
        e('v_mov_b32 v6, s59')
        e('s_mov_b64 exec, 1')
        for i in range(16):
            e(f'v_mov_b32 v{10+2*i}, s{70+2*i}')
            e(f'v_mov_b32 v{11+2*i}, s{71+2*i}')
        for i in range(16):
            e(f'global_store_dwordx2 v6, v[{10+2*i}:{11+2*i}], s[28:29] offset:{8*i}')
    e.lab('L_end')
    e('s_endpgm')
    e.raw('.section .rodata,"a"')
    e.raw('.p2align 6')
    e.raw(f'.amdhsa_kernel {KN}_kernel')
    e.raw('  .amdhsa_next_free_vgpr 256')
    e.raw('  .amdhsa_next_free_sgpr 102')
    e.raw('  .amdhsa_accum_offset 256')
    e.raw('  .amdhsa_group_segment_fixed_size 0')
    e.raw('  .amdhsa_kernarg_size 104')
    e.raw('  .amdhsa_user_sgpr_count 2')
    e.raw('  .amdhsa_user_sgpr_kernarg_segment_ptr 1')
    e.raw('  .amdhsa_system_sgpr_workgroup_id_x 1')
    e.raw('.end_amdhsa_kernel')
    open(path, 'w').write(('\n'.join(e.L) + '\n').replace('OUTPOL', o['outpol']))

if __name__ == '__main__':
    gen('k10.s')
    gen('k10s.s', stamps=True)
    gen('k10s_s8.s', stamps=True, opts=dict(psleep=8))
    gen('k10s_p16.s', stamps=True, opts=dict(p2min=16))
    gen('k10_p16.s', opts=dict(p2min=16))
    gen('k10_s8.s', opts=dict(psleep=8))
```

```python
import sys, struct

KN = 'concat_heads__gqa_block_cached__sliding_block_cached__decode'

def f2u(x):
    return struct.unpack('<I', struct.pack('<f', x))[0]

WS_EPOCH = 0x0
WS_QG    = 0x1000
WS_PART  = 0x20000
WS_STAT  = 0x1A0000
WS_OUTP  = 0x130000
WS_CLR   = 0x170000
WS_POOL  = 0x180000
WS_STAMP = 512 << 20
L_WQ  = 0x0
L_RES = 0x0
L_WO  = 0x8000
L_SM  = 0x10000
R_ST  = 0x000
R_QP  = 0x200
R_Q   = 0xA00
R_O   = 0x1200
R_CNT = 0x1600
LDS_BYTES = 86016

TAGC = 0x9E3779B9
SPIN = 1 << 17

class A:
    def __init__(self):
        self.L = []
    def __call__(self, s):
        for line in s.strip('\n').split('\n'):
            line = line.strip()
            if line:
                self.L.append('  ' + line)
    def lab(self, s):
        self.L.append(s + ':')
    def raw(self, s):
        self.L.append(s)

def vr(a, n=4):
    return f'v[{a}:{a+n-1}]'

SETS = [dict(KA=80, KB=96, VA=112, VB=128, tk=68), dict(KA=176, KB=192, VA=208, VB=224, tk=69)]
VT = 144
QR = 64

def gen(path, stamps=False, opts=None):
    o = dict(chk=24, pollwait=16, t1gate=True, rot=0, touch=0, polB='nt', polW='nt', polA='nt', map='g16', noq=False, nowo=False, nocomp=0, p2min=15, outpol='', holdus=0, holdmul=0, tloc=56, wcnt=12, aonly=False, psleep=4, contig=True, t2all=False, shalf=0, dsleep=0, osleep=0)
    o.update(opts or {})
    e = A()
    def stamp(i):
        if stamps:
            e(f's_memrealtime s[{70+2*i}:{71+2*i}]')
    def lds_spin(off, val, label, sleep=1):
        e(f's_mov_b32 s66, {SPIN}')
        e.lab(label)
        e(f'ds_read_b32 v27, v29 offset:{off}')
        e('s_waitcnt lgkmcnt(0)')
        e('v_readfirstlane_b32 s59, v27')
        e(f's_cmp_eq_u32 s59, {val}')
        e(f's_cbranch_scc1 {label}_ok')
        if sleep: e(f's_sleep {sleep}')
        e('s_sub_u32 s66, s66, 1')
        e(f's_cbranch_scc0 {label}')
        e.lab(label + '_ok')

    def touch_block(lab):
        e('s_cmp_lg_u32 s3, 3')
        e(f's_cbranch_scc1 {lab}')
        e('s_lshl_b32 s59, s30, 23')
        e('s_lshl_b32 s60, s31, 19')
        e('s_add_u32 s59, s59, s60')
        e('v_mov_b32 v26, s59')
        e('s_lshl_b32 s59, s40, 4')
        e('s_add_u32 s59, s59, s31')
        e('s_lshr_b32 s59, s59, 3')
        e('s_lshl_b32 s60, s41, 2')
        e('s_add_u32 s59, s59, s60')
        e('s_lshl_b32 s59, s59, 17')
        e('v_mov_b32 v27, s59')
        e('s_mov_b64 exec, 1')
        e('global_load_dword v244, v26, s[6:7] nt')
        e('global_load_dword v245, v26, s[8:9] nt')
        e('global_load_dword v246, v27, s[12:13] nt')
        e('global_load_dword v247, v27, s[22:23] nt')
        e('global_load_dword v248, v22, s[24:25]')
        e('s_mov_b64 exec, -1')
        e.lab(lab)
    e.raw(f'; @launch grid=(256,1,1) block=(256,1,1) lds={LDS_BYTES}')
    e.raw('.amdgcn_target "amdgcn-amd-amdhsa--gfx950"')
    e.raw('.text')
    e.raw(f'.globl {KN}_kernel')
    e.raw('.p2align 8')
    e.raw(f'.type {KN}_kernel,@function')
    e.raw(f'{KN}_kernel:')
    e('s_cmp_ge_u32 s2, 256')
    e('s_cbranch_scc1 L_end')
    if stamps:
        for i in range(70, 102): e(f's_mov_b32 s{i}, 0')
    stamp(0)
    if o['holdus']:
        e('s_memrealtime s[70:71]')
    e('''
    s_load_dwordx16 s[4:19], s[0:1], 0
    s_load_dwordx8 s[20:27], s[0:1], 64
    s_load_dwordx2 s[28:29], s[0:1], 96
    v_lshrrev_b32 v4, 6, v0
    v_and_b32 v1, 63, v0
    v_readfirstlane_b32 s3, v4
    ''')
    if o['map'] == 'g16':
        e('s_lshr_b32 s30, s2, 4')
        e('s_and_b32 s31, s2, 15')
    else:
        e('s_lshr_b32 s31, s2, 3')
        e('s_lshr_b32 s30, s31, 4')
        e('s_lshl_b32 s30, s30, 3')
        e('s_and_b32 s59, s2, 7')
        e('s_add_u32 s30, s30, s59')
        e('s_and_b32 s31, s31, 15')
    e('''
    s_lshr_b32 s40, s30, 3
    s_and_b32 s41, s30, 7
    v_and_b32 v4, 15, v1
    v_lshrrev_b32 v5, 4, v1
    v_lshlrev_b32 v3, 4, v1
    v_mov_b32 v22, 0
    v_mov_b32 v23, 0
    ''')
    e(f'v_mov_b32 v29, {L_SM + R_CNT}')
    e('''
    s_cmp_lg_u32 s3, 0
    s_cbranch_scc1 L_noinit
    v_mov_b32 v8, 0
    v_mov_b32 v9, 0
    v_mov_b32 v10, 0
    v_mov_b32 v11, 0
    ds_write_b128 v29, v[8:11]
    ds_write_b64 v29, v[8:9] offset:16
    ''')
    e.lab('L_noinit')
    e('''
    v_and_b32 v6, 3, v4
    v_lshrrev_b32 v7, 2, v4
    v_lshl_add_u32 v6, v6, 2, v7
    v_lshlrev_b32 v6, 8, v6
    v_lshl_add_u32 v2, v5, 4, v6
    v_mov_b32 v30, 1
    v_lshrrev_b32 v24, 2, v1
    v_lshlrev_b32 v24, 13, v24
    v_and_b32 v11, 3, v1
    v_lshl_add_u32 v24, v11, 4, v24
    v_and_b32 v25, 1, v1
    v_lshlrev_b32 v25, 10, v25
    v_lshl_add_u32 v25, v5, 4, v25
    s_lshl_b32 s59, s3, 8
    v_add_u32 v25, s59, v25
    ''')
    if o['map'] == 'g16':
        e('s_and_b32 s55, s31, 7')
        e('s_lshl_b32 s55, s55, 1')
        e('s_lshr_b32 s59, s31, 3')
        e('s_or_b32 s55, s55, s59')
    else:
        e('s_mov_b32 s55, s31')
    e('''
    s_lshl_b32 s61, s3, 20
    s_lshl_b32 s60, s41, 10
    s_add_u32 s61, s61, s60
    s_lshl_b32 s60, s55, 6
    s_add_u32 s61, s61, s60
    s_lshl_b32 s62, s3, 13
    ''')
    e('s_waitcnt lgkmcnt(0)')
    e('s_barrier')
    stamp(13)
    e('''
    s_cmp_eq_u32 s40, 0
    s_cselect_b32 s52, s10, s20
    s_cselect_b32 s53, s11, s21
    s_cselect_b32 s50, s4, s14
    s_cselect_b32 s51, s5, s15
    s_add_u32 s52, s52, s61
    s_addc_u32 s53, s53, 0
    ''')
    for i in range(8):
        e(f's_add_u32 m0, s62, {L_WQ + i*1024}')
        if i > 0:
            e('s_add_u32 s52, s52, 0x20000')
            e('s_addc_u32 s53, s53, 0')
        else:
            e('s_nop 0')
        e(f'global_load_lds_dwordx4 v24, s[52:53] {o["polW"]}')
    for kk in range(4):
        e(f'global_load_dwordx4 {vr(144+4*kk)}, v25, s[50:51] offset:{64*kk}')
    e(f'global_load_dword v31, v22, s[28:29] offset:{WS_EPOCH} sc1')
    if o['touch'] == 1: touch_block('L_nt1')

    def set_srd(kp, vp):
        e('s_lshl_b32 s59, s30, 23')
        e(f's_add_u32 s32, s{kp}, s59')
        e(f's_addc_u32 s33, s{kp+1}, 0')
        e('s_and_b32 s33, s33, 0xffff')
        e(f's_add_u32 s36, s{vp}, s59')
        e(f's_addc_u32 s37, s{vp+1}, 0')
        e('s_and_b32 s37, s37, 0xffff')
        e('''
        s_mov_b32 s34, 0x800000
        s_mov_b32 s35, 0x20000
        s_mov_b32 s38, 0x800000
        s_mov_b32 s39, 0x20000
        ''')
    def issue(chunk, S, pol=None):
        pol = o['polA'] if pol is None else pol
        if chunk == 'Ka':
            for j in range(4): e(f'buffer_load_dwordx4 {vr(S["KA"]+4*j)}, v2, s[32:35], s44 offen offset:{64*j} {pol}')
        elif chunk == 'Kb':
            for j in range(4): e(f'buffer_load_dwordx4 {vr(S["KB"]+4*j)}, v2, s[32:35], s45 offen offset:{64*j} {pol}')
        elif chunk == 'Va':
            for i in range(4): e(f'buffer_load_dwordx4 {vr(S["VA"]+4*i)}, v3, s[36:39], s44 offen offset:{1024*i} {pol}')
        elif chunk == 'Vb':
            for i in range(4): e(f'buffer_load_dwordx4 {vr(S["VB"]+4*i)}, v3, s[36:39], s45 offen offset:{1024*i} {pol}')
    def issue_tile(S):
        for ch in ('Ka', 'Kb', 'Va', 'Vb'): issue(ch, S, o['polB'])
    def tile_off(tkreg):
        if o['rot']:
            e(f's_add_u32 s44, s{tkreg}, s46')
            e('s_and_b32 s44, s44, 63')
            e('s_lshl_b32 s44, s44, 13')
        else:
            e(f's_lshl_b32 s44, s{tkreg}, 13')
        e('s_add_u32 s44, s44, s67')
        e('s_add_u32 s45, s44, 4096')
    set_srd(16, 18)
    e('''
    s_lshl_b32 s44, s31, 16
    s_lshl_b32 s60, s3, 13
    s_add_u32 s44, s44, s60
    ''')
    e(f's_add_u32 s44, s44, {(32768-4096)*256}')
    e('s_add_u32 s45, s44, 4096')
    issue_tile(SETS[0])
    e('''
    s_add_u32 s44, s44, 0x8000
    s_add_u32 s45, s45, 0x8000
    s_mov_b32 s47, 0x05040100
    s_mov_b32 s48, 0x07060302
    ''')
    c = (128 ** -0.5) * 1.4426950408889634
    e(f's_mov_b32 s49, {f2u(c):#x}')
    e('''
    s_lshl_b32 s56, s40, 4
    s_add_u32 s56, s56, s31
    s_and_b32 s57, s56, 7
    s_lshr_b32 s56, s56, 3
    s_lshl_b32 s58, s41, 2
    s_add_u32 s58, s58, s56
    ''')
    if o['contig']:
        e(f's_mul_i32 s67, s31, {o["tloc"]*8192}')
    else:
        e('s_lshl_b32 s67, s31, 19')
    if o['rot']: e(f's_mul_i32 s46, s2, {o["rot"]}')
    e('''
    v_lshrrev_b32 v6, 2, v4
    v_lshl_add_u32 v6, v5, 3, v6
    v_lshlrev_b32 v6, 6, v6
    v_and_b32 v7, 3, v4
    v_lshl_add_u32 v6, v7, 3, v6
    v_add_u32 v6, s62, v6
    v_lshlrev_b32 v7, 7, v4
    v_lshl_add_u32 v7, v5, 4, v7
    s_lshl_b32 s59, s3, 8
    ''')
    e(f's_add_u32 s59, s59, {L_SM}')
    e('v_add_u32 v7, s59, v7')
    if o['touch'] == 2:
        touch_block('L_nt2')
        e('s_cmp_lg_u32 s3, 3')
        e('s_cbranch_scc1 L_w16')
        e('s_waitcnt vmcnt(21)')
        e('s_branch L_w16d')
        e.lab('L_w16')
        e('s_waitcnt vmcnt(16)')
        e.lab('L_w16d')
    else:
        e('s_waitcnt vmcnt(16)')
    stamp(1)
    FR = 176
    for kk in range(4):
        for ct in range(2):
            r = FR + (kk*2+ct)*4
            for h in range(2):
                e(f'ds_read_b64_tr_b16 v[{r+2*h}:{r+2*h+1}], v6 offset:{L_WQ + kk*2048 + h*256 + ct*32}')
    e('v_readfirstlane_b32 s43, v31')
    e('s_waitcnt lgkmcnt(0)')
    for kk in range(4):
        for ct in range(2):
            e(f'v_mfma_f32_16x16x32_bf16 {vr(8+4*ct)}, {vr(FR+(kk*2+ct)*4)}, {vr(144+4*kk)}, ' + ('0' if kk == 0 else vr(8+4*ct)))
    e(f's_add_u32 s42, s43, {TAGC:#x}')
    e('''
    s_nop 5
    s_mov_b32 exec_lo, 0x00030003
    s_mov_b32 exec_hi, 0x00030003
    ''')
    e(f'ds_write_b128 v7, v[8:11] offset:{R_QP}')
    e(f'ds_write_b128 v7, v[12:15] offset:{R_QP+64}')
    e('s_mov_b64 exec, 1')
    e('ds_add_u32 v29, v30 offset:4')
    e('s_mov_b64 exec, -1')
    e('s_cmp_eq_u32 s3, 0')
    e('s_cbranch_scc1 L_w0')
    e('s_cmp_lg_u32 s3, 1')
    e('s_cbranch_scc1 L_noclr')
    e('''
    v_mov_b32 v8, 0
    v_mov_b32 v9, 0
    v_mov_b32 v10, 0
    v_mov_b32 v11, 0
    s_lshl_b32 s61, s30, 6
    s_add_u32 s61, s61, s31
    s_lshl_b32 s62, s61, 9
    ''')
    e(f's_add_u32 s62, s62, {WS_PART}')
    e('''
    v_lshrrev_b32 v6, 5, v1
    v_lshlrev_b32 v6, 13, v6
    v_and_b32 v7, 31, v1
    v_lshl_add_u32 v6, v7, 4, v6
    v_add_u32 v6, s62, v6
    v_add_u32 v7, 0x4000, v6
    v_add_u32 v12, 0x80000, v6
    v_add_u32 v13, 0x84000, v6
    s_lshl_b32 s62, s61, 7
    ''')
    e(f's_add_u32 s62, s62, {WS_STAT}')
    e('''
    v_lshrrev_b32 v14, 5, v1
    v_lshlrev_b32 v14, 17, v14
    v_bfe_u32 v15, v1, 3, 2
    v_lshl_add_u32 v14, v15, 11, v14
    v_and_b32 v15, 7, v1
    v_lshl_add_u32 v14, v15, 4, v14
    v_add_u32 v14, s62, v14
    s_lshl_b32 s61, s57, 7
    s_add_u32 s61, s61, s58
    s_lshl_b32 s61, s61, 7
    ''')
    e(f's_add_u32 s61, s61, {WS_OUTP}')
    e('''
    v_lshrrev_b32 v15, 5, v1
    v_lshlrev_b32 v15, 17, v15
    v_bfe_u32 v16, v1, 3, 2
    v_lshl_add_u32 v15, v16, 12, v15
    v_and_b32 v16, 7, v1
    v_lshl_add_u32 v15, v16, 4, v15
    v_add_u32 v15, s61, v15
    ''')
    e.lab('L_noclr')
    if o['t1gate']:
        lds_spin(16, 1, 'L_pub')
    e('s_cmp_lg_u32 s3, 1')
    e('s_cbranch_scc1 L_noclr2')
    e('''
    global_store_dwordx4 v6, v[8:11], s[28:29] sc1
    global_store_dwordx4 v7, v[8:11], s[28:29] sc1
    global_store_dwordx4 v12, v[8:11], s[28:29] sc1
    global_store_dwordx4 v13, v[8:11], s[28:29] sc1
    global_store_dwordx4 v15, v[8:11], s[28:29] sc1
    global_store_dwordx4 v14, v[8:11], s[28:29] sc1
    ''')
    if o['tloc'] < 64:
        e('s_cmp_lg_u32 s31, 0')
        e('s_cbranch_scc1 L_noclr2')
        e('s_lshl_b32 s59, s30, 8')
        e(f's_add_u32 s59, s59, {WS_POOL}')
        e('v_mov_b32 v16, s59')
        e('s_mov_b64 exec, 1')
        e('global_store_dword v16, v8, s[28:29] sc1')
        e('s_mov_b64 exec, -1')
    e.lab('L_noclr2')
    issue_tile(SETS[1])
    e('s_branch L_wo')
    e.lab('L_w0')
    e('''
    s_lshl_b32 s59, s40, 6
    s_lshl_b32 s60, s41, 2
    s_add_u32 s59, s59, s60
    s_lshr_b32 s60, s55, 2
    s_add_u32 s59, s59, s60
    s_lshl_b32 s59, s59, 9
    s_and_b32 s60, s55, 3
    s_lshl_b32 s60, s60, 7
    s_add_u32 s59, s59, s60
    ''')
    e(f's_add_u32 s59, s59, {WS_QG}')
    e('''
    v_bfe_u32 v6, v1, 4, 1
    v_lshlrev_b32 v8, 14, v6
    v_lshl_add_u32 v8, v4, 3, v8
    v_add_u32 v8, s59, v8
    v_lshlrev_b32 v7, 7, v6
    v_lshl_add_u32 v7, v4, 3, v7
    ''')
    e(f'v_add_u32 v7, {L_SM}, v7')
    e('''
    s_lshl_b32 s59, s40, 5
    s_lshl_b32 s60, s41, 2
    s_add_u32 s59, s59, s60
    s_lshl_b32 s59, s59, 9
    ''')
    e(f's_add_u32 s59, s59, {WS_QG}')
    e('v_add_u32 v12, s59, v3')
    e(f'v_add_u32 v13, {64*512}, v12')
    lds_spin(4, 4, 'L_lq', sleep=0)
    for w in range(4):
        e(f'ds_read_b64 v[{144+2*w}:{145+2*w}], v7 offset:{R_QP + w*256}')
    e('s_waitcnt lgkmcnt(0)')
    for k in range(2):
        e(f'v_add_f32 v{144+k}, v{144+k}, v{146+k}')
        e(f'v_add_f32 v{148+k}, v{148+k}, v{150+k}')
    for k in range(2):
        e(f'v_add_f32 v{144+k}, v{144+k}, v{148+k}')
    e('''
    v_cvt_pk_bf16_f32 v10, v144, v145
    v_mov_b32 v11, s42
    s_mov_b32 exec_hi, 0
    global_store_dwordx2 v8, v[10:11], s[28:29] sc1
    s_mov_b32 exec_hi, -1
    ds_write_b32 v29, v30 offset:16
    ''')
    stamp(2)
    issue_tile(SETS[1])
    if o['noq']:
        e('s_branch L_qok')
    e(f's_waitcnt vmcnt({o["pollwait"]})')
    e(f's_mov_b32 s66, {SPIN}')
    e.lab('L_qpoll')
    e('''
    global_load_dwordx4 v[144:147], v12, s[28:29] sc1
    global_load_dwordx4 v[148:151], v12, s[28:29] offset:1024 sc1
    global_load_dwordx4 v[152:155], v13, s[28:29] sc1
    global_load_dwordx4 v[156:159], v13, s[28:29] offset:1024 sc1
    s_waitcnt vmcnt(0)
    ''')
    e('v_cmp_eq_u32 vcc, s42, v145')
    for r in (147, 149, 151, 153, 155, 157, 159):
        e(f'v_cmp_eq_u32 s[64:65], s42, v{r}')
        e('s_and_b64 vcc, vcc, s[64:65]')
    e('''
    s_cmp_eq_u64 vcc, -1
    s_cbranch_scc1 L_qok
    s_sub_u32 s66, s66, 1
    s_cbranch_scc1 L_qok
    s_branch L_qpoll
    ''')
    e.lab('L_qok')
    stamp(3)
    e('v_lshlrev_b32 v6, 3, v1')
    for u in range(4):
        r = 144 + 4*u
        off = L_SM + R_Q + (u >> 1)*1024 + (u & 1)*512
        e(f'v_add_u32 v7, {off}, v6')
        e(f'ds_write2_b32 v7, v{r}, v{r+2} offset0:0 offset1:1')
    e('v_mov_b32 v9, s42')
    e('ds_write_b32 v29, v9 offset:12')
    e('ds_write_b32 v29, v30 offset:8')
    e.lab('L_wo')
    e('''
    v_lshrrev_b32 v10, 3, v1
    v_lshlrev_b32 v10, 10, v10
    v_and_b32 v11, 7, v1
    v_lshl_add_u32 v10, v11, 4, v10
    s_lshl_b32 s59, s58, 17
    s_lshl_b32 s60, s3, 15
    s_add_u32 s59, s59, s60
    s_lshl_b32 s60, s57, 7
    s_add_u32 s59, s59, s60
    s_lshl_b32 s60, s3, 12
    ''')
    for p in range(2):
        wo = 12 if p == 0 else 22
        e(f's_add_u32 s52, s{wo}, s59')
        e(f's_addc_u32 s53, s{wo+1}, 0')
        for i in range(4):
            e(f's_add_u32 m0, s60, {L_WO + p*16384 + i*1024}')
            if i > 0:
                e('s_add_u32 s52, s52, 0x2000')
                e('s_addc_u32 s53, s53, 0')
            else:
                e('s_nop 0')
            e(f'global_load_lds_dwordx4 v10, s[52:53] {o["polW"]}')
    set_srd(6, 8)
    if not o['noq']:
        lds_spin(8, 1, 'L_qflag')
    e('''
    v_and_b32 v6, 3, v4
    v_lshlrev_b32 v6, 8, v6
    v_lshl_add_u32 v31, v5, 4, v6
    ''')
    e(f'v_add_u32 v31, {L_SM}, v31')
    for j in range(4):
        e(f'ds_read_b128 {vr(QR+4*j)}, v31 offset:{R_Q + 1024 + 64*j}')
    for r in range(32, 64): e(f'v_mov_b32 v{r}, 0')
    e(f'v_mov_b32 v20, {f2u(-1e30):#x}')
    e('''
    v_mov_b32 v21, 0
    s_mov_b32 s54, 1
    s_mov_b32 s69, 0
    s_mov_b32 s46, 0
    v_mov_b32 v7, 0
    s_lshl_b32 s59, s30, 8
    s_add_u32 s50, s28, s59
    s_addc_u32 s51, s29, 0
    ''')
    e(f's_add_u32 s50, s50, {WS_POOL}')
    e('s_addc_u32 s51, s51, 0')
    e('s_waitcnt lgkmcnt(0)')
    stamp(4)
    def body(S, once=False):
        KA, KB, VA, VB, tk = S['KA'], S['KB'], S['VA'], S['VB'], S['tk']
        W = o['wcnt']
        def wait():
            if not once: e(f's_waitcnt vmcnt({W})')
        def iss(ch):
            if not once: issue(ch, S)
        nc = o['nocomp']
        TL = o['tloc']
        pool = TL < 64
        if not once:
            if pool:
                e('s_cmp_lg_u32 s46, 0')
                e(f's_cbranch_scc1 L_pool{tk}')
            e("""
            s_mov_b64 exec, 1
            ds_add_rtn_u32 v26, v29, v30
            s_mov_b64 exec, -1
            """)
        wait()
        for j in range(4):
            e(f'v_mfma_f32_16x16x32_bf16 v[8:11], {vr(KA+4*j)}, {vr(QR+4*j)}, ' + ('0' if j == 0 else 'v[8:11]'))
        if not once:
            e('s_waitcnt lgkmcnt(0)')
            e(f'v_readfirstlane_b32 s{tk}, v26')
            e(f's_cmp_eq_u32 s{tk}, {o["chk"]}')
            e(f's_cbranch_scc1 L_chk{tk}')
            e.lab(f'L_chkret{tk}')
            if pool:
                e(f's_cmp_ge_u32 s{tk}, {TL-4}')
                e(f's_cbranch_scc1 L_sw{tk}')
                e.lab(f'L_swret{tk}')
            tile_off(tk)
            e(f's_cmp_lt_u32 s{tk}, 64')
            e.lab(f'L_join{tk}')
            e('s_cselect_b32 s34, 0x800000, 0')
            e('s_cselect_b32 s38, 0x800000, 0')
        iss('Ka')
        wait()
        for j in range(4):
            e(f'v_mfma_f32_16x16x32_bf16 v[12:15], {vr(KB+4*j)}, {vr(QR+4*j)}, ' + ('0' if j == 0 else 'v[12:15]'))
        iss('Kb')
        if once: e('s_nop 3')
        if nc < 1:
          e("""
        v_max3_f32 v22, v8, v9, v10
        v_max_f32 v22, v22, v11
        s_nop 1
        v_max3_f32 v22, v22, v12, v13
        v_max3_f32 v22, v22, v14, v15
        v_mov_b32 v23, v22
        s_nop 1
        v_permlane32_swap_b32 v23, v22
        v_max_f32 v22, v22, v23
        v_mov_b32 v23, v22
        s_nop 1
        v_permlane16_swap_b32 v23, v22
        v_max_f32 v22, v22, v23
        v_mul_f32 v22, s49, v22
        v_max_f32 v23, v20, v22
        v_sub_f32 v24, v20, v23
        v_exp_f32 v28, v24
        v_mov_b32 v20, v23
          """)
          for i in range(8): e(f'v_fma_f32 v{8+i}, v{8+i}, s49, -v23')
          for i in range(8): e(f'v_exp_f32 v{8+i}, v{8+i}')
          e('v_mul_f32 v21, v21, v28')
          for j in range(0, 16):
            e(f'v_pk_mul_f32 v[{32+2*j}:{33+2*j}], v[{32+2*j}:{33+2*j}], v[28:29] op_sel_hi:[1,0]')
          e("""
        v_add_f32 v24, v8, v9
        v_add_f32 v25, v10, v11
        v_add_f32 v26, v12, v13
        v_add_f32 v27, v14, v15
        v_cvt_pk_bf16_f32 v16, v8, v9
        v_cvt_pk_bf16_f32 v17, v10, v11
        v_cvt_pk_bf16_f32 v18, v12, v13
        v_cvt_pk_bf16_f32 v19, v14, v15
        v_add_f32 v24, v24, v25
        v_add_f32 v26, v26, v27
        v_add_f32 v21, v21, v24
        v_add_f32 v21, v21, v26
          """)
        wait()
        if nc < 1:
          for j in range(8):
            w = j >> 1; sel = 's47' if j % 2 == 0 else 's48'
            e(f'v_perm_b32 v{VT+4*j+0}, v{VA+4*1+w}, v{VA+4*0+w}, {sel}')
            e(f'v_perm_b32 v{VT+4*j+1}, v{VA+4*3+w}, v{VA+4*2+w}, {sel}')
        iss('Va')
        wait()
        if nc < 1:
          for j in range(8):
            w = j >> 1; sel = 's47' if j % 2 == 0 else 's48'
            e(f'v_perm_b32 v{VT+4*j+2}, v{VB+4*1+w}, v{VB+4*0+w}, {sel}')
            e(f'v_perm_b32 v{VT+4*j+3}, v{VB+4*3+w}, v{VB+4*2+w}, {sel}')
        iss('Vb')
        if once: e('s_nop 1')
        if nc < 2:
          for j in range(8):
            e(f'v_mfma_f32_16x16x32_bf16 {vr(32+4*j)}, {vr(VT+4*j)}, v[16:19], {vr(32+4*j)}')
    e.lab('L_t0')
    body(SETS[0])
    e("""
    s_cmp_eq_u32 s54, 1
    s_cbranch_scc1 L_t1
    s_cmp_lt_u32 s68, 64
    s_cbranch_scc1 L_t0
    s_branch L_flush
    """)
    e.lab('L_t1')
    body(SETS[1], once=True)
    e.lab('L_flush')
    e('''
    v_mov_b32 v23, v21
    s_nop 1
    v_permlane32_swap_b32 v23, v21
    v_add_f32 v21, v21, v23
    v_mov_b32 v23, v21
    s_nop 1
    v_permlane16_swap_b32 v23, v21
    v_add_f32 v21, v21, v23
    s_lshl_b32 s59, s54, 2
    s_add_u32 s59, s59, s3
    s_lshl_b32 s59, s59, 11
    v_lshlrev_b32 v6, 9, v4
    v_lshl_add_u32 v6, v5, 4, v6
    v_add_u32 v6, s59, v6
    s_lshl_b32 s59, s54, 7
    s_lshl_b32 s60, s3, 3
    s_add_u32 s59, s59, s60
    ''')
    e(f's_add_u32 s59, s59, {L_SM}')
    e('''
    v_lshlrev_b32 v7, 5, v4
    v_add_u32 v7, s59, v7
    v_mov_b32 v22, v20
    v_mov_b32 v23, v21
    s_mov_b32 exec_lo, 0x000f000f
    s_mov_b32 exec_hi, 0x000f000f
    ''')
    for j in range(8):
        e(f'ds_write_b128 v6, {vr(32+4*j)} offset:{L_RES + 64*j}')
    e('s_mov_b64 exec, 15')
    e(f'ds_write_b64 v7, v[22:23] offset:{R_ST}')
    e('s_mov_b64 exec, -1')
    e('s_cmp_eq_u32 s54, 0')
    e('s_cbranch_scc1 L_tail')
    stamp(5)
    for j in range(4):
        e(f'ds_read_b128 {vr(QR+4*j)}, v31 offset:{R_Q + 64*j}')
    e('s_cmp_lg_u32 s3, 1')
    e('s_cbranch_scc1 L_noflag')
    e('ds_read_b32 v9, v29 offset:12')
    e('s_lshl_b32 s59, s30, 4')
    e('s_add_u32 s59, s59, s31')
    e('s_lshl_b32 s59, s59, 7')
    e(f's_add_u32 s59, s59, {WS_CLR}')
    e('v_mov_b32 v6, s59')
    e('s_waitcnt lgkmcnt(0)')
    e('s_mov_b64 exec, 1')
    e('global_store_dword v6, v9, s[28:29] sc1')
    e('s_mov_b64 exec, -1')
    e.lab('L_noflag')
    e("""
    v_lshrrev_b32 v13, 5, v1
    v_and_b32 v14, 31, v1
    v_lshlrev_b32 v240, 13, v13
    v_lshl_add_u32 v240, v14, 4, v240
    s_lshl_b32 s61, s3, 9
    v_add_u32 v240, s61, v240
    v_lshlrev_b32 v241, 7, v13
    s_lshl_b32 s61, s3, 5
    """)
    e(f's_add_u32 s61, s61, {L_SM}')
    e('v_add_u32 v241, s61, v241')
    e("""
    s_lshl_b32 s61, s30, 2
    s_add_u32 s61, s61, s3
    s_lshl_b32 s61, s61, 4
    s_add_u32 s61, s61, s31
    s_lshl_b32 s62, s61, 9
    """)
    e(f's_add_u32 s62, s62, {WS_PART}')
    e("""
    v_lshlrev_b32 v242, 19, v13
    v_lshl_add_u32 v242, v14, 4, v242
    v_add_u32 v242, s62, v242
    s_lshl_b32 s62, s61, 7
    """)
    e(f's_add_u32 s62, s62, {WS_STAT}')
    e("""
    v_lshlrev_b32 v243, 17, v13
    v_and_b32 v15, 7, v1
    v_lshl_add_u32 v243, v15, 4, v243
    v_add_u32 v243, s62, v243
    """)
    e("""
    s_lshr_b32 s59, s3, 1
    s_and_b32 s60, s3, 1
    s_lshl_b32 s61, s59, 4
    s_lshl_b32 s62, s60, 3
    s_add_u32 s61, s61, s62
    s_add_u32 s61, s61, s41
    s_lshl_b32 s61, s61, 2
    s_add_u32 s61, s61, s56
    s_lshl_b32 s62, s61, 11
    """)
    e(f's_add_u32 s62, s62, {WS_STAT}')
    e("""
    v_and_b32 v244, 7, v1
    v_lshl_add_u32 v244, v244, 1, v13
    v_lshlrev_b32 v244, 7, v244
    v_add_u32 v244, s62, v244
    s_lshl_b32 s62, s61, 13
    """)
    e(f's_add_u32 s62, s62, {WS_PART}')
    e('v_add_u32 v245, s62, v3')
    e('v_add_u32 v246, 4096, v245')
    e("""
    v_and_b32 v15, 3, v14
    v_lshlrev_b32 v247, 5, v15
    v_lshrrev_b32 v15, 2, v14
    v_add_u32 v247, v247, v15
    v_lshlrev_b32 v247, 1, v247
    s_lshl_b32 s61, s3, 8
    """)
    e(f's_add_u32 s61, s61, {L_SM}')
    e('v_add_u32 v247, s61, v247')
    e("""
    v_lshrrev_b32 v248, 2, v4
    v_lshl_add_u32 v248, v5, 3, v248
    v_lshlrev_b32 v248, 7, v248
    v_and_b32 v13, 3, v4
    v_lshl_add_u32 v248, v13, 3, v248
    s_lshl_b32 s62, s3, 5
    v_add_u32 v248, s62, v248
    v_and_b32 v249, 1, v4
    v_lshlrev_b32 v249, 8, v249
    v_lshl_add_u32 v249, v5, 4, v249
    """)
    e(f'v_add_u32 v249, {L_SM}, v249')
    e("""
    s_lshl_b32 s61, s57, 2
    s_add_u32 s61, s61, s3
    s_lshl_b32 s61, s61, 5
    s_add_u32 s61, s61, s58
    s_lshl_b32 s61, s61, 7
    """)
    e(f's_add_u32 s63, s61, {WS_OUTP}')
    e("""
    v_and_b32 v250, 1, v4
    v_lshlrev_b32 v250, 6, v250
    v_lshl_add_u32 v250, v5, 4, v250
    v_add_u32 v250, s63, v250
    v_add_u32 v255, 0x20000, v250
    s_lshl_b32 s59, s2, 12
    """)
    e(f's_add_u32 s59, s59, {WS_OUTP}')
    e("""
    v_add_u32 v251, s59, v3
    v_bfe_u32 v252, v1, 2, 1
    v_lshlrev_b32 v252, 10, v252
    v_and_b32 v13, 3, v1
    v_lshl_add_u32 v252, v13, 2, v252
    s_lshl_b32 s59, s2, 4
    v_add_u32 v252, s59, v252
    v_lshlrev_b32 v252, 1, v252
    """)
    for r in range(32, 64): e(f'v_mov_b32 v{r}, 0')
    e(f'v_mov_b32 v20, {f2u(-1e30):#x}')
    e('''
    v_mov_b32 v21, 0
    s_mov_b32 s54, 0
    s_waitcnt lgkmcnt(0)
    s_cmp_lt_u32 s68, 64
    s_cbranch_scc1 L_t0
    s_branch L_flush
    ''')
    if o['tloc'] < 64:
        TL = o['tloc']; NP = 16*(64-TL)
        for S in SETS[:1]:
            tk = S['tk']
            e.lab(f'L_sw{tk}')
            lds_spin(20, 1, f'L_swsp{tk}', sleep=16)
            e('s_mov_b32 s46, 1')
            e('v_mov_b32 v7, 0')
            e('s_mov_b64 exec, 1')
            e('global_atomic_add v6, v7, v30, s[50:51] sc0 sc1')
            e('s_mov_b64 exec, -1')
            e(f's_branch L_swret{tk}')
            e.lab(f'L_pool{tk}')
            e(f's_waitcnt vmcnt({o["wcnt"]})')
            e('v_readfirstlane_b32 s59, v6')
            for j in range(4):
                e(f'v_mfma_f32_16x16x32_bf16 v[8:11], {vr(S["KA"]+4*j)}, {vr(QR+4*j)}, ' + ('0' if j == 0 else 'v[8:11]'))
            if o['contig']:
                e(f's_add_u32 s44, s59, {16*TL}')
                e('s_lshl_b32 s44, s44, 13')
            else:
                e('s_and_b32 s44, s59, 15')
                e('s_lshl_b32 s44, s44, 19')
                e('s_lshr_b32 s60, s59, 4')
                e(f's_add_u32 s60, s60, {TL}')
                e('s_lshl_b32 s60, s60, 13')
                e('s_add_u32 s44, s44, s60')
            e('s_add_u32 s45, s44, 4096')
            e(f's_cmp_lt_u32 s59, {NP}')
            e(f's_cselect_b32 s{tk}, 0, 64')
            e(f's_cbranch_scc0 L_join{tk}')
            e('s_mov_b64 exec, 1')
            e('global_atomic_add v6, v7, v30, s[50:51] sc0 sc1')
            e('s_mov_b64 exec, -1')
            e(f's_branch L_join{tk}')
    for tk in (68,):
        e.lab(f'L_chk{tk}')
        e('ds_read_b32 v27, v29 offset:12')
        e('''
        v_bfe_u32 v25, v1, 4, 1
        v_lshlrev_b32 v25, 7, v25
        v_add_u32 v25, v25, v4
        s_lshl_b32 s59, s41, 4
        v_add_u32 v25, s59, v25
        v_and_b32 v24, 31, v1
        v_bfe_u32 v16, v24, 1, 1
        v_lshlrev_b32 v16, 7, v16
        v_lshrrev_b32 v17, 2, v24
        v_lshl_add_u32 v16, v17, 4, v16
        v_and_b32 v17, 1, v24
        v_lshl_add_u32 v16, v17, 3, v16
        s_lshr_b32 s59, s2, 2
        s_and_b32 s59, s59, 7
        v_add_u32 v16, s59, v16
        v_cmp_gt_u32 vcc, 32, v1
        s_nop 1
        v_cndmask_b32 v25, v16, v25, vcc
        v_lshlrev_b32 v25, 7, v25
        ''')
        e(f'v_add_u32 v25, {WS_CLR}, v25')
        e(f's_mov_b32 s66, {SPIN}')
        e.lab(f'L_chkl{tk}')
        e('''
        global_load_dword v16, v25, s[28:29] sc1
        s_waitcnt vmcnt(0) lgkmcnt(0)
        v_cmp_eq_u32 vcc, v27, v16
        s_cmp_eq_u64 vcc, -1
        ''')
        e(f's_cbranch_scc1 L_chkok{tk}')
        e('s_sub_u32 s66, s66, 1')
        e(f's_cbranch_scc1 L_chkok{tk}')
        e('s_sleep 16')
        e(f's_branch L_chkl{tk}')
        e.lab(f'L_chkok{tk}')
        e('ds_write_b32 v29, v30 offset:20')
        e(f's_branch L_chkret{tk}')
    e.lab('L_tail')
    stamp(6)
    e('s_waitcnt vmcnt(0) lgkmcnt(0)')
    e('s_barrier')
    stamp(7)
    for k in range(2):
        e(f'ds_read_b128 {vr(64+4*k)}, v241 offset:{R_ST + 16*k}')
    for w in range(4):
        e(f'ds_read_b128 {vr(72+4*w)}, v240 offset:{L_RES + w*2048}')
    e('s_waitcnt lgkmcnt(%d)' % (0 if stamps else 4))
    e("""
    v_max3_f32 v88, v64, v66, v68
    v_max_f32 v88, v88, v70
    v_sub_f32 v64, v64, v88
    v_sub_f32 v66, v66, v88
    v_sub_f32 v68, v68, v88
    v_sub_f32 v70, v70, v88
    v_exp_f32 v64, v64
    v_exp_f32 v66, v66
    v_exp_f32 v68, v68
    v_exp_f32 v70, v70
    v_or_b32 v92, 1, v88
    v_mul_f32 v90, v64, v65
    v_fmac_f32 v90, v66, v67
    v_fmac_f32 v90, v68, v69
    v_fmac_f32 v90, v70, v71
    v_or_b32 v94, 1, v88
    s_waitcnt lgkmcnt(0)
    """)
    for k in range(4): e(f'v_mul_f32 v{96+k}, v64, v{72+k}')
    for w in range(1, 4):
        for k in range(4): e(f'v_fmac_f32 v{96+k}, v{64+2*w}, v{72+4*w+k}')
    e('v_or_b32 v93, 1, v90')
    e('v_or_b32 v95, 1, v90')
    for k in range(4): e(f'v_or_b32 v{96+k}, 1, v{96+k}')
    e('global_store_dwordx4 v242, v[96:99], s[28:29] sc1')
    e("""
    s_mov_b32 exec_lo, 0xff
    s_mov_b32 exec_hi, 0xff
    global_store_dwordx4 v243, v[92:95], s[28:29] sc1
    s_mov_b64 exec, -1
    """)
    stamp(8)
    e(f's_mov_b32 s66, {SPIN}')
    e.lab('L_spoll')
    e("""
    global_load_dwordx2 v[10:11], v244, s[28:29] sc1
    s_waitcnt vmcnt(0)
    v_and_b32 v12, v10, v11
    v_and_b32 v12, 1, v12
    v_cmp_eq_u32 vcc, 1, v12
    s_and_b32 s59, vcc_lo, 0xff
    s_and_b32 s60, vcc_hi, 0xff
    s_bcnt1_i32_b32 s59, s59
    s_bcnt1_i32_b32 s60, s60
    s_add_u32 s59, s59, s60
    """)
    e(f's_cmp_ge_u32 s59, {o["p2min"]}')
    e('s_cbranch_scc1 L_sok')
    e('s_sub_u32 s66, s66, 1')
    e('s_cbranch_scc1 L_sok')
    e(f's_sleep {o["psleep"]}')
    e('s_branch L_spoll')
    e.lab('L_sok')
    stamp(9)
    e.lab('L_dpoll')
    D = 64
    e('global_load_dwordx2 v[10:11], v244, s[28:29] sc1')
    for i in range(8):
        va = 'v245' if i < 4 else 'v246'
        e(f'global_load_dwordx4 {vr(D+4*i)}, {va}, s[28:29] offset:{(i%4)*1024} sc1')
    e("""
    s_waitcnt vmcnt(8)
    v_max_f32_dpp v12, v10, v10 row_ror:4 row_mask:0xf bank_mask:0xf
    v_and_b32 v19, v10, v11
    s_nop 0
    v_max_f32_dpp v13, v12, v12 row_ror:2 row_mask:0xf bank_mask:0xf
    s_nop 1
    v_max_f32_dpp v12, v13, v13 row_ror:1 row_mask:0xf bank_mask:0xf
    v_mov_b32 v16, 0
    v_mov_b32 v13, v12
    s_nop 1
    v_permlane32_swap_b32 v13, v12
    v_max_f32 v13, v13, v12
    v_sub_f32 v14, v10, v13
    v_exp_f32 v14, v14
    v_mov_b32 v17, 0
    v_mul_f32 v15, v14, v11
    v_mov_b32 v8, 0
    v_mov_b32 v9, 0
    v_add_f32_dpp v12, v15, v15 row_ror:4 row_mask:0xf bank_mask:0xf
    s_nop 1
    v_add_f32_dpp v15, v12, v12 row_ror:2 row_mask:0xf bank_mask:0xf
    s_nop 1
    v_add_f32_dpp v12, v15, v15 row_ror:1 row_mask:0xf bank_mask:0xf
    s_nop 0
    v_mov_b32 v15, v12
    s_nop 1
    v_permlane32_swap_b32 v15, v12
    v_add_f32 v15, v15, v12
    v_rcp_f32 v15, v15
    s_nop 0
    v_mul_f32 v14, v14, v15
    s_waitcnt vmcnt(0)
    """)
    regs = list(range(D, D+32))
    e(f'v_bitop3_b32 v12, v19, v{regs[0]}, v{regs[1]} bitop3:0x80')
    k = 2
    while k + 1 < 32:
        e(f'v_bitop3_b32 v12, v12, v{regs[k]}, v{regs[k+1]} bitop3:0x80'); k += 2
    e("""
    v_and_b32 v12, 1, v12
    v_cmp_eq_u32 vcc, 1, v12
    s_cmp_eq_u64 vcc, -1
    s_cbranch_scc1 L_dok
    s_sub_u32 s66, s66, 1
    s_cbranch_scc1 L_dok
    """)
    if o['dsleep']: e(f's_sleep {o["dsleep"]}')
    e('s_branch L_dpoll')
    e.lab('L_dok')
    acc = [8, 9, 16, 17]
    for i in range(8):
        for k in range(4):
            e(f'v_fmac_f32_dpp v{acc[k]}, v14, v{D+4*i+k} row_newbcast:{i} row_mask:0xf bank_mask:0xf')
    for k in range(4): e(f'v_mov_b32 v{20+k}, v{acc[k]}')
    e('s_nop 0')
    for k in range(4): e(f'v_permlane32_swap_b32 v{20+k}, v{acc[k]}')
    for k in range(4): e(f'v_add_f32 v{acc[k]}, v{acc[k]}, v{20+k}')
    e('v_cvt_pk_bf16_f32 v18, v8, v9')
    e('v_cvt_pk_bf16_f32 v19, v16, v17')
    e(f'ds_write_b16 v247, v18 offset:{R_O}')
    e(f'ds_write_b16_d16_hi v247, v18 offset:{R_O+16}')
    e(f'ds_write_b16 v247, v19 offset:{R_O+32}')
    e(f'ds_write_b16_d16_hi v247, v19 offset:{R_O+48}')
    for p in range(2):
        for kk in range(4):
            for h in range(2):
                r = 128 + 16*p + 4*kk + 2*h
                e(f'ds_read_b64_tr_b16 v[{r}:{r+1}], v248 offset:{L_WO + p*16384 + kk*4096 + h*512}')
    e('s_waitcnt lgkmcnt(0)')
    e('s_barrier')
    stamp(10)
    for p in range(2):
        for kk in range(4):
            e(f'ds_read_b128 {vr(96+16*p+4*kk)}, v249 offset:{R_O + p*512 + kk*64}')
    e('s_waitcnt lgkmcnt(0)')
    for kk in range(4):
        for p in range(2):
            e(f'v_mfma_f32_16x16x32_bf16 {vr(8+4*p)}, {vr(128+16*p+4*kk)}, {vr(96+16*p+4*kk)}, ' + ('0' if kk == 0 else vr(8+4*p)))
    e("""
    s_mov_b32 exec_lo, 0x00030003
    s_mov_b32 exec_hi, 0x00030003
    s_nop 5
    v_or_b32 v8, 1, v8
    v_or_b32 v9, 1, v9
    v_or_b32 v10, 1, v10
    v_or_b32 v11, 1, v11
    v_or_b32 v12, 1, v12
    v_or_b32 v13, 1, v13
    v_or_b32 v14, 1, v14
    v_or_b32 v15, 1, v15
    global_store_dwordx4 v250, v[8:11], s[28:29] sc1
    global_store_dwordx4 v255, v[12:15], s[28:29] sc1
    s_mov_b64 exec, -1
    """)
    stamp(11)
    if not o['t2all']:
        e('s_cmp_lg_u32 s3, 0')
        e('s_cbranch_scc1 ' + ('L_fin' if stamps else 'L_end'))
    else:
        e(f's_cmp_ge_u32 s3, {o["t2all"]}')
        e('s_cbranch_scc1 ' + ('L_fin' if stamps else 'L_end'))
    e('s_cmp_ge_u32 s2, 64')
    e('s_cbranch_scc1 L_fin')
    if o['t2all']:
        e('s_cmp_eq_u32 s3, 0')
        e('s_cbranch_scc1 L_t2go')
        e('s_sleep 8')
        e.lab('L_t2go')
    e(f's_mov_b32 s66, {SPIN}')
    e.lab('L_opoll')
    for i in range(4):
        e(f'global_load_dwordx4 {vr(64+4*i)}, v251, s[28:29] offset:{i*1024} sc1')
    e('s_waitcnt vmcnt(0)')
    e('v_bitop3_b32 v12, v64, v65, v66 bitop3:0x80')
    k = 67
    while k + 1 < 80:
        e(f'v_bitop3_b32 v12, v12, v{k}, v{k+1} bitop3:0x80'); k += 2
    e('v_and_b32 v12, v12, v79')
    e("""
    v_and_b32 v12, 1, v12
    v_cmp_eq_u32 vcc, 1, v12
    s_cmp_eq_u64 vcc, -1
    s_cbranch_scc1 L_ook
    s_sub_u32 s66, s66, 1
    s_cbranch_scc1 L_ook
    """)
    if o['osleep']: e(f's_sleep {o["osleep"]}')
    e('s_branch L_opoll')
    e.lab('L_ook')
    for k in range(4):
        e(f'v_add_f32 v{64+k}, v{64+k}, v{68+k}')
        e(f'v_add_f32 v{72+k}, v{72+k}, v{76+k}')
    for k in range(4): e(f'v_add_f32 v{64+k}, v{64+k}, v{72+k}')
    e('s_nop 0')
    for k in range(4): e(f'v_add_f32_dpp v{68+k}, v{64+k}, v{64+k} row_ror:8 row_mask:0xf bank_mask:0xf')
    for k in range(4): e(f'v_mov_b32 v{72+k}, v{68+k}')
    e('s_nop 0')
    for k in range(4): e(f'v_permlane16_swap_b32 v{72+k}, v{68+k}')
    for k in range(4): e(f'v_add_f32 v{68+k}, v{68+k}, v{72+k}')
    for k in range(4): e(f'v_mov_b32 v{72+k}, v{68+k}')
    e('s_nop 0')
    for k in range(4): e(f'v_permlane32_swap_b32 v{72+k}, v{68+k}')
    for k in range(4): e(f'v_add_f32 v{68+k}, v{68+k}, v{72+k}')
    e("""
    v_cvt_pk_bf16_f32 v64, v68, v69
    v_cvt_pk_bf16_f32 v65, v70, v71
    s_mov_b64 exec, 0xff
    global_store_dwordx2 v252, v[64:65], s[24:25] OUTPOL
    s_mov_b64 exec, -1
    """)
    e('''
    s_lshl_b32 s59, s3, 8
    s_add_u32 s59, s59, s2
    s_cmp_lg_u32 s59, 0
    s_cbranch_scc1 L_fin
    s_add_u32 s59, s43, 1
    v_mov_b32 v7, s59
    v_mov_b32 v8, 0
    s_mov_b64 exec, 1
    ''')
    e(f'global_store_dword v8, v7, s[28:29] offset:{WS_EPOCH} sc1')
    e('s_mov_b64 exec, -1')
    e.lab('L_fin')
    if o['holdus']:
        e('s_cmp_lg_u32 s2, 0')
        e('s_cbranch_scc1 L_end')
        e('s_waitcnt vmcnt(0) lgkmcnt(0)')
        e('s_memrealtime s[72:73]')
        e('s_waitcnt lgkmcnt(0)')
        e('s_sub_u32 s74, s72, s70')
        e(f's_mul_i32 s74, s74, {o["holdmul"]}')
        e(f's_add_u32 s74, s74, {o["holdus"]*100}')
        e.lab('L_hold')
        e('s_memrealtime s[72:73]')
        e('s_waitcnt lgkmcnt(0)')
        e('s_sub_u32 s75, s72, s70')
        e('s_cmp_lt_u32 s75, s74')
        e('s_cbranch_scc1 L_hold')
    if stamps:
        e('s_memrealtime s[94:95]')
        e('s_waitcnt lgkmcnt(0)')
        e('s_lshl_b32 s59, s2, 3')
        e('s_add_u32 s59, s59, s3')
        e(f's_mul_i32 s59, s59, {16*8}')
        e(f's_add_u32 s59, s59, {WS_STAMP}')
        e('v_mov_b32 v6, s59')
        e('s_mov_b64 exec, 1')
        for i in range(16):
            e(f'v_mov_b32 v{10+2*i}, s{70+2*i}')
            e(f'v_mov_b32 v{11+2*i}, s{71+2*i}')
        for i in range(16):
            e(f'global_store_dwordx2 v6, v[{10+2*i}:{11+2*i}], s[28:29] offset:{8*i}')
    e.lab('L_end')
    e('s_endpgm')
    e.raw('.section .rodata,"a"')
    e.raw('.p2align 6')
    e.raw(f'.amdhsa_kernel {KN}_kernel')
    e.raw('  .amdhsa_next_free_vgpr 256')
    e.raw('  .amdhsa_next_free_sgpr 102')
    e.raw('  .amdhsa_accum_offset 256')
    e.raw('  .amdhsa_group_segment_fixed_size 0')
    e.raw('  .amdhsa_kernarg_size 104')
    e.raw('  .amdhsa_user_sgpr_count 2')
    e.raw('  .amdhsa_user_sgpr_kernarg_segment_ptr 1')
    e.raw('  .amdhsa_system_sgpr_workgroup_id_x 1')
    e.raw('.end_amdhsa_kernel')
    open(path, 'w').write(('\n'.join(e.L) + '\n').replace('OUTPOL', o['outpol']))

if __name__ == '__main__':
    gen('k13.s')
    gen('k13_d8.s', opts=dict(dsleep=8))
    gen('k13_d16.s', opts=dict(dsleep=16))
    gen('k13_d8o4.s', opts=dict(dsleep=8, osleep=4))
    gen('k13_o8.s', opts=dict(osleep=8))
    gen('k13_d32.s', opts=dict(dsleep=32))
```

```python
import sys, struct

KN = 'concat_heads__gqa_block_cached__sliding_block_cached__decode'

def f2u(x):
    return struct.unpack('<I', struct.pack('<f', x))[0]

WS_EPOCH = 0x0
WS_QG    = 0x1000
WS_PART  = 0x20000
WS_STAT  = 0x1A0000
WS_OUTP  = 0x130000
WS_CLR   = 0x170000
WS_POOL  = 0x180000
WS_STAMP = 512 << 20
L_WQ  = 0x0
L_RES = 0x0
L_WO  = 0x8000
L_SM  = 0x10000
R_ST  = 0x000
R_QP  = 0x200
R_Q   = 0xA00
R_O   = 0x1200
R_CNT = 0x1600
LDS_BYTES = 86016

TAGC = 0x9E3779B9
SPIN = 1 << 19


HEADER = """; Fused GQA decode attention (A: 32768 keys, B: last 4096 keys) + head concat + output projection.
;     to each other through d_ws as 8-byte {2 x bf16, tag} granules; tag = (epoch word found in d_ws) + constant,
;     as {m, tag} {l, tag} granules; consumers re-read until every word they use carries the tag of this launch.
"""

class A:
    def __init__(self):
        self.L = []
    def __call__(self, s):
        for line in s.strip('\n').split('\n'):
            line = line.strip()
            if line:
                self.L.append('  ' + line)
    def lab(self, s):
        self.L.append(s + ':')
    def raw(self, s):
        self.L.append(s)
    def c(self, s):
        for line in s.strip('\n').split('\n'):
            self.L.append('  ; ' + line.strip())

def vr(a, n=4):
    return f'v[{a}:{a+n-1}]'

SETS = [dict(KA=80, KB=96, VA=112, VB=128, tk=68), dict(KA=176, KB=192, VA=208, VB=224, tk=69)]
VT = 144
QR = 64

def gen(path, stamps=False, opts=None):
    o = dict(chk=24, pollwait=16, t1gate=True, rot=0, touch=0, polB='nt', polW='nt', polA='nt', map='g16', noq=False, nowo=False, nocomp=0, p2min=15, outpol='', holdus=0, holdmul=0, tloc=56, wcnt=12, aonly=False, psleep=2)
    o.update(opts or {})
    e = A()
    def stamp(i):
        if stamps:
            e(f's_memrealtime s[{70+2*i}:{71+2*i}]')
    def lds_spin(off, val, label, sleep=1):
        e(f's_mov_b32 s66, {SPIN}')
        e.lab(label)
        e(f'ds_read_b32 v27, v29 offset:{off}')
        e('s_waitcnt lgkmcnt(0)')
        e('v_readfirstlane_b32 s59, v27')
        e(f's_cmp_eq_u32 s59, {val}')
        e(f's_cbranch_scc1 {label}_ok')
        if sleep: e(f's_sleep {sleep}')
        e('s_sub_u32 s66, s66, 1')
        e(f's_cbranch_scc0 {label}')
        e.lab(label + '_ok')

    def touch_block(lab):
        e('s_cmp_lg_u32 s3, 3')
        e(f's_cbranch_scc1 {lab}')
        e('s_lshl_b32 s59, s30, 23')
        e('s_lshl_b32 s60, s31, 19')
        e('s_add_u32 s59, s59, s60')
        e('v_mov_b32 v26, s59')
        e('s_lshl_b32 s59, s40, 4')
        e('s_add_u32 s59, s59, s31')
        e('s_lshr_b32 s59, s59, 3')
        e('s_lshl_b32 s60, s41, 2')
        e('s_add_u32 s59, s59, s60')
        e('s_lshl_b32 s59, s59, 17')
        e('v_mov_b32 v27, s59')
        e('s_mov_b64 exec, 1')
        e('global_load_dword v244, v26, s[6:7] nt')
        e('global_load_dword v245, v26, s[8:9] nt')
        e('global_load_dword v246, v27, s[12:13] nt')
        e('global_load_dword v247, v27, s[22:23] nt')
        e('global_load_dword v248, v22, s[24:25]')
        e('s_mov_b64 exec, -1')
        e.lab(lab)
    for line in HEADER.strip('\n').split('\n'): e.raw(line)
    e.raw(f'; @launch grid=(256,1,1) block=(256,1,1) lds={LDS_BYTES}')
    e.raw('.amdgcn_target "amdgcn-amd-amdhsa--gfx950"')
    e.raw('.text')
    e.raw(f'.globl {KN}_kernel')
    e.raw('.p2align 8')
    e.raw(f'.type {KN}_kernel,@function')
    e.raw(f'{KN}_kernel:')
    e.c('workgroups past the 256 that carry work exit at once')
    e('s_cmp_ge_u32 s2, 256')
    e('s_cbranch_scc1 L_end')
    if stamps:
        for i in range(70, 102): e(f's_mov_b32 s{i}, 0')
    stamp(0)
    if o['holdus']:
        e('s_memrealtime s[70:71]')
    e('''
    s_load_dwordx16 s[4:19], s[0:1], 0
    s_load_dwordx8 s[20:27], s[0:1], 64
    s_load_dwordx2 s[28:29], s[0:1], 96
    v_lshrrev_b32 v4, 6, v0
    v_and_b32 v1, 63, v0
    v_readfirstlane_b32 s3, v4
    ''')
    if o['map'] == 'g16':
        e('s_lshr_b32 s30, s2, 4')
        e('s_and_b32 s31, s2, 15')
    else:
        e('s_lshr_b32 s31, s2, 3')
        e('s_lshr_b32 s30, s31, 4')
        e('s_lshl_b32 s30, s30, 3')
        e('s_and_b32 s59, s2, 7')
        e('s_add_u32 s30, s30, s59')
        e('s_and_b32 s31, s31, 15')
    e('''
    s_lshr_b32 s40, s30, 3
    s_and_b32 s41, s30, 7
    v_and_b32 v4, 15, v1
    v_lshrrev_b32 v5, 4, v1
    v_lshlrev_b32 v3, 4, v1
    v_mov_b32 v22, 0
    v_mov_b32 v23, 0
    ''')
    e(f'v_mov_b32 v29, {L_SM + R_CNT}')
    e('''
    s_cmp_lg_u32 s3, 0
    s_cbranch_scc1 L_noinit
    v_mov_b32 v8, 0
    v_mov_b32 v9, 0
    v_mov_b32 v10, 0
    v_mov_b32 v11, 0
    ds_write_b128 v29, v[8:11]
    ds_write_b64 v29, v[8:9] offset:16
    ''')
    e.c('lane constants: v1 lane, v2 K offset (row 4*(m&3)+(m>>2), 16 B slab), v3 lane*16, v4 lane&15, v5 lane>>4')
    e.lab('L_noinit')
    e('''
    v_and_b32 v6, 3, v4
    v_lshrrev_b32 v7, 2, v4
    v_lshl_add_u32 v6, v6, 2, v7
    v_lshlrev_b32 v6, 8, v6
    v_lshl_add_u32 v2, v5, 4, v6
    v_mov_b32 v30, 1
    v_lshrrev_b32 v24, 2, v1
    v_lshlrev_b32 v24, 13, v24
    v_and_b32 v11, 3, v1
    v_lshl_add_u32 v24, v11, 4, v24
    v_and_b32 v25, 1, v1
    v_lshlrev_b32 v25, 10, v25
    v_lshl_add_u32 v25, v5, 4, v25
    s_lshl_b32 s59, s3, 8
    v_add_u32 v25, s59, v25
    ''')
    if o['map'] == 'g16':
        e('s_and_b32 s55, s31, 7')
        e('s_lshl_b32 s55, s55, 1')
        e('s_lshr_b32 s59, s31, 3')
        e('s_or_b32 s55, s55, s59')
    else:
        e('s_mov_b32 s55, s31')
    e('''
    s_lshl_b32 s61, s3, 20
    s_lshl_b32 s60, s41, 10
    s_add_u32 s61, s61, s60
    s_lshl_b32 s60, s55, 6
    s_add_u32 s61, s61, s60
    s_lshl_b32 s62, s3, 13
    ''')
    e('s_waitcnt lgkmcnt(0)')
    e('s_barrier')
    stamp(13)
    e('''
    s_cmp_eq_u32 s40, 0
    s_cselect_b32 s52, s10, s20
    s_cselect_b32 s53, s11, s21
    s_cselect_b32 s50, s4, s14
    s_cselect_b32 s51, s5, s15
    s_add_u32 s52, s52, s61
    s_addc_u32 s53, s53, 0
    ''')
    e.c('the pool counter of the group is zeroed by wave 0 of split 0; its q granules are published after this store completes')
    e('s_lshl_b32 s59, s31, 2')
    e('s_or_b32 s59, s59, s3')
    e('s_cmp_lg_u32 s59, 0')
    e('s_cbranch_scc1 L_nopool')
    e('s_lshl_b32 s59, s30, 8')
    e(f's_add_u32 s59, s59, {WS_POOL}')
    e('v_mov_b32 v26, s59')
    e('s_mov_b64 exec, 1')
    e('global_store_dword v26, v22, s[28:29] sc1')
    e('s_mov_b64 exec, -1')
    e.lab('L_nopool')
    e.c('wq slice (128 rows x 64 B per wave) -> LDS, x fragments, epoch word')
    for i in range(8):
        e(f's_add_u32 m0, s62, {L_WQ + i*1024}')
        if i > 0:
            e('s_add_u32 s52, s52, 0x20000')
            e('s_addc_u32 s53, s53, 0')
        else:
            e('s_nop 0')
        e(f'global_load_lds_dwordx4 v24, s[52:53] {o["polW"]}')
    for kk in range(4):
        e(f'global_load_dwordx4 {vr(144+4*kk)}, v25, s[50:51] offset:{64*kk}')
    e(f'global_load_dword v31, v22, s[28:29] offset:{WS_EPOCH} sc1')
    if o['touch'] == 1: touch_block('L_nt1')

    def set_srd(kp, vp):
        e('s_lshl_b32 s59, s30, 23')
        e(f's_add_u32 s32, s{kp}, s59')
        e(f's_addc_u32 s33, s{kp+1}, 0')
        e('s_and_b32 s33, s33, 0xffff')
        e(f's_add_u32 s36, s{vp}, s59')
        e(f's_addc_u32 s37, s{vp+1}, 0')
        e('s_and_b32 s37, s37, 0xffff')
        e('''
        s_mov_b32 s34, 0x800000
        s_mov_b32 s35, 0x20000
        s_mov_b32 s38, 0x800000
        s_mov_b32 s39, 0x20000
        ''')
    def issue(chunk, S, pol=None):
        pol = o['polA'] if pol is None else pol
        if chunk == 'Ka':
            for j in range(4): e(f'buffer_load_dwordx4 {vr(S["KA"]+4*j)}, v2, s[32:35], s44 offen offset:{64*j} {pol}')
        elif chunk == 'Kb':
            for j in range(4): e(f'buffer_load_dwordx4 {vr(S["KB"]+4*j)}, v2, s[32:35], s45 offen offset:{64*j} {pol}')
        elif chunk == 'Va':
            for i in range(4): e(f'buffer_load_dwordx4 {vr(S["VA"]+4*i)}, v3, s[36:39], s44 offen offset:{1024*i} {pol}')
        elif chunk == 'Vb':
            for i in range(4): e(f'buffer_load_dwordx4 {vr(S["VB"]+4*i)}, v3, s[36:39], s45 offen offset:{1024*i} {pol}')
    def issue_tile(S):
        for ch in ('Ka', 'Kb', 'Va', 'Vb'): issue(ch, S, o['polB'])
    def tile_off(tkreg):
        if o['rot']:
            e(f's_add_u32 s44, s{tkreg}, s46')
            e('s_and_b32 s44, s44, 63')
            e('s_lshl_b32 s44, s44, 13')
        else:
            e(f's_lshl_b32 s44, s{tkreg}, 13')
        e('s_add_u32 s44, s44, s67')
        e('s_add_u32 s45, s44, 4096')
    e.c('first window tile (problem B) -> register set 0')
    set_srd(16, 18)
    e('''
    s_lshl_b32 s44, s31, 16
    s_lshl_b32 s60, s3, 13
    s_add_u32 s44, s44, s60
    ''')
    e(f's_add_u32 s44, s44, {(32768-4096)*256}')
    e('s_add_u32 s45, s44, 4096')
    issue_tile(SETS[0])
    e('''
    s_add_u32 s44, s44, 0x8000
    s_add_u32 s45, s45, 0x8000
    s_mov_b32 s47, 0x05040100
    s_mov_b32 s48, 0x07060302
    ''')
    c = (128 ** -0.5) * 1.4426950408889634
    e(f's_mov_b32 s49, {f2u(c):#x}')
    e('''
    s_lshl_b32 s56, s40, 4
    s_add_u32 s56, s56, s31
    s_and_b32 s57, s56, 7
    s_lshr_b32 s56, s56, 3
    s_lshl_b32 s58, s41, 2
    s_add_u32 s58, s58, s56
    s_lshl_b32 s67, s31, 19
    ''')
    if o['rot']: e(f's_mul_i32 s46, s2, {o["rot"]}')
    e('''
    v_lshrrev_b32 v6, 2, v4
    v_lshl_add_u32 v6, v5, 3, v6
    v_lshlrev_b32 v6, 6, v6
    v_and_b32 v7, 3, v4
    v_lshl_add_u32 v6, v7, 3, v6
    v_add_u32 v6, s62, v6
    v_lshlrev_b32 v7, 7, v4
    v_lshl_add_u32 v7, v5, 4, v7
    s_lshl_b32 s59, s3, 8
    ''')
    e(f's_add_u32 s59, s59, {L_SM}')
    e('v_add_u32 v7, s59, v7')
    if o['touch'] == 2:
        touch_block('L_nt2')
        e('s_cmp_lg_u32 s3, 3')
        e('s_cbranch_scc1 L_w16')
        e('s_waitcnt vmcnt(21)')
        e('s_branch L_w16d')
        e.lab('L_w16')
        e('s_waitcnt vmcnt(16)')
        e.lab('L_w16d')
    else:
        e('s_waitcnt vmcnt(16)')
    stamp(1)
    e.c('partial q projection: W^T fragments by transposing LDS reads, 8 MFMAs')
    FR = 176
    for kk in range(4):
        for ct in range(2):
            r = FR + (kk*2+ct)*4
            for h in range(2):
                e(f'ds_read_b64_tr_b16 v[{r+2*h}:{r+2*h+1}], v6 offset:{L_WQ + kk*2048 + h*256 + ct*32}')
    e('v_readfirstlane_b32 s43, v31')
    e('s_waitcnt lgkmcnt(0)')
    for kk in range(4):
        for ct in range(2):
            e(f'v_mfma_f32_16x16x32_bf16 {vr(8+4*ct)}, {vr(FR+(kk*2+ct)*4)}, {vr(144+4*kk)}, ' + ('0' if kk == 0 else vr(8+4*ct)))
    e(f's_add_u32 s42, s43, {TAGC:#x}')
    e('''
    s_nop 5
    s_mov_b32 exec_lo, 0x00030003
    s_mov_b32 exec_hi, 0x00030003
    ''')
    e(f'ds_write_b128 v7, v[8:11] offset:{R_QP}')
    e(f'ds_write_b128 v7, v[12:15] offset:{R_QP+64}')
    e('s_mov_b64 exec, 1')
    e('ds_add_u32 v29, v30 offset:4')
    e('s_mov_b64 exec, -1')
    e('s_cmp_eq_u32 s3, 0')
    e('s_cbranch_scc1 L_w0')
    e.c("waves 1..3: (wave 1) clear this workgroup's hand-off slots, then the second window tile once q is published")
    if o['t1gate']:
        lds_spin(16, 1, 'L_pub')
    issue_tile(SETS[1])
    e('s_branch L_wo')
    e.c("wave 0: sum the 4 partial projections, publish q, second window tile, poll the group's q")
    e.lab('L_w0')
    e('''
    s_lshl_b32 s59, s40, 6
    s_lshl_b32 s60, s41, 2
    s_add_u32 s59, s59, s60
    s_lshr_b32 s60, s55, 2
    s_add_u32 s59, s59, s60
    s_lshl_b32 s59, s59, 9
    s_and_b32 s60, s55, 3
    s_lshl_b32 s60, s60, 7
    s_add_u32 s59, s59, s60
    ''')
    e(f's_add_u32 s59, s59, {WS_QG}')
    e('''
    v_bfe_u32 v6, v1, 4, 1
    v_lshlrev_b32 v8, 14, v6
    v_lshl_add_u32 v8, v4, 3, v8
    v_add_u32 v8, s59, v8
    v_lshlrev_b32 v7, 7, v6
    v_lshl_add_u32 v7, v4, 3, v7
    ''')
    e(f'v_add_u32 v7, {L_SM}, v7')
    e('''
    s_lshl_b32 s59, s40, 5
    s_lshl_b32 s60, s41, 2
    s_add_u32 s59, s59, s60
    s_lshl_b32 s59, s59, 9
    ''')
    e(f's_add_u32 s59, s59, {WS_QG}')
    e('v_add_u32 v12, s59, v3')
    e(f'v_add_u32 v13, {64*512}, v12')
    lds_spin(4, 4, 'L_lq', sleep=0)
    for w in range(4):
        e(f'ds_read_b64 v[{144+2*w}:{145+2*w}], v7 offset:{R_QP + w*256}')
    e('s_waitcnt lgkmcnt(0)')
    for k in range(2):
        e(f'v_add_f32 v{144+k}, v{144+k}, v{146+k}')
        e(f'v_add_f32 v{148+k}, v{148+k}, v{150+k}')
    for k in range(2):
        e(f'v_add_f32 v{144+k}, v{144+k}, v{148+k}')
    e('''
    v_cvt_pk_bf16_f32 v10, v144, v145
    v_mov_b32 v11, s42
    s_mov_b32 exec_hi, 0
    global_store_dwordx2 v8, v[10:11], s[28:29] sc1
    s_mov_b32 exec_hi, -1
    ds_write_b32 v29, v30 offset:16
    ''')
    stamp(2)
    issue_tile(SETS[1])
    if o['noq']:
        e('s_branch L_qok')
    e(f's_waitcnt vmcnt({o["pollwait"]})')
    e(f's_mov_b32 s66, {SPIN}')
    e.lab('L_qpoll')
    e('''
    global_load_dwordx4 v[144:147], v12, s[28:29] sc1
    global_load_dwordx4 v[148:151], v12, s[28:29] offset:1024 sc1
    global_load_dwordx4 v[152:155], v13, s[28:29] sc1
    global_load_dwordx4 v[156:159], v13, s[28:29] offset:1024 sc1
    s_waitcnt vmcnt(0)
    ''')
    e('v_cmp_eq_u32 vcc, s42, v145')
    for r in (147, 149, 151, 153, 155, 157, 159):
        e(f'v_cmp_eq_u32 s[64:65], s42, v{r}')
        e('s_and_b64 vcc, vcc, s[64:65]')
    e('''
    s_cmp_eq_u64 vcc, -1
    s_cbranch_scc1 L_qok
    s_sub_u32 s66, s66, 1
    s_cbranch_scc1 L_qok
    s_branch L_qpoll
    ''')
    e.lab('L_qok')
    stamp(3)
    e('v_lshlrev_b32 v6, 3, v1')
    for u in range(4):
        r = 144 + 4*u
        off = L_SM + R_Q + (u >> 1)*1024 + (u & 1)*512
        e(f'v_add_u32 v7, {off}, v6')
        e(f'ds_write2_b32 v7, v{r}, v{r+2} offset0:0 offset1:1')
    e('ds_write_b32 v29, v30 offset:8')
    e.c('wo slices (128 rows x 128 B for A and for B) -> LDS, 8 DMA instructions per wave')
    e.lab('L_wo')
    e('''
    v_lshrrev_b32 v10, 3, v1
    v_lshlrev_b32 v10, 10, v10
    v_and_b32 v11, 7, v1
    v_lshl_add_u32 v10, v11, 4, v10
    s_lshl_b32 s59, s58, 17
    s_lshl_b32 s60, s3, 15
    s_add_u32 s59, s59, s60
    s_lshl_b32 s60, s57, 7
    s_add_u32 s59, s59, s60
    s_lshl_b32 s60, s3, 12
    ''')
    for p in range(2):
        wo = 12 if p == 0 else 22
        e(f's_add_u32 s52, s{wo}, s59')
        e(f's_addc_u32 s53, s{wo+1}, 0')
        for i in range(4):
            e(f's_add_u32 m0, s60, {L_WO + p*16384 + i*1024}')
            if i > 0:
                e('s_add_u32 s52, s52, 0x2000')
                e('s_addc_u32 s53, s53, 0')
            else:
                e('s_nop 0')
            e(f'global_load_lds_dwordx4 v10, s[52:53] {o["polW"]}')
    set_srd(6, 8)
    if not o['noq']:
        lds_spin(8, 1, 'L_qflag')
    e('''
    v_and_b32 v6, 3, v4
    v_lshlrev_b32 v6, 8, v6
    v_lshl_add_u32 v31, v5, 4, v6
    ''')
    e(f'v_add_u32 v31, {L_SM}, v31')
    for j in range(4):
        e(f'ds_read_b128 {vr(QR+4*j)}, v31 offset:{R_Q + 1024 + 64*j}')
    for r in range(32, 64): e(f'v_mov_b32 v{r}, 0')
    e(f'v_mov_b32 v20, {f2u(-1e30):#x}')
    e('''
    v_mov_b32 v21, 0
    s_mov_b32 s54, 1
    s_mov_b32 s69, 0
    s_mov_b32 s46, 0
    v_mov_b32 v7, 0
    s_lshl_b32 s59, s30, 8
    s_add_u32 s50, s28, s59
    s_addc_u32 s51, s29, 0
    ''')
    e(f's_add_u32 s50, s50, {WS_POOL}')
    e('s_addc_u32 s51, s51, 0')
    e('s_waitcnt lgkmcnt(0)')
    stamp(4)
    def body(S, once=False):
        KA, KB, VA, VB, tk = S['KA'], S['KB'], S['VA'], S['VB'], S['tk']
        W = o['wcnt']
        def wait():
            if not once: e(f's_waitcnt vmcnt({W})')
        def iss(ch):
            if not once: issue(ch, S)
        nc = o['nocomp']
        TL = o['tloc']
        pool = TL < 64
        if not once:
            if pool:
                e('s_cmp_lg_u32 s46, 0')
                e(f's_cbranch_scc1 L_pool{tk}')
            e("""
            s_mov_b64 exec, 1
            ds_add_rtn_u32 v26, v29, v30
            s_mov_b64 exec, -1
            """)
        wait()
        for j in range(4):
            e(f'v_mfma_f32_16x16x32_bf16 v[8:11], {vr(KA+4*j)}, {vr(QR+4*j)}, ' + ('0' if j == 0 else 'v[8:11]'))
        if not once:
            e('s_waitcnt lgkmcnt(0)')
            e(f'v_readfirstlane_b32 s{tk}, v26')
            if pool:
                e(f's_cmp_ge_u32 s{tk}, {TL-4}')
                e(f's_cbranch_scc1 L_sw{tk}')
                e.lab(f'L_swret{tk}')
            tile_off(tk)
            e(f's_cmp_lt_u32 s{tk}, 64')
            e.lab(f'L_join{tk}')
            e('s_cselect_b32 s34, 0x800000, 0')
            e('s_cselect_b32 s38, 0x800000, 0')
        iss('Ka')
        wait()
        for j in range(4):
            e(f'v_mfma_f32_16x16x32_bf16 v[12:15], {vr(KB+4*j)}, {vr(QR+4*j)}, ' + ('0' if j == 0 else 'v[12:15]'))
        iss('Kb')
        if once: e('s_nop 3')
        if nc < 1:
          e("""
        v_max3_f32 v22, v8, v9, v10
        v_max_f32 v22, v22, v11
        s_nop 1
        v_max3_f32 v22, v22, v12, v13
        v_max3_f32 v22, v22, v14, v15
        v_mov_b32 v23, v22
        s_nop 1
        v_permlane32_swap_b32 v23, v22
        v_max_f32 v22, v22, v23
        v_mov_b32 v23, v22
        s_nop 1
        v_permlane16_swap_b32 v23, v22
        v_max_f32 v22, v22, v23
        v_mul_f32 v22, s49, v22
        v_max_f32 v23, v20, v22
        v_sub_f32 v24, v20, v23
        v_exp_f32 v28, v24
        v_mov_b32 v20, v23
          """)
          for i in range(8): e(f'v_fma_f32 v{8+i}, v{8+i}, s49, -v23')
          for i in range(8): e(f'v_exp_f32 v{8+i}, v{8+i}')
          e('v_mul_f32 v21, v21, v28')
          for j in range(0, 16):
            e(f'v_pk_mul_f32 v[{32+2*j}:{33+2*j}], v[{32+2*j}:{33+2*j}], v[28:29] op_sel_hi:[1,0]')
          e("""
        v_add_f32 v24, v8, v9
        v_add_f32 v25, v10, v11
        v_add_f32 v26, v12, v13
        v_add_f32 v27, v14, v15
        v_cvt_pk_bf16_f32 v16, v8, v9
        v_cvt_pk_bf16_f32 v17, v10, v11
        v_cvt_pk_bf16_f32 v18, v12, v13
        v_cvt_pk_bf16_f32 v19, v14, v15
        v_add_f32 v24, v24, v25
        v_add_f32 v26, v26, v27
        v_add_f32 v21, v21, v24
        v_add_f32 v21, v21, v26
          """)
        wait()
        if nc < 1:
          for j in range(8):
            w = j >> 1; sel = 's47' if j % 2 == 0 else 's48'
            e(f'v_perm_b32 v{VT+4*j+0}, v{VA+4*1+w}, v{VA+4*0+w}, {sel}')
            e(f'v_perm_b32 v{VT+4*j+1}, v{VA+4*3+w}, v{VA+4*2+w}, {sel}')
        iss('Va')
        wait()
        if nc < 1:
          for j in range(8):
            w = j >> 1; sel = 's47' if j % 2 == 0 else 's48'
            e(f'v_perm_b32 v{VT+4*j+2}, v{VB+4*1+w}, v{VB+4*0+w}, {sel}')
            e(f'v_perm_b32 v{VT+4*j+3}, v{VB+4*3+w}, v{VB+4*2+w}, {sel}')
        iss('Vb')
        if once: e('s_nop 1')
        if nc < 2:
          for j in range(8):
            e(f'v_mfma_f32_16x16x32_bf16 {vr(32+4*j)}, {vr(VT+4*j)}, v[16:19], {vr(32+4*j)}')
    e.c('tile loop: 32 keys; s54 = 1 while on problem B; s68 = next tile (valid while < 64); s46 = 1 in pool mode')
    e.lab('L_t0')
    body(SETS[0])
    e("""
    s_cmp_eq_u32 s54, 1
    s_cbranch_scc1 L_t1
    s_cmp_lt_u32 s68, 64
    s_cbranch_scc1 L_t0
    s_branch L_flush
    """)
    e.c('second window tile (register set 1; its loads are covered by the waits above)')
    e.lab('L_t1')
    body(SETS[1], once=True)
    e.c('per-wave result (m, l, O) -> LDS')
    e.lab('L_flush')
    e('''
    v_mov_b32 v23, v21
    s_nop 1
    v_permlane32_swap_b32 v23, v21
    v_add_f32 v21, v21, v23
    v_mov_b32 v23, v21
    s_nop 1
    v_permlane16_swap_b32 v23, v21
    v_add_f32 v21, v21, v23
    s_lshl_b32 s59, s54, 2
    s_add_u32 s59, s59, s3
    s_lshl_b32 s59, s59, 11
    v_lshlrev_b32 v6, 9, v4
    v_lshl_add_u32 v6, v5, 4, v6
    v_add_u32 v6, s59, v6
    s_lshl_b32 s59, s54, 7
    s_lshl_b32 s60, s3, 3
    s_add_u32 s59, s59, s60
    ''')
    e(f's_add_u32 s59, s59, {L_SM}')
    e('''
    v_lshlrev_b32 v7, 5, v4
    v_add_u32 v7, s59, v7
    v_mov_b32 v22, v20
    v_mov_b32 v23, v21
    s_mov_b32 exec_lo, 0x000f000f
    s_mov_b32 exec_hi, 0x000f000f
    ''')
    for j in range(8):
        e(f'ds_write_b128 v6, {vr(32+4*j)} offset:{L_RES + 64*j}')
    e('s_mov_b64 exec, 15')
    e(f'ds_write_b64 v7, v[22:23] offset:{R_ST}')
    e('s_mov_b64 exec, -1')
    e('s_cmp_eq_u32 s54, 0')
    e('s_cbranch_scc1 L_tail')
    e.c('problem B done: load Q of A, precompute the addresses of the tail')
    stamp(5)
    for j in range(4):
        e(f'ds_read_b128 {vr(QR+4*j)}, v31 offset:{R_Q + 64*j}')
    e("""
    v_lshrrev_b32 v13, 5, v1
    v_and_b32 v14, 31, v1
    v_lshlrev_b32 v240, 13, v13
    v_lshl_add_u32 v240, v14, 4, v240
    s_lshl_b32 s61, s3, 9
    v_add_u32 v240, s61, v240
    v_lshlrev_b32 v241, 7, v13
    s_lshl_b32 s61, s3, 5
    """)
    e(f's_add_u32 s61, s61, {L_SM}')
    e('v_add_u32 v241, s61, v241')
    e("""
    s_lshl_b32 s61, s30, 2
    s_add_u32 s61, s61, s3
    s_lshl_b32 s61, s61, 4
    s_add_u32 s61, s61, s31
    s_lshl_b32 s62, s61, 9
    """)
    e(f's_add_u32 s62, s62, {WS_PART}')
    e("""
    v_lshlrev_b32 v242, 19, v13
    v_lshl_add_u32 v242, v14, 4, v242
    v_add_u32 v242, s62, v242
    s_lshl_b32 s62, s61, 7
    """)
    e(f's_add_u32 s62, s62, {WS_STAT}')
    e("""
    v_lshlrev_b32 v243, 17, v13
    v_and_b32 v15, 7, v1
    v_lshl_add_u32 v243, v15, 4, v243
    v_add_u32 v243, s62, v243
    """)
    e("""
    s_lshr_b32 s59, s3, 1
    s_and_b32 s60, s3, 1
    s_lshl_b32 s61, s59, 4
    s_lshl_b32 s62, s60, 3
    s_add_u32 s61, s61, s62
    s_add_u32 s61, s61, s41
    s_lshl_b32 s61, s61, 2
    s_add_u32 s61, s61, s56
    s_lshl_b32 s62, s61, 11
    """)
    e(f's_add_u32 s62, s62, {WS_STAT}')
    e("""
    v_and_b32 v244, 7, v1
    v_lshl_add_u32 v244, v244, 1, v13
    v_lshlrev_b32 v244, 7, v244
    v_add_u32 v244, s62, v244
    s_lshl_b32 s62, s61, 13
    """)
    e(f's_add_u32 s62, s62, {WS_PART}')
    e('v_add_u32 v245, s62, v3')
    e('v_add_u32 v246, 4096, v245')
    e("""
    v_and_b32 v15, 3, v14
    v_lshlrev_b32 v247, 5, v15
    v_lshrrev_b32 v15, 2, v14
    v_add_u32 v247, v247, v15
    v_lshlrev_b32 v247, 1, v247
    s_lshl_b32 s61, s3, 8
    """)
    e(f's_add_u32 s61, s61, {L_SM}')
    e('v_add_u32 v247, s61, v247')
    e("""
    v_lshrrev_b32 v248, 2, v4
    v_lshl_add_u32 v248, v5, 3, v248
    v_lshlrev_b32 v248, 7, v248
    v_and_b32 v13, 3, v4
    v_lshl_add_u32 v248, v13, 3, v248
    s_lshl_b32 s62, s3, 5
    v_add_u32 v248, s62, v248
    v_and_b32 v249, 1, v4
    v_lshlrev_b32 v249, 8, v249
    v_lshl_add_u32 v249, v5, 4, v249
    """)
    e(f'v_add_u32 v249, {L_SM}, v249')
    e("""
    s_lshl_b32 s61, s57, 2
    s_add_u32 s61, s61, s3
    s_lshl_b32 s61, s61, 5
    s_add_u32 s61, s61, s58
    s_lshl_b32 s61, s61, 7
    """)
    e(f's_add_u32 s63, s61, {WS_OUTP}')
    e("""
    v_and_b32 v250, 1, v4
    v_lshlrev_b32 v250, 6, v250
    v_lshl_add_u32 v250, v5, 4, v250
    v_add_u32 v250, s63, v250
    v_add_u32 v255, 0x20000, v250
    s_lshl_b32 s59, s2, 12
    """)
    e(f's_add_u32 s59, s59, {WS_OUTP}')
    e("""
    v_add_u32 v251, s59, v3
    v_bfe_u32 v252, v1, 2, 1
    v_lshlrev_b32 v252, 10, v252
    v_and_b32 v13, 3, v1
    v_lshl_add_u32 v252, v13, 2, v252
    s_lshl_b32 s59, s2, 4
    v_add_u32 v252, s59, v252
    v_lshlrev_b32 v252, 1, v252
    """)
    for r in range(32, 64): e(f'v_mov_b32 v{r}, 0')
    e(f'v_mov_b32 v20, {f2u(-1e30):#x}')
    e('''
    v_mov_b32 v21, 0
    s_mov_b32 s54, 0
    s_waitcnt lgkmcnt(0)
    s_cmp_lt_u32 s68, 64
    s_cbranch_scc1 L_t0
    s_branch L_flush
    ''')
    e.c('out-of-line pieces of the tile loop: switch to the pool, pool-mode head')
    if o['tloc'] < 64:
        TL = o['tloc']; NP = 16*(64-TL)
        for S in SETS[:1]:
            tk = S['tk']
            e.lab(f'L_sw{tk}')
            e('s_mov_b32 s46, 1')
            e('v_mov_b32 v7, 0')
            e('s_mov_b64 exec, 1')
            e('global_atomic_add v6, v7, v30, s[50:51] sc0 sc1')
            e('s_mov_b64 exec, -1')
            e(f's_branch L_swret{tk}')
            e.lab(f'L_pool{tk}')
            e(f's_waitcnt vmcnt({o["wcnt"]})')
            e('v_readfirstlane_b32 s59, v6')
            for j in range(4):
                e(f'v_mfma_f32_16x16x32_bf16 v[8:11], {vr(S["KA"]+4*j)}, {vr(QR+4*j)}, ' + ('0' if j == 0 else 'v[8:11]'))
            e('s_and_b32 s44, s59, 15')
            e('s_lshl_b32 s44, s44, 19')
            e('s_lshr_b32 s60, s59, 4')
            e(f's_add_u32 s60, s60, {TL}')
            e('s_lshl_b32 s60, s60, 13')
            e('s_add_u32 s44, s44, s60')
            e('s_add_u32 s45, s44, 4096')
            e(f's_cmp_lt_u32 s59, {NP}')
            e(f's_cselect_b32 s{tk}, 0, 64')
            e(f's_cbranch_scc0 L_join{tk}')
            e('s_mov_b64 exec, 1')
            e('global_atomic_add v6, v7, v30, s[50:51] sc0 sc1')
            e('s_mov_b64 exec, -1')
            e(f's_branch L_join{tk}')
    e.c('==== tail: reduce the 4 waves (A in lanes 0..31, B in lanes 32..63 of head = wave), publish')
    e.lab('L_tail')
    stamp(6)
    e('v_mov_b32 v26, 0xfffff000')
    e('s_and_b32 s63, s42, 0xfff')
    e('s_waitcnt vmcnt(0) lgkmcnt(0)')
    e('s_barrier')
    stamp(7)
    for k in range(2):
        e(f'ds_read_b128 {vr(64+4*k)}, v241 offset:{R_ST + 16*k}')
    for w in range(4):
        e(f'ds_read_b128 {vr(72+4*w)}, v240 offset:{L_RES + w*2048}')
    e('s_waitcnt lgkmcnt(%d)' % (0 if stamps else 4))
    e("""
    v_max3_f32 v88, v64, v66, v68
    v_max_f32 v88, v88, v70
    v_sub_f32 v64, v64, v88
    v_sub_f32 v66, v66, v88
    v_sub_f32 v68, v68, v88
    v_sub_f32 v70, v70, v88
    v_exp_f32 v64, v64
    v_exp_f32 v66, v66
    v_exp_f32 v68, v68
    v_exp_f32 v70, v70
    v_mov_b32 v92, v88
    v_mul_f32 v90, v64, v65
    v_fmac_f32 v90, v66, v67
    v_fmac_f32 v90, v68, v69
    v_fmac_f32 v90, v70, v71
    v_mov_b32 v93, s42
    s_waitcnt lgkmcnt(0)
    """)
    for k in range(4): e(f'v_mul_f32 v{96+k}, v64, v{72+k}')
    for w in range(1, 4):
        for k in range(4): e(f'v_fmac_f32 v{96+k}, v{64+2*w}, v{72+4*w+k}')
    e('v_mov_b32 v94, v90')
    e('v_mov_b32 v95, s42')
    for k in range(4): e(f'v_and_or_b32 v{96+k}, v{96+k}, v26, s63')
    e('global_store_dwordx4 v242, v[96:99], s[28:29] sc1')
    e("""
    s_mov_b32 exec_lo, 0xff
    s_mov_b32 exec_hi, 0xff
    global_store_dwordx4 v243, v[92:95], s[28:29] sc1
    s_mov_b64 exec, -1
    """)
    stamp(8)
    e.c('combine the 16 splits of (problem = wave>>1, batch = wave&1, head hh): light poll on the statistics, then data + statistics')
    e(f's_mov_b32 s66, {SPIN}')
    e.lab('L_spoll')
    e("""
    global_load_dwordx4 v[100:103], v244, s[28:29] sc1
    s_waitcnt vmcnt(0)
    v_cmp_eq_u32 vcc, s42, v101
    v_cmp_eq_u32 s[64:65], s42, v103
    s_and_b64 vcc, vcc, s[64:65]
    s_and_b32 s59, vcc_lo, 0xff
    s_and_b32 s60, vcc_hi, 0xff
    s_bcnt1_i32_b32 s59, s59
    s_bcnt1_i32_b32 s60, s60
    s_add_u32 s59, s59, s60
    """)
    e(f's_cmp_ge_u32 s59, {o["p2min"]}')
    e('s_cbranch_scc1 L_sok')
    e('s_sub_u32 s66, s66, 1')
    e('s_cbranch_scc1 L_sok')
    e(f's_sleep {o["psleep"]}')
    e('s_branch L_spoll')
    e.lab('L_sok')
    stamp(9)
    e.lab('L_dpoll')
    D = 64
    e('global_load_dwordx4 v[100:103], v244, s[28:29] sc1')
    for i in range(8):
        va = 'v245' if i < 4 else 'v246'
        e(f'global_load_dwordx4 {vr(D+4*i)}, {va}, s[28:29] offset:{(i%4)*1024} sc1')
    e("""
    s_waitcnt vmcnt(8)
    v_max_f32_dpp v12, v100, v100 row_ror:4 row_mask:0xf bank_mask:0xf
    v_cmp_eq_u32 s[60:61], s42, v101
    s_nop 0
    v_max_f32_dpp v13, v12, v12 row_ror:2 row_mask:0xf bank_mask:0xf
    v_cmp_eq_u32 s[64:65], s42, v103
    s_nop 0
    v_max_f32_dpp v12, v13, v13 row_ror:1 row_mask:0xf bank_mask:0xf
    v_mov_b32 v16, 0
    v_mov_b32 v13, v12
    s_nop 1
    v_permlane32_swap_b32 v13, v12
    v_max_f32 v13, v13, v12
    v_sub_f32 v14, v100, v13
    v_exp_f32 v14, v14
    v_mov_b32 v17, 0
    v_mul_f32 v15, v14, v102
    v_mov_b32 v8, 0
    v_mov_b32 v9, 0
    v_add_f32_dpp v12, v15, v15 row_ror:4 row_mask:0xf bank_mask:0xf
    s_and_b64 s[60:61], s[60:61], s[64:65]
    s_nop 0
    v_add_f32_dpp v15, v12, v12 row_ror:2 row_mask:0xf bank_mask:0xf
    s_nop 1
    v_add_f32_dpp v12, v15, v15 row_ror:1 row_mask:0xf bank_mask:0xf
    s_nop 0
    v_mov_b32 v15, v12
    s_nop 1
    v_permlane32_swap_b32 v15, v12
    v_add_f32 v15, v15, v12
    v_rcp_f32 v15, v15
    s_nop 0
    v_mul_f32 v14, v14, v15
    s_waitcnt vmcnt(0)
    """)
    regs = list(range(D, D+32))
    e(f'v_bitop3_b32 v12, v{regs[0]}, v{regs[1]}, v{regs[2]} bitop3:0x80')
    e(f'v_or3_b32 v13, v{regs[0]}, v{regs[1]}, v{regs[2]}')
    k = 3
    while k + 1 < 32:
        e(f'v_bitop3_b32 v12, v12, v{regs[k]}, v{regs[k+1]} bitop3:0x80')
        e(f'v_or3_b32 v13, v13, v{regs[k]}, v{regs[k+1]}'); k += 2
    e(f'v_and_b32 v12, v12, v{regs[31]}')
    e(f'v_or_b32 v13, v13, v{regs[31]}')
    e("""
    v_xor_b32 v12, s63, v12
    v_xor_b32 v13, s63, v13
    v_or_b32 v12, v12, v13
    v_and_b32 v12, 0xfff, v12
    v_cmp_eq_u32 vcc, 0, v12
    s_and_b64 vcc, vcc, s[60:61]
    s_cmp_eq_u64 vcc, -1
    s_cbranch_scc1 L_dok
    s_sub_u32 s66, s66, 1
    s_cbranch_scc1 L_dok
    s_branch L_dpoll
    """)
    e.lab('L_dok')
    acc = [8, 9, 16, 17]
    for i in range(8):
        for k in range(4):
            e(f'v_fmac_f32_dpp v{acc[k]}, v14, v{D+4*i+k} row_newbcast:{i} row_mask:0xf bank_mask:0xf')
    for k in range(4): e(f'v_mov_b32 v{20+k}, v{acc[k]}')
    e('s_nop 0')
    for k in range(4): e(f'v_permlane32_swap_b32 v{20+k}, v{acc[k]}')
    for k in range(4): e(f'v_add_f32 v{acc[k]}, v{acc[k]}, v{20+k}')
    e('v_cvt_pk_bf16_f32 v18, v8, v9')
    e('v_cvt_pk_bf16_f32 v19, v16, v17')
    e(f'ds_write_b16 v247, v18 offset:{R_O}')
    e(f'ds_write_b16_d16_hi v247, v18 offset:{R_O+16}')
    e(f'ds_write_b16 v247, v19 offset:{R_O+32}')
    e(f'ds_write_b16_d16_hi v247, v19 offset:{R_O+48}')
    e.c('out-projection of head h onto 16 columns per wave, both problems')
    for p in range(2):
        for kk in range(4):
            for h in range(2):
                r = 128 + 16*p + 4*kk + 2*h
                e(f'ds_read_b64_tr_b16 v[{r}:{r+1}], v248 offset:{L_WO + p*16384 + kk*4096 + h*512}')
    e('s_waitcnt lgkmcnt(0)')
    e('s_barrier')
    stamp(10)
    for p in range(2):
        for kk in range(4):
            e(f'ds_read_b128 {vr(96+16*p+4*kk)}, v249 offset:{R_O + p*512 + kk*64}')
    e('s_waitcnt lgkmcnt(0)')
    for kk in range(4):
        for p in range(2):
            e(f'v_mfma_f32_16x16x32_bf16 {vr(8+4*p)}, {vr(128+16*p+4*kk)}, {vr(96+16*p+4*kk)}, ' + ('0' if kk == 0 else vr(8+4*p)))
    e("""
    s_mov_b32 exec_lo, 0x00030003
    s_mov_b32 exec_hi, 0x00030003
    s_nop 5
    v_and_or_b32 v8, v8, v26, s63
    v_and_or_b32 v9, v9, v26, s63
    v_and_or_b32 v10, v10, v26, s63
    v_and_or_b32 v11, v11, v26, s63
    v_and_or_b32 v12, v12, v26, s63
    v_and_or_b32 v13, v13, v26, s63
    v_and_or_b32 v14, v14, v26, s63
    v_and_or_b32 v15, v15, v26, s63
    global_store_dwordx4 v250, v[8:11], s[28:29] sc1
    global_store_dwordx4 v255, v[12:15], s[28:29] sc1
    s_mov_b64 exec, -1
    """)
    stamp(11)
    e.c('final sum over the 32 heads: wave 0 of workgroups 0..63, 16 columns x 2 batches each')
    e('s_cmp_lg_u32 s3, 0')
    e('s_cbranch_scc1 ' + ('L_fin' if stamps else 'L_end'))
    e('s_cmp_ge_u32 s2, %d' % (32 if o['aonly'] else 64))
    e('s_cbranch_scc1 L_fin')
    e(f's_mov_b32 s66, {SPIN}')
    e.lab('L_opoll')
    for i in range(4):
        e(f'global_load_dwordx4 {vr(64+4*i)}, v251, s[28:29] offset:{i*1024} sc1')
    e('s_waitcnt vmcnt(0)')
    e('v_bitop3_b32 v12, v64, v65, v66 bitop3:0x80')
    e('v_or3_b32 v13, v64, v65, v66')
    k = 67
    while k + 1 < 80:
        e(f'v_bitop3_b32 v12, v12, v{k}, v{k+1} bitop3:0x80')
        e(f'v_or3_b32 v13, v13, v{k}, v{k+1}'); k += 2
    e('v_and_b32 v12, v12, v79')
    e('v_or_b32 v13, v13, v79')
    e("""
    v_xor_b32 v12, s63, v12
    v_xor_b32 v13, s63, v13
    v_or_b32 v12, v12, v13
    v_and_b32 v12, 0xfff, v12
    v_cmp_eq_u32 vcc, 0, v12
    s_cmp_eq_u64 vcc, -1
    s_cbranch_scc1 L_ook
    s_sub_u32 s66, s66, 1
    s_cbranch_scc1 L_ook
    s_branch L_opoll
    """)
    e.lab('L_ook')
    for k in range(4):
        e(f'v_add_f32 v{64+k}, v{64+k}, v{68+k}')
        e(f'v_add_f32 v{72+k}, v{72+k}, v{76+k}')
    for k in range(4): e(f'v_add_f32 v{64+k}, v{64+k}, v{72+k}')
    e('s_nop 0')
    for k in range(4): e(f'v_add_f32_dpp v{68+k}, v{64+k}, v{64+k} row_ror:8 row_mask:0xf bank_mask:0xf')
    for k in range(4): e(f'v_mov_b32 v{72+k}, v{68+k}')
    e('s_nop 0')
    for k in range(4): e(f'v_permlane16_swap_b32 v{72+k}, v{68+k}')
    for k in range(4): e(f'v_add_f32 v{68+k}, v{68+k}, v{72+k}')
    for k in range(4): e(f'v_mov_b32 v{72+k}, v{68+k}')
    e('s_nop 0')
    for k in range(4): e(f'v_permlane32_swap_b32 v{72+k}, v{68+k}')
    for k in range(4): e(f'v_add_f32 v{68+k}, v{68+k}, v{72+k}')
    e("""
    v_cvt_pk_bf16_f32 v64, v68, v69
    v_cvt_pk_bf16_f32 v65, v70, v71
    s_mov_b64 exec, 0xff
    global_store_dwordx2 v252, v[64:65], s[24:25] OUTPOL
    s_mov_b64 exec, -1
    """)
    e('''
    s_cmp_lg_u32 s2, 0
    s_cbranch_scc1 L_fin
    s_add_u32 s59, s43, 1
    v_mov_b32 v7, s59
    v_mov_b32 v8, 0
    s_mov_b64 exec, 1
    ''')
    e(f'global_store_dword v8, v7, s[28:29] offset:{WS_EPOCH} sc1')
    e('s_mov_b64 exec, -1')
    e.lab('L_fin')
    if o['holdus']:
        e('s_cmp_lg_u32 s2, 0')
        e('s_cbranch_scc1 L_end')
        e('s_waitcnt vmcnt(0) lgkmcnt(0)')
        e('s_memrealtime s[72:73]')
        e('s_waitcnt lgkmcnt(0)')
        e('s_sub_u32 s74, s72, s70')
        e(f's_mul_i32 s74, s74, {o["holdmul"]}')
        e(f's_add_u32 s74, s74, {o["holdus"]*100}')
        e.lab('L_hold')
        e('s_memrealtime s[72:73]')
        e('s_waitcnt lgkmcnt(0)')
        e('s_sub_u32 s75, s72, s70')
        e('s_cmp_lt_u32 s75, s74')
        e('s_cbranch_scc1 L_hold')
    if stamps:
        e('s_memrealtime s[94:95]')
        e('s_waitcnt lgkmcnt(0)')
        e('s_lshl_b32 s59, s2, 3')
        e('s_add_u32 s59, s59, s3')
        e(f's_mul_i32 s59, s59, {16*8}')
        e(f's_add_u32 s59, s59, {WS_STAMP}')
        e('v_mov_b32 v6, s59')
        e('s_mov_b64 exec, 1')
        for i in range(16):
            e(f'v_mov_b32 v{10+2*i}, s{70+2*i}')
            e(f'v_mov_b32 v{11+2*i}, s{71+2*i}')
        for i in range(16):
            e(f'global_store_dwordx2 v6, v[{10+2*i}:{11+2*i}], s[28:29] offset:{8*i}')
    e.lab('L_end')
    e('s_endpgm')
    e.raw('.section .rodata,"a"')
    e.raw('.p2align 6')
    e.raw(f'.amdhsa_kernel {KN}_kernel')
    e.raw('  .amdhsa_next_free_vgpr 256')
    e.raw('  .amdhsa_next_free_sgpr 102')
    e.raw('  .amdhsa_accum_offset 256')
    e.raw('  .amdhsa_group_segment_fixed_size 0')
    e.raw('  .amdhsa_kernarg_size 104')
    e.raw('  .amdhsa_user_sgpr_count 2')
    e.raw('  .amdhsa_user_sgpr_kernarg_segment_ptr 1')
    e.raw('  .amdhsa_system_sgpr_workgroup_id_x 1')
    e.raw('.end_amdhsa_kernel')
    open(path, 'w').write(('\n'.join(e.L) + '\n').replace('OUTPOL', o['outpol']))

if __name__ == '__main__':
    gen('k18.s')
    gen('k18_52.s', opts=dict(tloc=52))
    gen('k18_58.s', opts=dict(tloc=58))
    gen('k18_60.s', opts=dict(tloc=60))
    gen('k18_62.s', opts=dict(tloc=62))
    gen('k18_p16.s', opts=dict(p2min=16))
```

```python
import sys, struct

KN = 'concat_heads__gqa_block_cached__sliding_block_cached__decode'

def f2u(x):
    return struct.unpack('<I', struct.pack('<f', x))[0]

WS_EPOCH = 0x0
WS_QG    = 0x1000
WS_PART  = 0x20000
WS_STAT  = 0x120000
WS_OUTP  = 0x160000
WS_POOL  = 0x1E0000
WS_STAMP = 512 << 20
L_WQ  = 0x0
L_RES = 0x0
L_WO  = 0x8000
L_SM  = 0x10000
R_ST  = 0x000
R_QP  = 0x200
R_Q   = 0xA00
R_O   = 0x1200
R_CNT = 0x1600
LDS_BYTES = 86016

TAGC = 0x9E3779B9
SPIN = 1 << 19


HEADER = """; Fused GQA decode attention (A: 32768 keys, B: last 4096 keys) + head concat + output projection.
;     to each other through d_ws as 8-byte {2 x bf16, tag} granules; tag = (epoch word found in d_ws) + constant,
;     as {m, tag} {l, tag} granules; consumers re-read until every word they use carries the tag of this launch.
"""

class A:
    def __init__(self):
        self.L = []
    def __call__(self, s):
        for line in s.strip('\n').split('\n'):
            line = line.strip()
            if line:
                self.L.append('  ' + line)
    def lab(self, s):
        self.L.append(s + ':')
    def raw(self, s):
        self.L.append(s)
    def c(self, s):
        for line in s.strip('\n').split('\n'):
            self.L.append('  ; ' + line.strip())

def vr(a, n=4):
    return f'v[{a}:{a+n-1}]'

SETS = [dict(KA=80, KB=96, VA=112, VB=128, tk=68), dict(KA=176, KB=192, VA=208, VB=224, tk=69)]
VT = 144
QR = 64

def gen(path, stamps=False, opts=None):
    o = dict(chk=24, pollwait=16, t1gate=True, rot=0, touch=0, polB='nt', polW='nt', polA='nt', map='g16', noq=False, nowo=False, nocomp=0, p2min=15, outpol='', holdus=0, holdmul=0, tloc=58, wcnt=12, aonly=False, psleep=2)
    o.update(opts or {})
    e = A()
    def stamp(i):
        if stamps:
            e(f's_memrealtime s[{70+2*i}:{71+2*i}]')
    def lds_spin(off, val, label, sleep=1):
        e(f's_mov_b32 s66, {SPIN}')
        e.lab(label)
        e(f'ds_read_b32 v27, v29 offset:{off}')
        e('s_waitcnt lgkmcnt(0)')
        e('v_readfirstlane_b32 s59, v27')
        e(f's_cmp_eq_u32 s59, {val}')
        e(f's_cbranch_scc1 {label}_ok')
        if sleep: e(f's_sleep {sleep}')
        e('s_sub_u32 s66, s66, 1')
        e(f's_cbranch_scc0 {label}')
        e.lab(label + '_ok')

    def touch_block(lab):
        e('s_cmp_lg_u32 s3, 3')
        e(f's_cbranch_scc1 {lab}')
        e('s_lshl_b32 s59, s30, 23')
        e('s_lshl_b32 s60, s31, 19')
        e('s_add_u32 s59, s59, s60')
        e('v_mov_b32 v26, s59')
        e('s_lshl_b32 s59, s40, 4')
        e('s_add_u32 s59, s59, s31')
        e('s_lshr_b32 s59, s59, 3')
        e('s_lshl_b32 s60, s41, 2')
        e('s_add_u32 s59, s59, s60')
        e('s_lshl_b32 s59, s59, 17')
        e('v_mov_b32 v27, s59')
        e('s_mov_b64 exec, 1')
        e('global_load_dword v244, v26, s[6:7] nt')
        e('global_load_dword v245, v26, s[8:9] nt')
        e('global_load_dword v246, v27, s[12:13] nt')
        e('global_load_dword v247, v27, s[22:23] nt')
        e('global_load_dword v248, v22, s[24:25]')
        e('s_mov_b64 exec, -1')
        e.lab(lab)
    for line in HEADER.strip('\n').split('\n'): e.raw(line)
    e.raw(f'; @launch grid=(256,1,1) block=(256,1,1) lds={LDS_BYTES}')
    e.raw('.amdgcn_target "amdgcn-amd-amdhsa--gfx950"')
    e.raw('.text')
    e.raw(f'.globl {KN}_kernel')
    e.raw('.p2align 8')
    e.raw(f'.type {KN}_kernel,@function')
    e.raw(f'{KN}_kernel:')
    e.c('workgroups past the 256 that carry work exit at once')
    e('s_cmp_ge_u32 s2, 256')
    e('s_cbranch_scc1 L_end')
    if stamps:
        for i in range(70, 102): e(f's_mov_b32 s{i}, 0')
    stamp(0)
    if o['holdus']:
        e('s_memrealtime s[70:71]')
    e('''
    s_load_dwordx16 s[4:19], s[0:1], 0
    s_load_dwordx8 s[20:27], s[0:1], 64
    s_load_dwordx2 s[28:29], s[0:1], 96
    v_lshrrev_b32 v4, 6, v0
    v_and_b32 v1, 63, v0
    v_readfirstlane_b32 s3, v4
    ''')
    if o['map'] == 'g16':
        e('s_lshr_b32 s30, s2, 4')
        e('s_and_b32 s31, s2, 15')
    else:
        e('s_lshr_b32 s31, s2, 3')
        e('s_lshr_b32 s30, s31, 4')
        e('s_lshl_b32 s30, s30, 3')
        e('s_and_b32 s59, s2, 7')
        e('s_add_u32 s30, s30, s59')
        e('s_and_b32 s31, s31, 15')
    e('''
    s_lshr_b32 s40, s30, 3
    s_and_b32 s41, s30, 7
    v_and_b32 v4, 15, v1
    v_lshrrev_b32 v5, 4, v1
    v_lshlrev_b32 v3, 4, v1
    v_mov_b32 v22, 0
    v_mov_b32 v23, 0
    ''')
    e(f'v_mov_b32 v29, {L_SM + R_CNT}')
    e('''
    s_cmp_lg_u32 s3, 0
    s_cbranch_scc1 L_noinit
    v_mov_b32 v8, 0
    v_mov_b32 v9, 0
    v_mov_b32 v10, 0
    v_mov_b32 v11, 0
    ds_write_b128 v29, v[8:11]
    ds_write_b64 v29, v[8:9] offset:16
    ''')
    e.c('lane constants: v1 lane, v2 K offset (row 4*(m&3)+(m>>2), 16 B slab), v3 lane*16, v4 lane&15, v5 lane>>4')
    e.lab('L_noinit')
    e('''
    v_and_b32 v6, 3, v4
    v_lshrrev_b32 v7, 2, v4
    v_lshl_add_u32 v6, v6, 2, v7
    v_lshlrev_b32 v6, 8, v6
    v_lshl_add_u32 v2, v5, 4, v6
    v_mov_b32 v30, 1
    v_lshrrev_b32 v24, 2, v1
    v_lshlrev_b32 v24, 13, v24
    v_and_b32 v11, 3, v1
    v_lshl_add_u32 v24, v11, 4, v24
    v_and_b32 v25, 1, v1
    v_lshlrev_b32 v25, 10, v25
    v_lshl_add_u32 v25, v5, 4, v25
    s_lshl_b32 s59, s3, 8
    v_add_u32 v25, s59, v25
    ''')
    if o['map'] == 'g16':
        e('s_and_b32 s55, s31, 7')
        e('s_lshl_b32 s55, s55, 1')
        e('s_lshr_b32 s59, s31, 3')
        e('s_or_b32 s55, s55, s59')
    else:
        e('s_mov_b32 s55, s31')
    e('''
    s_lshl_b32 s61, s3, 20
    s_lshl_b32 s60, s41, 10
    s_add_u32 s61, s61, s60
    s_lshl_b32 s60, s55, 6
    s_add_u32 s61, s61, s60
    s_lshl_b32 s62, s3, 13
    ''')
    e('s_waitcnt lgkmcnt(0)')
    e('s_barrier')
    stamp(13)
    e('''
    s_cmp_eq_u32 s40, 0
    s_cselect_b32 s52, s10, s20
    s_cselect_b32 s53, s11, s21
    s_cselect_b32 s50, s4, s14
    s_cselect_b32 s51, s5, s15
    s_add_u32 s52, s52, s61
    s_addc_u32 s53, s53, 0
    ''')
    e.c('the pool counter of the group is zeroed by wave 0 of split 0; its q granules are published after this store completes')
    e('s_lshl_b32 s59, s31, 2')
    e('s_or_b32 s59, s59, s3')
    e('s_cmp_lg_u32 s59, 0')
    e('s_cbranch_scc1 L_nopool')
    e('s_lshl_b32 s59, s30, 8')
    e(f's_add_u32 s59, s59, {WS_POOL}')
    e('v_mov_b32 v26, s59')
    e('s_mov_b64 exec, 1')
    e('global_store_dword v26, v22, s[28:29] sc1')
    e('s_mov_b64 exec, -1')
    e.lab('L_nopool')
    e.c('wq slice (128 rows x 64 B per wave) -> LDS, x fragments, epoch word')
    for i in range(8):
        e(f's_add_u32 m0, s62, {L_WQ + i*1024}')
        if i > 0:
            e('s_add_u32 s52, s52, 0x20000')
            e('s_addc_u32 s53, s53, 0')
        else:
            e('s_nop 0')
        e(f'global_load_lds_dwordx4 v24, s[52:53] {o["polW"]}')
    for kk in range(4):
        e(f'global_load_dwordx4 {vr(144+4*kk)}, v25, s[50:51] offset:{64*kk}')
    e(f'global_load_dword v31, v22, s[28:29] offset:{WS_EPOCH} sc1')
    if o['touch'] == 1: touch_block('L_nt1')

    def set_srd(kp, vp):
        e('s_lshl_b32 s59, s30, 23')
        e(f's_add_u32 s32, s{kp}, s59')
        e(f's_addc_u32 s33, s{kp+1}, 0')
        e('s_and_b32 s33, s33, 0xffff')
        e(f's_add_u32 s36, s{vp}, s59')
        e(f's_addc_u32 s37, s{vp+1}, 0')
        e('s_and_b32 s37, s37, 0xffff')
        e('''
        s_mov_b32 s34, 0x800000
        s_mov_b32 s35, 0x20000
        s_mov_b32 s38, 0x800000
        s_mov_b32 s39, 0x20000
        ''')
    def issue(chunk, S, pol=None):
        pol = o['polA'] if pol is None else pol
        if chunk == 'Ka':
            for j in range(4): e(f'buffer_load_dwordx4 {vr(S["KA"]+4*j)}, v2, s[32:35], s44 offen offset:{64*j} {pol}')
        elif chunk == 'Kb':
            for j in range(4): e(f'buffer_load_dwordx4 {vr(S["KB"]+4*j)}, v2, s[32:35], s45 offen offset:{64*j} {pol}')
        elif chunk == 'Va':
            for i in range(4): e(f'buffer_load_dwordx4 {vr(S["VA"]+4*i)}, v3, s[36:39], s44 offen offset:{1024*i} {pol}')
        elif chunk == 'Vb':
            for i in range(4): e(f'buffer_load_dwordx4 {vr(S["VB"]+4*i)}, v3, s[36:39], s45 offen offset:{1024*i} {pol}')
    def issue_tile(S):
        for ch in ('Ka', 'Kb', 'Va', 'Vb'): issue(ch, S, o['polB'])
    def tile_off(tkreg):
        if o['rot']:
            e(f's_add_u32 s44, s{tkreg}, s46')
            e('s_and_b32 s44, s44, 63')
            e('s_lshl_b32 s44, s44, 13')
        else:
            e(f's_lshl_b32 s44, s{tkreg}, 13')
        e('s_add_u32 s44, s44, s67')
        e('s_add_u32 s45, s44, 4096')
    e.c('first window tile (problem B) -> register set 0')
    set_srd(16, 18)
    e('''
    s_lshl_b32 s44, s31, 16
    s_lshl_b32 s60, s3, 13
    s_add_u32 s44, s44, s60
    ''')
    e(f's_add_u32 s44, s44, {(32768-4096)*256}')
    e('s_add_u32 s45, s44, 4096')
    issue_tile(SETS[0])
    e('''
    s_add_u32 s44, s44, 0x8000
    s_add_u32 s45, s45, 0x8000
    s_mov_b32 s47, 0x05040100
    s_mov_b32 s48, 0x07060302
    ''')
    c = (128 ** -0.5) * 1.4426950408889634
    e(f's_mov_b32 s49, {f2u(c):#x}')
    e('''
    s_lshl_b32 s56, s40, 4
    s_add_u32 s56, s56, s31
    s_and_b32 s57, s56, 7
    s_lshr_b32 s56, s56, 3
    s_lshl_b32 s58, s41, 2
    s_add_u32 s58, s58, s56
    s_lshl_b32 s67, s31, 19
    ''')
    if o['rot']: e(f's_mul_i32 s46, s2, {o["rot"]}')
    e('''
    v_lshrrev_b32 v6, 2, v4
    v_lshl_add_u32 v6, v5, 3, v6
    v_lshlrev_b32 v6, 6, v6
    v_and_b32 v7, 3, v4
    v_lshl_add_u32 v6, v7, 3, v6
    v_add_u32 v6, s62, v6
    v_lshlrev_b32 v7, 7, v4
    v_lshl_add_u32 v7, v5, 4, v7
    s_lshl_b32 s59, s3, 8
    ''')
    e(f's_add_u32 s59, s59, {L_SM}')
    e('v_add_u32 v7, s59, v7')
    if o['touch'] == 2:
        touch_block('L_nt2')
        e('s_cmp_lg_u32 s3, 3')
        e('s_cbranch_scc1 L_w16')
        e('s_waitcnt vmcnt(21)')
        e('s_branch L_w16d')
        e.lab('L_w16')
        e('s_waitcnt vmcnt(16)')
        e.lab('L_w16d')
    else:
        e('s_waitcnt vmcnt(16)')
    stamp(1)
    e.c('partial q projection: W^T fragments by transposing LDS reads, 8 MFMAs')
    FR = 176
    for kk in range(4):
        for ct in range(2):
            r = FR + (kk*2+ct)*4
            for h in range(2):
                e(f'ds_read_b64_tr_b16 v[{r+2*h}:{r+2*h+1}], v6 offset:{L_WQ + kk*2048 + h*256 + ct*32}')
    e('v_readfirstlane_b32 s43, v31')
    e('s_waitcnt lgkmcnt(0)')
    for kk in range(4):
        for ct in range(2):
            e(f'v_mfma_f32_16x16x32_bf16 {vr(8+4*ct)}, {vr(FR+(kk*2+ct)*4)}, {vr(144+4*kk)}, ' + ('0' if kk == 0 else vr(8+4*ct)))
    e(f's_add_u32 s42, s43, {TAGC:#x}')
    e('''
    s_nop 5
    s_mov_b32 exec_lo, 0x00030003
    s_mov_b32 exec_hi, 0x00030003
    ''')
    e(f'ds_write_b128 v7, v[8:11] offset:{R_QP}')
    e(f'ds_write_b128 v7, v[12:15] offset:{R_QP+64}')
    e('s_mov_b64 exec, 1')
    e('ds_add_u32 v29, v30 offset:4')
    e('s_mov_b64 exec, -1')
    e('s_cmp_eq_u32 s3, 0')
    e('s_cbranch_scc1 L_w0')
    e.c("waves 1..3: (wave 1) clear this workgroup's hand-off slots, then the second window tile once q is published")
    if o['t1gate']:
        lds_spin(16, 1, 'L_pub')
    issue_tile(SETS[1])
    e('s_branch L_wo')
    e.c("wave 0: sum the 4 partial projections, publish q, second window tile, poll the group's q")
    e.lab('L_w0')
    e('''
    s_lshl_b32 s59, s40, 6
    s_lshl_b32 s60, s41, 2
    s_add_u32 s59, s59, s60
    s_lshr_b32 s60, s55, 2
    s_add_u32 s59, s59, s60
    s_lshl_b32 s59, s59, 9
    s_and_b32 s60, s55, 3
    s_lshl_b32 s60, s60, 7
    s_add_u32 s59, s59, s60
    ''')
    e(f's_add_u32 s59, s59, {WS_QG}')
    e('''
    v_bfe_u32 v6, v1, 4, 1
    v_lshlrev_b32 v8, 14, v6
    v_lshl_add_u32 v8, v4, 3, v8
    v_add_u32 v8, s59, v8
    v_lshlrev_b32 v7, 7, v6
    v_lshl_add_u32 v7, v4, 3, v7
    ''')
    e(f'v_add_u32 v7, {L_SM}, v7')
    e('''
    s_lshl_b32 s59, s40, 5
    s_lshl_b32 s60, s41, 2
    s_add_u32 s59, s59, s60
    s_lshl_b32 s59, s59, 9
    ''')
    e(f's_add_u32 s59, s59, {WS_QG}')
    e('v_add_u32 v12, s59, v3')
    e(f'v_add_u32 v13, {64*512}, v12')
    lds_spin(4, 4, 'L_lq', sleep=0)
    for w in range(4):
        e(f'ds_read_b64 v[{144+2*w}:{145+2*w}], v7 offset:{R_QP + w*256}')
    e('s_waitcnt lgkmcnt(0)')
    for k in range(2):
        e(f'v_add_f32 v{144+k}, v{144+k}, v{146+k}')
        e(f'v_add_f32 v{148+k}, v{148+k}, v{150+k}')
    for k in range(2):
        e(f'v_add_f32 v{144+k}, v{144+k}, v{148+k}')
    e('''
    v_cvt_pk_bf16_f32 v10, v144, v145
    v_mov_b32 v11, s42
    s_mov_b32 exec_hi, 0
    global_store_dwordx2 v8, v[10:11], s[28:29] sc1
    s_mov_b32 exec_hi, -1
    ds_write_b32 v29, v30 offset:16
    ''')
    stamp(2)
    issue_tile(SETS[1])
    if o['noq']:
        e('s_branch L_qok')
    e(f's_waitcnt vmcnt({o["pollwait"]})')
    e(f's_mov_b32 s66, {SPIN}')
    e.lab('L_qpoll')
    e('''
    global_load_dwordx4 v[144:147], v12, s[28:29] sc1
    global_load_dwordx4 v[148:151], v12, s[28:29] offset:1024 sc1
    global_load_dwordx4 v[152:155], v13, s[28:29] sc1
    global_load_dwordx4 v[156:159], v13, s[28:29] offset:1024 sc1
    s_waitcnt vmcnt(0)
    ''')
    e('v_cmp_eq_u32 vcc, s42, v145')
    for r in (147, 149, 151, 153, 155, 157, 159):
        e(f'v_cmp_eq_u32 s[64:65], s42, v{r}')
        e('s_and_b64 vcc, vcc, s[64:65]')
    e('''
    s_cmp_eq_u64 vcc, -1
    s_cbranch_scc1 L_qok
    s_sub_u32 s66, s66, 1
    s_cbranch_scc1 L_qok
    s_branch L_qpoll
    ''')
    e.lab('L_qok')
    stamp(3)
    e('v_lshlrev_b32 v6, 3, v1')
    for u in range(4):
        r = 144 + 4*u
        off = L_SM + R_Q + (u >> 1)*1024 + (u & 1)*512
        e(f'v_add_u32 v7, {off}, v6')
        e(f'ds_write2_b32 v7, v{r}, v{r+2} offset0:0 offset1:1')
    e('ds_write_b32 v29, v30 offset:8')
    e.c('wo slices (128 rows x 128 B for A and for B) -> LDS, 8 DMA instructions per wave')
    e.lab('L_wo')
    e('''
    v_lshrrev_b32 v10, 4, v1
    v_lshlrev_b32 v10, 10, v10
    v_lshl_add_u32 v10, v4, 4, v10
    s_lshl_b32 s59, s58, 17
    s_lshl_b32 s60, s3, 15
    s_add_u32 s59, s59, s60
    s_lshr_b32 s60, s57, 2
    s_lshl_b32 s60, s60, 12
    s_add_u32 s59, s59, s60
    s_and_b32 s60, s57, 3
    s_lshl_b32 s60, s60, 8
    s_add_u32 s59, s59, s60
    s_lshl_b32 s60, s3, 12
    ''')
    for p in range(2):
        wo = 12 if p == 0 else 22
        e(f's_add_u32 s52, s{wo}, s59')
        e(f's_addc_u32 s53, s{wo+1}, 0')
        for i in range(4):
            e(f's_add_u32 m0, s60, {L_WO + p*16384 + i*1024}')
            if i > 0:
                e('s_add_u32 s52, s52, 0x2000')
                e('s_addc_u32 s53, s53, 0')
            else:
                e('s_nop 0')
            e(f'global_load_lds_dwordx4 v10, s[52:53] {o["polW"]}')
    set_srd(6, 8)
    if not o['noq']:
        lds_spin(8, 1, 'L_qflag')
    e('''
    v_and_b32 v6, 3, v4
    v_lshlrev_b32 v6, 8, v6
    v_lshl_add_u32 v31, v5, 4, v6
    ''')
    e(f'v_add_u32 v31, {L_SM}, v31')
    for j in range(4):
        e(f'ds_read_b128 {vr(QR+4*j)}, v31 offset:{R_Q + 1024 + 64*j}')
    for r in range(32, 64): e(f'v_mov_b32 v{r}, 0')
    e(f'v_mov_b32 v20, {f2u(-1e30):#x}')
    e('''
    v_mov_b32 v21, 0
    s_mov_b32 s54, 1
    s_mov_b32 s69, 0
    s_mov_b32 s46, 0
    v_mov_b32 v7, 0
    s_lshl_b32 s59, s30, 8
    s_add_u32 s50, s28, s59
    s_addc_u32 s51, s29, 0
    ''')
    e(f's_add_u32 s50, s50, {WS_POOL}')
    e('s_addc_u32 s51, s51, 0')
    e('s_waitcnt lgkmcnt(0)')
    stamp(4)
    def body(S, once=False):
        KA, KB, VA, VB, tk = S['KA'], S['KB'], S['VA'], S['VB'], S['tk']
        W = o['wcnt']
        def wait():
            if not once: e(f's_waitcnt vmcnt({W})')
        def iss(ch):
            if not once: issue(ch, S)
        nc = o['nocomp']
        TL = o['tloc']
        pool = TL < 64
        if not once:
            if pool:
                e('s_cmp_lg_u32 s46, 0')
                e(f's_cbranch_scc1 L_pool{tk}')
            e("""
            s_mov_b64 exec, 1
            ds_add_rtn_u32 v26, v29, v30
            s_mov_b64 exec, -1
            """)
        wait()
        for j in range(4):
            e(f'v_mfma_f32_16x16x32_bf16 v[8:11], {vr(KA+4*j)}, {vr(QR+4*j)}, ' + ('0' if j == 0 else 'v[8:11]'))
        if not once:
            e('s_waitcnt lgkmcnt(0)')
            e(f'v_readfirstlane_b32 s{tk}, v26')
            if pool:
                e(f's_cmp_ge_u32 s{tk}, {TL-4}')
                e(f's_cbranch_scc1 L_sw{tk}')
                e.lab(f'L_swret{tk}')
            tile_off(tk)
            e(f's_cmp_lt_u32 s{tk}, 64')
            e.lab(f'L_join{tk}')
            e('s_cselect_b32 s34, 0x800000, 0')
            e('s_cselect_b32 s38, 0x800000, 0')
        iss('Ka')
        wait()
        for j in range(4):
            e(f'v_mfma_f32_16x16x32_bf16 v[12:15], {vr(KB+4*j)}, {vr(QR+4*j)}, ' + ('0' if j == 0 else 'v[12:15]'))
        iss('Kb')
        if once: e('s_nop 3')
        if nc < 1:
          e("""
        v_max3_f32 v22, v8, v9, v10
        v_max_f32 v22, v22, v11
        s_nop 1
        v_max3_f32 v22, v22, v12, v13
        v_max3_f32 v22, v22, v14, v15
        v_mov_b32 v23, v22
        s_nop 1
        v_permlane32_swap_b32 v23, v22
        v_max_f32 v22, v22, v23
        v_mov_b32 v23, v22
        s_nop 1
        v_permlane16_swap_b32 v23, v22
        v_max_f32 v22, v22, v23
        v_mul_f32 v22, s49, v22
        v_max_f32 v23, v20, v22
        v_sub_f32 v24, v20, v23
        v_exp_f32 v28, v24
        v_mov_b32 v20, v23
          """)
          for i in range(8): e(f'v_fma_f32 v{8+i}, v{8+i}, s49, -v23')
          for i in range(8): e(f'v_exp_f32 v{8+i}, v{8+i}')
          e('v_mul_f32 v21, v21, v28')
          for j in range(0, 16):
            e(f'v_pk_mul_f32 v[{32+2*j}:{33+2*j}], v[{32+2*j}:{33+2*j}], v[28:29] op_sel_hi:[1,0]')
          e("""
        v_add_f32 v24, v8, v9
        v_add_f32 v25, v10, v11
        v_add_f32 v26, v12, v13
        v_add_f32 v27, v14, v15
        v_cvt_pk_bf16_f32 v16, v8, v9
        v_cvt_pk_bf16_f32 v17, v10, v11
        v_cvt_pk_bf16_f32 v18, v12, v13
        v_cvt_pk_bf16_f32 v19, v14, v15
        v_add_f32 v24, v24, v25
        v_add_f32 v26, v26, v27
        v_add_f32 v21, v21, v24
        v_add_f32 v21, v21, v26
          """)
        wait()
        if nc < 1:
          for j in range(8):
            w = j >> 1; sel = 's47' if j % 2 == 0 else 's48'
            e(f'v_perm_b32 v{VT+4*j+0}, v{VA+4*1+w}, v{VA+4*0+w}, {sel}')
            e(f'v_perm_b32 v{VT+4*j+1}, v{VA+4*3+w}, v{VA+4*2+w}, {sel}')
        iss('Va')
        wait()
        if nc < 1:
          for j in range(8):
            w = j >> 1; sel = 's47' if j % 2 == 0 else 's48'
            e(f'v_perm_b32 v{VT+4*j+2}, v{VB+4*1+w}, v{VB+4*0+w}, {sel}')
            e(f'v_perm_b32 v{VT+4*j+3}, v{VB+4*3+w}, v{VB+4*2+w}, {sel}')
        iss('Vb')
        if once: e('s_nop 1')
        if nc < 2:
          for j in range(8):
            e(f'v_mfma_f32_16x16x32_bf16 {vr(32+4*j)}, {vr(VT+4*j)}, v[16:19], {vr(32+4*j)}')
    e.c('tile loop: 32 keys; s54 = 1 while on problem B; s68 = next tile (valid while < 64); s46 = 1 in pool mode')
    e.lab('L_t0')
    body(SETS[0])
    e("""
    s_cmp_eq_u32 s54, 1
    s_cbranch_scc1 L_t1
    s_cmp_lt_u32 s68, 64
    s_cbranch_scc1 L_t0
    s_branch L_flush
    """)
    e.c('second window tile (register set 1; its loads are covered by the waits above)')
    e.lab('L_t1')
    body(SETS[1], once=True)
    e.c('per-wave result (m, l, O) -> LDS')
    e.lab('L_flush')
    e('''
    v_mov_b32 v23, v21
    s_nop 1
    v_permlane32_swap_b32 v23, v21
    v_add_f32 v21, v21, v23
    v_mov_b32 v23, v21
    s_nop 1
    v_permlane16_swap_b32 v23, v21
    v_add_f32 v21, v21, v23
    s_lshl_b32 s59, s54, 2
    s_add_u32 s59, s59, s3
    s_lshl_b32 s59, s59, 11
    v_lshlrev_b32 v6, 9, v4
    v_lshl_add_u32 v6, v5, 4, v6
    v_add_u32 v6, s59, v6
    s_lshl_b32 s59, s54, 7
    s_lshl_b32 s60, s3, 3
    s_add_u32 s59, s59, s60
    ''')
    e(f's_add_u32 s59, s59, {L_SM}')
    e('''
    v_lshlrev_b32 v7, 5, v4
    v_add_u32 v7, s59, v7
    v_mov_b32 v22, v20
    v_mov_b32 v23, v21
    s_mov_b32 exec_lo, 0x000f000f
    s_mov_b32 exec_hi, 0x000f000f
    ''')
    for j in range(8):
        e(f'ds_write_b128 v6, {vr(32+4*j)} offset:{L_RES + 64*j}')
    e('s_mov_b64 exec, 15')
    e(f'ds_write_b64 v7, v[22:23] offset:{R_ST}')
    e('s_mov_b64 exec, -1')
    e('s_cmp_eq_u32 s54, 0')
    e('s_cbranch_scc1 L_tail')
    e.c('problem B done: load Q of A, precompute the addresses of the tail')
    stamp(5)
    for j in range(4):
        e(f'ds_read_b128 {vr(QR+4*j)}, v31 offset:{R_Q + 64*j}')
    e("""
    v_lshrrev_b32 v13, 5, v1
    v_and_b32 v14, 31, v1
    v_lshlrev_b32 v240, 13, v13
    v_lshl_add_u32 v240, v14, 4, v240
    s_lshl_b32 s61, s3, 9
    v_add_u32 v240, s61, v240
    v_lshlrev_b32 v241, 7, v13
    s_lshl_b32 s61, s3, 5
    """)
    e(f's_add_u32 s61, s61, {L_SM}')
    e('v_add_u32 v241, s61, v241')
    e("""
    s_lshl_b32 s61, s30, 2
    s_add_u32 s61, s61, s3
    s_lshl_b32 s61, s61, 4
    s_add_u32 s61, s61, s31
    s_lshl_b32 s62, s61, 9
    """)
    e(f's_add_u32 s62, s62, {WS_PART}')
    e("""
    v_lshlrev_b32 v242, 19, v13
    v_lshl_add_u32 v242, v14, 4, v242
    v_add_u32 v242, s62, v242
    s_lshl_b32 s62, s61, 7
    """)
    e(f's_add_u32 s62, s62, {WS_STAT}')
    e("""
    v_lshlrev_b32 v243, 17, v13
    v_and_b32 v15, 7, v1
    v_lshl_add_u32 v243, v15, 4, v243
    v_add_u32 v243, s62, v243
    """)
    e("""
    s_lshr_b32 s59, s3, 1
    s_and_b32 s60, s3, 1
    s_lshl_b32 s61, s59, 4
    s_lshl_b32 s62, s60, 3
    s_add_u32 s61, s61, s62
    s_add_u32 s61, s61, s41
    s_lshl_b32 s61, s61, 2
    s_add_u32 s61, s61, s56
    s_lshl_b32 s62, s61, 11
    """)
    e(f's_add_u32 s62, s62, {WS_STAT}')
    e("""
    v_and_b32 v244, 3, v1
    v_lshl_add_u32 v244, v244, 2, v5
    v_lshlrev_b32 v244, 7, v244
    v_add_u32 v244, s62, v244
    s_lshl_b32 s62, s61, 13
    s_lshr_b32 s60, s57, 2
    s_lshl_b32 s60, s60, 8
    s_add_u32 s62, s62, s60
    """)
    e(f's_add_u32 s62, s62, {WS_PART}')
    e("""
    v_lshlrev_b32 v245, 9, v5
    v_lshl_add_u32 v245, v4, 4, v245
    v_add_u32 v245, s62, v245
    v_add_u32 v246, 4096, v245
    """)
    e("""
    v_and_b32 v15, 3, v4
    v_lshlrev_b32 v247, 5, v15
    v_lshrrev_b32 v15, 2, v4
    v_lshl_add_u32 v247, v15, 1, v247
    s_lshl_b32 s61, s3, 7
    """)
    e(f's_add_u32 s61, s61, {L_SM}')
    e('v_add_u32 v247, s61, v247')
    e("""
    v_lshrrev_b32 v248, 2, v4
    v_lshl_add_u32 v248, v5, 3, v248
    v_lshlrev_b32 v248, 8, v248
    v_and_b32 v13, 3, v4
    v_lshl_add_u32 v248, v13, 3, v248
    s_lshl_b32 s62, s3, 6
    """)
    e(f's_add_u32 s62, s62, {L_WO}')
    e("""
    v_add_u32 v248, s62, v248
    v_and_b32 v249, 1, v4
    v_lshlrev_b32 v249, 7, v249
    v_lshl_add_u32 v249, v5, 4, v249
    """)
    e(f'v_add_u32 v249, {L_SM}, v249')
    e("""
    s_and_b32 s61, s57, 3
    s_lshl_b32 s61, s61, 3
    s_lshl_b32 s62, s3, 1
    s_add_u32 s61, s61, s62
    s_lshl_b32 s61, s61, 6
    s_lshl_b32 s62, s58, 1
    s_add_u32 s61, s61, s62
    s_lshr_b32 s62, s57, 2
    s_add_u32 s61, s61, s62
    s_lshl_b32 s61, s61, 7
    """)
    e(f's_add_u32 s63, s61, {WS_OUTP}')
    e("""
    v_and_b32 v250, 1, v4
    v_lshlrev_b32 v250, 6, v250
    v_lshl_add_u32 v250, v5, 4, v250
    v_add_u32 v250, s63, v250
    v_add_u32 v253, 0x2000, v250
    v_add_u32 v254, 0x40000, v250
    v_add_u32 v255, 0x42000, v250
    s_lshl_b32 s59, s2, 13
    """)
    e(f's_add_u32 s59, s59, {WS_OUTP}')
    e("""
    v_add_u32 v251, s59, v3
    v_bfe_u32 v252, v1, 2, 1
    v_lshlrev_b32 v252, 10, v252
    v_and_b32 v13, 3, v1
    v_lshl_add_u32 v252, v13, 2, v252
    s_lshl_b32 s59, s2, 4
    v_add_u32 v252, s59, v252
    v_lshlrev_b32 v252, 1, v252
    """)
    for r in range(32, 64): e(f'v_mov_b32 v{r}, 0')
    e(f'v_mov_b32 v20, {f2u(-1e30):#x}')
    e('''
    v_mov_b32 v21, 0
    s_mov_b32 s54, 0
    s_waitcnt lgkmcnt(0)
    s_cmp_lt_u32 s68, 64
    s_cbranch_scc1 L_t0
    s_branch L_flush
    ''')
    e.c('out-of-line pieces of the tile loop: switch to the pool, pool-mode head')
    if o['tloc'] < 64:
        TL = o['tloc']; NP = 16*(64-TL)
        for S in SETS[:1]:
            tk = S['tk']
            e.lab(f'L_sw{tk}')
            e('s_mov_b32 s46, 1')
            e('v_mov_b32 v7, 0')
            e('s_mov_b64 exec, 1')
            e('global_atomic_add v6, v7, v30, s[50:51] sc0 sc1')
            e('s_mov_b64 exec, -1')
            e(f's_branch L_swret{tk}')
            e.lab(f'L_pool{tk}')
            e(f's_waitcnt vmcnt({o["wcnt"]})')
            e('v_readfirstlane_b32 s59, v6')
            for j in range(4):
                e(f'v_mfma_f32_16x16x32_bf16 v[8:11], {vr(S["KA"]+4*j)}, {vr(QR+4*j)}, ' + ('0' if j == 0 else 'v[8:11]'))
            e('s_and_b32 s44, s59, 15')
            e('s_lshl_b32 s44, s44, 19')
            e('s_lshr_b32 s60, s59, 4')
            e(f's_add_u32 s60, s60, {TL}')
            e('s_lshl_b32 s60, s60, 13')
            e('s_add_u32 s44, s44, s60')
            e('s_add_u32 s45, s44, 4096')
            e(f's_cmp_lt_u32 s59, {NP}')
            e(f's_cselect_b32 s{tk}, 0, 64')
            e(f's_cbranch_scc0 L_join{tk}')
            e('s_mov_b64 exec, 1')
            e('global_atomic_add v6, v7, v30, s[50:51] sc0 sc1')
            e('s_mov_b64 exec, -1')
            e(f's_branch L_join{tk}')
    e.c('==== tail: reduce the 4 waves (A in lanes 0..31, B in lanes 32..63 of head = wave), publish')
    e.lab('L_tail')
    stamp(6)
    e('v_mov_b32 v26, 0xfffff000')
    e('s_and_b32 s63, s42, 0xfff')
    e('s_waitcnt vmcnt(0) lgkmcnt(0)')
    e('s_barrier')
    stamp(7)
    for k in range(2):
        e(f'ds_read_b128 {vr(64+4*k)}, v241 offset:{R_ST + 16*k}')
    for w in range(4):
        e(f'ds_read_b128 {vr(72+4*w)}, v240 offset:{L_RES + w*2048}')
    e('s_waitcnt lgkmcnt(%d)' % (0 if stamps else 4))
    e("""
    v_max3_f32 v88, v64, v66, v68
    v_max_f32 v88, v88, v70
    v_sub_f32 v64, v64, v88
    v_sub_f32 v66, v66, v88
    v_sub_f32 v68, v68, v88
    v_sub_f32 v70, v70, v88
    v_exp_f32 v64, v64
    v_exp_f32 v66, v66
    v_exp_f32 v68, v68
    v_exp_f32 v70, v70
    v_mov_b32 v92, v88
    v_mul_f32 v90, v64, v65
    v_fmac_f32 v90, v66, v67
    v_fmac_f32 v90, v68, v69
    v_fmac_f32 v90, v70, v71
    v_mov_b32 v93, s42
    s_waitcnt lgkmcnt(0)
    """)
    for k in range(4): e(f'v_mul_f32 v{96+k}, v64, v{72+k}')
    for w in range(1, 4):
        for k in range(4): e(f'v_fmac_f32 v{96+k}, v{64+2*w}, v{72+4*w+k}')
    e('v_mov_b32 v94, v90')
    e('v_mov_b32 v95, s42')
    for k in range(4): e(f'v_and_or_b32 v{96+k}, v{96+k}, v26, s63')
    e('global_store_dwordx4 v242, v[96:99], s[28:29] sc1')
    e("""
    s_mov_b32 exec_lo, 0xff
    s_mov_b32 exec_hi, 0xff
    global_store_dwordx4 v243, v[92:95], s[28:29] sc1
    s_mov_b64 exec, -1
    """)
    stamp(8)
    e.c('combine the 16 splits of (problem = wave>>1, batch = wave&1, head hh): light poll on the statistics, then data + statistics')
    for p in range(2):
        for t in range(2):
            for kk in range(2):
                for h in range(2):
                    r = 128 + ((p*2+t)*2+kk)*4 + 2*h
                    e(f'ds_read_b64_tr_b16 v[{r}:{r+1}], v248 offset:{p*16384 + kk*8192 + h*1024 + t*32}')
    e(f's_mov_b32 s66, {SPIN}')
    e.lab('L_spoll')
    e("""
    global_load_dwordx4 v[100:103], v244, s[28:29] sc1
    s_waitcnt vmcnt(0)
    v_cmp_eq_u32 vcc, s42, v101
    v_cmp_eq_u32 s[64:65], s42, v103
    s_and_b64 vcc, vcc, s[64:65]
    s_and_b32 s59, vcc_lo, 0x000f000f
    s_and_b32 s60, vcc_hi, 0x000f000f
    s_bcnt1_i32_b32 s59, s59
    s_bcnt1_i32_b32 s60, s60
    s_add_u32 s59, s59, s60
    """)
    e(f's_cmp_ge_u32 s59, {o["p2min"]}')
    e('s_cbranch_scc1 L_sok')
    e('s_sub_u32 s66, s66, 1')
    e('s_cbranch_scc1 L_sok')
    e(f's_sleep {o["psleep"]}')
    e('s_branch L_spoll')
    e.lab('L_sok')
    stamp(9)
    e.lab('L_dpoll')
    D = 64
    e('global_load_dwordx4 v[100:103], v244, s[28:29] sc1')
    for i in range(4):
        va = 'v245' if i < 2 else 'v246'
        e(f'global_load_dwordx4 {vr(D+4*i)}, {va}, s[28:29] offset:{(i%2)*2048} sc1')
    e("""
    s_waitcnt vmcnt(4)
    v_max_f32_dpp v12, v100, v100 row_ror:2 row_mask:0xf bank_mask:0xf
    v_cmp_eq_u32 s[60:61], s42, v101
    s_nop 0
    v_max_f32_dpp v13, v12, v12 row_ror:1 row_mask:0xf bank_mask:0xf
    v_cmp_eq_u32 s[64:65], s42, v103
    v_mov_b32 v12, v13
    s_nop 1
    v_permlane16_swap_b32 v12, v13
    v_max_f32 v13, v13, v12
    v_mov_b32 v16, 0
    v_mov_b32 v12, v13
    s_nop 1
    v_permlane32_swap_b32 v12, v13
    v_max_f32 v13, v13, v12
    v_sub_f32 v14, v100, v13
    v_exp_f32 v14, v14
    v_mov_b32 v17, 0
    v_mul_f32 v15, v14, v102
    v_mov_b32 v8, 0
    v_mov_b32 v9, 0
    v_add_f32_dpp v12, v15, v15 row_ror:2 row_mask:0xf bank_mask:0xf
    s_and_b64 s[60:61], s[60:61], s[64:65]
    s_nop 0
    v_add_f32_dpp v15, v12, v12 row_ror:1 row_mask:0xf bank_mask:0xf
    s_nop 0
    v_mov_b32 v12, v15
    s_nop 1
    v_permlane16_swap_b32 v12, v15
    v_add_f32 v15, v15, v12
    s_nop 0
    v_mov_b32 v12, v15
    s_nop 1
    v_permlane32_swap_b32 v12, v15
    v_add_f32 v15, v15, v12
    v_rcp_f32 v15, v15
    s_nop 0
    v_mul_f32 v14, v14, v15
    s_waitcnt vmcnt(0)
    """)
    regs = list(range(D, D+16))
    e(f'v_bitop3_b32 v12, v{regs[0]}, v{regs[1]}, v{regs[2]} bitop3:0x80')
    e(f'v_or3_b32 v13, v{regs[0]}, v{regs[1]}, v{regs[2]}')
    k = 3
    while k + 1 < 16:
        e(f'v_bitop3_b32 v12, v12, v{regs[k]}, v{regs[k+1]} bitop3:0x80')
        e(f'v_or3_b32 v13, v13, v{regs[k]}, v{regs[k+1]}'); k += 2
    e(f'v_and_b32 v12, v12, v{regs[15]}')
    e(f'v_or_b32 v13, v13, v{regs[15]}')
    e("""
    v_xor_b32 v12, s63, v12
    v_xor_b32 v13, s63, v13
    v_or_b32 v12, v12, v13
    v_and_b32 v12, 0xfff, v12
    v_cmp_eq_u32 vcc, 0, v12
    s_and_b64 vcc, vcc, s[60:61]
    s_cmp_eq_u64 vcc, -1
    s_cbranch_scc1 L_dok
    s_sub_u32 s66, s66, 1
    s_cbranch_scc1 L_dok
    s_branch L_dpoll
    """)
    e.lab('L_dok')
    acc = [8, 9, 16, 17]
    for i in range(4):
        for k in range(4):
            e(f'v_fmac_f32_dpp v{acc[k]}, v14, v{D+4*i+k} row_newbcast:{i} row_mask:0xf bank_mask:0xf')
    for k in range(4): e(f'v_mov_b32 v{20+k}, v{acc[k]}')
    e('s_nop 0')
    for k in range(4): e(f'v_permlane16_swap_b32 v{20+k}, v{acc[k]}')
    for k in range(4): e(f'v_add_f32 v{acc[k]}, v{acc[k]}, v{20+k}')
    for k in range(4): e(f'v_mov_b32 v{20+k}, v{acc[k]}')
    e('s_nop 0')
    for k in range(4): e(f'v_permlane32_swap_b32 v{20+k}, v{acc[k]}')
    for k in range(4): e(f'v_add_f32 v{acc[k]}, v{acc[k]}, v{20+k}')
    e('v_cvt_pk_bf16_f32 v18, v8, v9')
    e('v_cvt_pk_bf16_f32 v19, v16, v17')
    e(f'ds_write_b16 v247, v18 offset:{R_O}')
    e(f'ds_write_b16_d16_hi v247, v18 offset:{R_O+8}')
    e(f'ds_write_b16 v247, v19 offset:{R_O+16}')
    e(f'ds_write_b16_d16_hi v247, v19 offset:{R_O+24}')
    e.c('out-projection: 64 input features of head h onto 2 x 16 columns per wave, both problems')
    e('s_waitcnt lgkmcnt(0)')
    e('s_barrier')
    stamp(10)
    for p in range(2):
        for kk in range(2):
            e(f'ds_read_b128 {vr(96+8*p+4*kk)}, v249 offset:{R_O + p*256 + kk*64}')
    e('s_waitcnt lgkmcnt(0)')
    for kk in range(2):
        for p in range(2):
            for t in range(2):
                d = 8 + 4*(p*2+t)
                e(f'v_mfma_f32_16x16x32_bf16 {vr(d)}, {vr(128 + ((p*2+t)*2+kk)*4)}, {vr(96+8*p+4*kk)}, ' + ('0' if kk == 0 else vr(d)))
    e("""
    s_mov_b32 exec_lo, 0x00030003
    s_mov_b32 exec_hi, 0x00030003
    s_nop 2
    """)
    for r in range(8, 24): e(f'v_and_or_b32 v{r}, v{r}, v26, s63')
    e("""
    global_store_dwordx4 v250, v[8:11], s[28:29] sc1
    global_store_dwordx4 v253, v[12:15], s[28:29] sc1
    global_store_dwordx4 v254, v[16:19], s[28:29] sc1
    global_store_dwordx4 v255, v[20:23], s[28:29] sc1
    s_mov_b64 exec, -1
    """)
    stamp(11)
    e.c('final sum over the 32 heads: wave 0 of workgroups 0..63, 16 columns x 2 batches each')
    e('s_cmp_lg_u32 s3, 0')
    e('s_cbranch_scc1 ' + ('L_fin' if stamps else 'L_end'))
    e('s_cmp_ge_u32 s2, %d' % (32 if o['aonly'] else 64))
    e('s_cbranch_scc1 L_fin')
    e(f's_mov_b32 s66, {SPIN}')
    e('v_add_u32 v6, 4096, v251')
    e.lab('L_opoll')
    for i in range(8):
        va = 'v251' if i < 4 else 'v6'
        e(f'global_load_dwordx4 {vr(64+4*i)}, {va}, s[28:29] offset:{(i%4)*1024} sc1')
    e('s_waitcnt vmcnt(0)')
    e('v_bitop3_b32 v12, v64, v65, v66 bitop3:0x80')
    e('v_or3_b32 v13, v64, v65, v66')
    k = 67
    while k + 1 < 96:
        e(f'v_bitop3_b32 v12, v12, v{k}, v{k+1} bitop3:0x80')
        e(f'v_or3_b32 v13, v13, v{k}, v{k+1}'); k += 2
    e('v_and_b32 v12, v12, v95')
    e('v_or_b32 v13, v13, v95')
    e("""
    v_xor_b32 v12, s63, v12
    v_xor_b32 v13, s63, v13
    v_or_b32 v12, v12, v13
    v_and_b32 v12, 0xfff, v12
    v_cmp_eq_u32 vcc, 0, v12
    s_cmp_eq_u64 vcc, -1
    s_cbranch_scc1 L_ook
    s_sub_u32 s66, s66, 1
    s_cbranch_scc1 L_ook
    s_branch L_opoll
    """)
    e.lab('L_ook')
    for k in range(4):
        e(f'v_add_f32 v{64+k}, v{64+k}, v{68+k}')
        e(f'v_add_f32 v{72+k}, v{72+k}, v{76+k}')
        e(f'v_add_f32 v{80+k}, v{80+k}, v{84+k}')
        e(f'v_add_f32 v{88+k}, v{88+k}, v{92+k}')
    for k in range(4):
        e(f'v_add_f32 v{64+k}, v{64+k}, v{72+k}')
        e(f'v_add_f32 v{80+k}, v{80+k}, v{88+k}')
    for k in range(4): e(f'v_add_f32 v{64+k}, v{64+k}, v{80+k}')
    e('s_nop 0')
    for k in range(4): e(f'v_add_f32_dpp v{68+k}, v{64+k}, v{64+k} row_ror:8 row_mask:0xf bank_mask:0xf')
    for k in range(4): e(f'v_mov_b32 v{72+k}, v{68+k}')
    e('s_nop 0')
    for k in range(4): e(f'v_permlane16_swap_b32 v{72+k}, v{68+k}')
    for k in range(4): e(f'v_add_f32 v{68+k}, v{68+k}, v{72+k}')
    for k in range(4): e(f'v_mov_b32 v{72+k}, v{68+k}')
    e('s_nop 0')
    for k in range(4): e(f'v_permlane32_swap_b32 v{72+k}, v{68+k}')
    for k in range(4): e(f'v_add_f32 v{68+k}, v{68+k}, v{72+k}')
    e("""
    v_cvt_pk_bf16_f32 v64, v68, v69
    v_cvt_pk_bf16_f32 v65, v70, v71
    s_mov_b64 exec, 0xff
    global_store_dwordx2 v252, v[64:65], s[24:25] OUTPOL
    s_mov_b64 exec, -1
    """)
    e('''
    s_cmp_lg_u32 s2, 0
    s_cbranch_scc1 L_fin
    s_add_u32 s59, s43, 1
    v_mov_b32 v7, s59
    v_mov_b32 v8, 0
    s_mov_b64 exec, 1
    ''')
    e(f'global_store_dword v8, v7, s[28:29] offset:{WS_EPOCH} sc1')
    e('s_mov_b64 exec, -1')
    e.lab('L_fin')
    if o['holdus']:
        e('s_cmp_lg_u32 s2, 0')
        e('s_cbranch_scc1 L_end')
        e('s_waitcnt vmcnt(0) lgkmcnt(0)')
        e('s_memrealtime s[72:73]')
        e('s_waitcnt lgkmcnt(0)')
        e('s_sub_u32 s74, s72, s70')
        e(f's_mul_i32 s74, s74, {o["holdmul"]}')
        e(f's_add_u32 s74, s74, {o["holdus"]*100}')
        e.lab('L_hold')
        e('s_memrealtime s[72:73]')
        e('s_waitcnt lgkmcnt(0)')
        e('s_sub_u32 s75, s72, s70')
        e('s_cmp_lt_u32 s75, s74')
        e('s_cbranch_scc1 L_hold')
    if stamps:
        e('s_memrealtime s[94:95]')
        e('s_waitcnt lgkmcnt(0)')
        e('s_lshl_b32 s59, s2, 3')
        e('s_add_u32 s59, s59, s3')
        e(f's_mul_i32 s59, s59, {16*8}')
        e(f's_add_u32 s59, s59, {WS_STAMP}')
        e('v_mov_b32 v6, s59')
        e('s_mov_b64 exec, 1')
        for i in range(16):
            e(f'v_mov_b32 v{10+2*i}, s{70+2*i}')
            e(f'v_mov_b32 v{11+2*i}, s{71+2*i}')
        for i in range(16):
            e(f'global_store_dwordx2 v6, v[{10+2*i}:{11+2*i}], s[28:29] offset:{8*i}')
    e.lab('L_end')
    e('s_endpgm')
    e.raw('.section .rodata,"a"')
    e.raw('.p2align 6')
    e.raw(f'.amdhsa_kernel {KN}_kernel')
    e.raw('  .amdhsa_next_free_vgpr 256')
    e.raw('  .amdhsa_next_free_sgpr 102')
    e.raw('  .amdhsa_accum_offset 256')
    e.raw('  .amdhsa_group_segment_fixed_size 0')
    e.raw('  .amdhsa_kernarg_size 104')
    e.raw('  .amdhsa_user_sgpr_count 2')
    e.raw('  .amdhsa_user_sgpr_kernarg_segment_ptr 1')
    e.raw('  .amdhsa_system_sgpr_workgroup_id_x 1')
    e.raw('.end_amdhsa_kernel')
    open(path, 'w').write(('\n'.join(e.L) + '\n').replace('OUTPOL', o['outpol']))

if __name__ == '__main__':
    gen('k20.s')
    gen('k20s.s', stamps=True)
```

```python
import sys, struct

KN = 'concat_heads__gqa_block_cached__sliding_block_cached__decode'

def f2u(x):
    return struct.unpack('<I', struct.pack('<f', x))[0]

WS_EPOCH = 0x0
WS_QG    = 0x1000
WS_PART  = 0x20000
WS_STAT  = 0x120000
WS_OUTP  = 0x160000
WS_POOL  = 0x1E0000
WS_STAMP = 512 << 20
L_WQ  = 0x0
L_RES = 0x0
L_WO  = 0x8000
L_SM  = 0x10000
R_ST  = 0x000
R_QP  = 0x200
R_Q   = 0xA00
R_O   = 0x1200
R_CNT = 0x1600
LDS_BYTES = 86016

TAGC = 0x9E3779B9
SPIN = 1 << 19


HEADER = """; Fused GQA decode attention (A: 32768 keys, B: last 4096 keys) + head concat + output projection.
;     to each other through d_ws as 8-byte {2 x bf16, tag} granules; tag = (epoch word found in d_ws) + constant,
;     as {m, tag} {l, tag} granules; consumers re-read until every word they use carries the tag of this launch.
"""

class A:
    def __init__(self):
        self.L = []
    def __call__(self, s):
        for line in s.strip('\n').split('\n'):
            line = line.strip()
            if line:
                self.L.append('  ' + line)
    def lab(self, s):
        self.L.append(s + ':')
    def raw(self, s):
        self.L.append(s)
    def c(self, s):
        for line in s.strip('\n').split('\n'):
            self.L.append('  ; ' + line.strip())

def vr(a, n=4):
    return f'v[{a}:{a+n-1}]'

SETS = [dict(KA=80, KB=96, VA=112, VB=128, tk=68), dict(KA=176, KB=192, VA=208, VB=224, tk=69)]
VT = 144
QR = 64

def gen(path, stamps=False, opts=None):
    o = dict(chk=24, pollwait=16, t1gate=True, rot=0, touch=0, polB='nt', polW='nt', polA='nt', map='g16', noq=False, nowo=False, nocomp=0, p2min=15, outpol='', holdus=0, holdmul=0, tloc=58, wcnt=12, aonly=False, psleep=2)
    o.update(opts or {})
    e = A()
    def stamp(i):
        if stamps:
            e(f's_memrealtime s[{70+2*i}:{71+2*i}]')
    def lds_spin(off, val, label, sleep=1):
        e(f's_mov_b32 s66, {SPIN}')
        e.lab(label)
        e(f'ds_read_b32 v27, v29 offset:{off}')
        e('s_waitcnt lgkmcnt(0)')
        e('v_readfirstlane_b32 s59, v27')
        e(f's_cmp_eq_u32 s59, {val}')
        e(f's_cbranch_scc1 {label}_ok')
        if sleep: e(f's_sleep {sleep}')
        e('s_sub_u32 s66, s66, 1')
        e(f's_cbranch_scc0 {label}')
        e.lab(label + '_ok')

    def touch_block(lab):
        e('s_cmp_lg_u32 s3, 3')
        e(f's_cbranch_scc1 {lab}')
        e('s_lshl_b32 s59, s30, 23')
        e('s_lshl_b32 s60, s31, 19')
        e('s_add_u32 s59, s59, s60')
        e('v_mov_b32 v26, s59')
        e('s_lshl_b32 s59, s40, 4')
        e('s_add_u32 s59, s59, s31')
        e('s_lshr_b32 s59, s59, 3')
        e('s_lshl_b32 s60, s41, 2')
        e('s_add_u32 s59, s59, s60')
        e('s_lshl_b32 s59, s59, 17')
        e('v_mov_b32 v27, s59')
        e('s_mov_b64 exec, 1')
        e('global_load_dword v244, v26, s[6:7] nt')
        e('global_load_dword v245, v26, s[8:9] nt')
        e('global_load_dword v246, v27, s[12:13] nt')
        e('global_load_dword v247, v27, s[22:23] nt')
        e('global_load_dword v248, v22, s[24:25]')
        e('s_mov_b64 exec, -1')
        e.lab(lab)
    for line in HEADER.strip('\n').split('\n'): e.raw(line)
    e.raw(f'; @launch grid=(256,1,1) block=(256,1,1) lds={LDS_BYTES}')
    e.raw('.amdgcn_target "amdgcn-amd-amdhsa--gfx950"')
    e.raw('.text')
    e.raw(f'.globl {KN}_kernel')
    e.raw('.p2align 8')
    e.raw(f'.type {KN}_kernel,@function')
    e.raw(f'{KN}_kernel:')
    e.c('workgroups past the 256 that carry work exit at once')
    e('s_cmp_ge_u32 s2, 256')
    e('s_cbranch_scc1 L_end')
    if stamps:
        for i in range(70, 102): e(f's_mov_b32 s{i}, 0')
    stamp(0)
    if o['holdus']:
        e('s_memrealtime s[70:71]')
    e('''
    s_load_dwordx16 s[4:19], s[0:1], 0
    s_load_dwordx8 s[20:27], s[0:1], 64
    s_load_dwordx2 s[28:29], s[0:1], 96
    v_lshrrev_b32 v4, 6, v0
    v_and_b32 v1, 63, v0
    v_readfirstlane_b32 s3, v4
    ''')
    if o['map'] == 'g16':
        e('s_lshr_b32 s30, s2, 4')
        e('s_and_b32 s31, s2, 15')
    else:
        e('s_lshr_b32 s31, s2, 3')
        e('s_lshr_b32 s30, s31, 4')
        e('s_lshl_b32 s30, s30, 3')
        e('s_and_b32 s59, s2, 7')
        e('s_add_u32 s30, s30, s59')
        e('s_and_b32 s31, s31, 15')
    e('''
    s_lshr_b32 s40, s30, 3
    s_and_b32 s41, s30, 7
    v_and_b32 v4, 15, v1
    v_lshrrev_b32 v5, 4, v1
    v_lshlrev_b32 v3, 4, v1
    v_mov_b32 v22, 0
    v_mov_b32 v23, 0
    ''')
    e(f'v_mov_b32 v29, {L_SM + R_CNT}')
    e('''
    s_cmp_lg_u32 s3, 0
    s_cbranch_scc1 L_noinit
    v_mov_b32 v8, 0
    v_mov_b32 v9, 0
    v_mov_b32 v10, 0
    v_mov_b32 v11, 0
    ds_write_b128 v29, v[8:11]
    ds_write_b64 v29, v[8:9] offset:16
    ''')
    e.c('lane constants: v1 lane, v2 K offset (row 4*(m&3)+(m>>2), 16 B slab), v3 lane*16, v4 lane&15, v5 lane>>4')
    e.lab('L_noinit')
    e('''
    v_and_b32 v6, 3, v4
    v_lshrrev_b32 v7, 2, v4
    v_lshl_add_u32 v6, v6, 2, v7
    v_lshlrev_b32 v6, 8, v6
    v_lshl_add_u32 v2, v5, 4, v6
    v_mov_b32 v30, 1
    v_lshrrev_b32 v24, 2, v1
    v_lshlrev_b32 v24, 13, v24
    v_and_b32 v11, 3, v1
    v_lshl_add_u32 v24, v11, 4, v24
    v_and_b32 v25, 1, v1
    v_lshlrev_b32 v25, 10, v25
    v_lshl_add_u32 v25, v5, 4, v25
    s_lshl_b32 s59, s3, 8
    v_add_u32 v25, s59, v25
    ''')
    if o['map'] == 'g16':
        e('s_and_b32 s55, s31, 7')
        e('s_lshl_b32 s55, s55, 1')
        e('s_lshr_b32 s59, s31, 3')
        e('s_or_b32 s55, s55, s59')
    else:
        e('s_mov_b32 s55, s31')
    e('''
    s_lshl_b32 s61, s3, 20
    s_lshl_b32 s60, s41, 10
    s_add_u32 s61, s61, s60
    s_lshl_b32 s60, s55, 6
    s_add_u32 s61, s61, s60
    s_lshl_b32 s62, s3, 13
    ''')
    e('s_waitcnt lgkmcnt(0)')
    e('s_barrier')
    stamp(13)
    e('''
    s_cmp_eq_u32 s40, 0
    s_cselect_b32 s52, s10, s20
    s_cselect_b32 s53, s11, s21
    s_cselect_b32 s50, s4, s14
    s_cselect_b32 s51, s5, s15
    s_add_u32 s52, s52, s61
    s_addc_u32 s53, s53, 0
    ''')
    e.c('the pool counter of the group is zeroed by wave 0 of split 0; its q granules are published after this store completes')
    e('s_lshl_b32 s59, s31, 2')
    e('s_or_b32 s59, s59, s3')
    e('s_cmp_lg_u32 s59, 0')
    e('s_cbranch_scc1 L_nopool')
    e('s_lshl_b32 s59, s30, 8')
    e(f's_add_u32 s59, s59, {WS_POOL}')
    e('v_mov_b32 v26, s59')
    e('s_mov_b64 exec, 1')
    e('global_store_dword v26, v22, s[28:29] sc1')
    e('s_mov_b64 exec, -1')
    e.lab('L_nopool')
    e.c('wq slice (128 rows x 64 B per wave) -> LDS, x fragments, epoch word')
    for i in range(8):
        e(f's_add_u32 m0, s62, {L_WQ + i*1024}')
        if i > 0:
            e('s_add_u32 s52, s52, 0x20000')
            e('s_addc_u32 s53, s53, 0')
        else:
            e('s_nop 0')
        e(f'global_load_lds_dwordx4 v24, s[52:53] {o["polW"]}')
    for kk in range(4):
        e(f'global_load_dwordx4 {vr(144+4*kk)}, v25, s[50:51] offset:{64*kk}')
    e(f'global_load_dword v31, v22, s[28:29] offset:{WS_EPOCH} sc1')
    if o['touch'] == 1: touch_block('L_nt1')

    def set_srd(kp, vp):
        e('s_lshl_b32 s59, s30, 23')
        e(f's_add_u32 s32, s{kp}, s59')
        e(f's_addc_u32 s33, s{kp+1}, 0')
        e('s_and_b32 s33, s33, 0xffff')
        e(f's_add_u32 s36, s{vp}, s59')
        e(f's_addc_u32 s37, s{vp+1}, 0')
        e('s_and_b32 s37, s37, 0xffff')
        e('''
        s_mov_b32 s34, 0x800000
        s_mov_b32 s35, 0x20000
        s_mov_b32 s38, 0x800000
        s_mov_b32 s39, 0x20000
        ''')
    def issue(chunk, S, pol=None):
        pol = o['polA'] if pol is None else pol
        if chunk == 'Ka':
            for j in range(4): e(f'buffer_load_dwordx4 {vr(S["KA"]+4*j)}, v2, s[32:35], s44 offen offset:{64*j} {pol}')
        elif chunk == 'Kb':
            for j in range(4): e(f'buffer_load_dwordx4 {vr(S["KB"]+4*j)}, v2, s[32:35], s45 offen offset:{64*j} {pol}')
        elif chunk == 'Va':
            for i in range(4): e(f'buffer_load_dwordx4 {vr(S["VA"]+4*i)}, v3, s[36:39], s44 offen offset:{1024*i} {pol}')
        elif chunk == 'Vb':
            for i in range(4): e(f'buffer_load_dwordx4 {vr(S["VB"]+4*i)}, v3, s[36:39], s45 offen offset:{1024*i} {pol}')
    def issue_tile(S):
        for ch in ('Ka', 'Kb', 'Va', 'Vb'): issue(ch, S, o['polB'])
    def tile_off(tkreg):
        if o['rot']:
            e(f's_add_u32 s44, s{tkreg}, s46')
            e('s_and_b32 s44, s44, 63')
            e('s_lshl_b32 s44, s44, 13')
        else:
            e(f's_lshl_b32 s44, s{tkreg}, 13')
        e('s_add_u32 s44, s44, s67')
        e('s_add_u32 s45, s44, 4096')
    e.c('first window tile (problem B) -> register set 0')
    set_srd(16, 18)
    e('''
    s_lshl_b32 s44, s31, 16
    s_lshl_b32 s60, s3, 13
    s_add_u32 s44, s44, s60
    ''')
    e(f's_add_u32 s44, s44, {(32768-4096)*256}')
    e('s_add_u32 s45, s44, 4096')
    issue_tile(SETS[0])
    e('''
    s_add_u32 s44, s44, 0x8000
    s_add_u32 s45, s45, 0x8000
    s_mov_b32 s47, 0x05040100
    s_mov_b32 s48, 0x07060302
    ''')
    c = (128 ** -0.5) * 1.4426950408889634
    e(f's_mov_b32 s49, {f2u(c):#x}')
    e('''
    s_lshl_b32 s56, s40, 4
    s_add_u32 s56, s56, s31
    s_and_b32 s57, s56, 7
    s_lshr_b32 s56, s56, 3
    s_lshl_b32 s58, s41, 2
    s_add_u32 s58, s58, s56
    s_lshl_b32 s67, s31, 19
    ''')
    if o['rot']: e(f's_mul_i32 s46, s2, {o["rot"]}')
    e('''
    v_lshrrev_b32 v6, 2, v4
    v_lshl_add_u32 v6, v5, 3, v6
    v_lshlrev_b32 v6, 6, v6
    v_and_b32 v7, 3, v4
    v_lshl_add_u32 v6, v7, 3, v6
    v_add_u32 v6, s62, v6
    v_lshlrev_b32 v7, 7, v4
    v_lshl_add_u32 v7, v5, 4, v7
    s_lshl_b32 s59, s3, 8
    ''')
    e(f's_add_u32 s59, s59, {L_SM}')
    e('v_add_u32 v7, s59, v7')
    if o['touch'] == 2:
        touch_block('L_nt2')
        e('s_cmp_lg_u32 s3, 3')
        e('s_cbranch_scc1 L_w16')
        e('s_waitcnt vmcnt(21)')
        e('s_branch L_w16d')
        e.lab('L_w16')
        e('s_waitcnt vmcnt(16)')
        e.lab('L_w16d')
    else:
        e('s_waitcnt vmcnt(16)')
    stamp(1)
    e.c('partial q projection: W^T fragments by transposing LDS reads, 8 MFMAs')
    FR = 176
    for kk in range(4):
        for ct in range(2):
            r = FR + (kk*2+ct)*4
            for h in range(2):
                e(f'ds_read_b64_tr_b16 v[{r+2*h}:{r+2*h+1}], v6 offset:{L_WQ + kk*2048 + h*256 + ct*32}')
    e('v_readfirstlane_b32 s43, v31')
    e('s_waitcnt lgkmcnt(0)')
    for kk in range(4):
        for ct in range(2):
            e(f'v_mfma_f32_16x16x32_bf16 {vr(8+4*ct)}, {vr(FR+(kk*2+ct)*4)}, {vr(144+4*kk)}, ' + ('0' if kk == 0 else vr(8+4*ct)))
    e(f's_add_u32 s42, s43, {TAGC:#x}')
    e('''
    s_nop 5
    s_mov_b32 exec_lo, 0x00030003
    s_mov_b32 exec_hi, 0x00030003
    ''')
    e(f'ds_write_b128 v7, v[8:11] offset:{R_QP}')
    e(f'ds_write_b128 v7, v[12:15] offset:{R_QP+64}')
    e('s_mov_b64 exec, 1')
    e('ds_add_u32 v29, v30 offset:4')
    e('s_mov_b64 exec, -1')
    e('s_cmp_eq_u32 s3, 0')
    e('s_cbranch_scc1 L_w0')
    e.c("waves 1..3: (wave 1) clear this workgroup's hand-off slots, then the second window tile once q is published")
    if o['t1gate']:
        lds_spin(16, 1, 'L_pub')
    issue_tile(SETS[1])
    e('s_branch L_wo')
    e.c("wave 0: sum the 4 partial projections, publish q, second window tile, poll the group's q")
    e.lab('L_w0')
    e('''
    s_lshl_b32 s59, s40, 6
    s_lshl_b32 s60, s41, 2
    s_add_u32 s59, s59, s60
    s_lshr_b32 s60, s55, 2
    s_add_u32 s59, s59, s60
    s_lshl_b32 s59, s59, 9
    s_and_b32 s60, s55, 3
    s_lshl_b32 s60, s60, 7
    s_add_u32 s59, s59, s60
    ''')
    e(f's_add_u32 s59, s59, {WS_QG}')
    e('''
    v_bfe_u32 v6, v1, 4, 1
    v_lshlrev_b32 v8, 14, v6
    v_lshl_add_u32 v8, v4, 3, v8
    v_add_u32 v8, s59, v8
    v_lshlrev_b32 v7, 7, v6
    v_lshl_add_u32 v7, v4, 3, v7
    ''')
    e(f'v_add_u32 v7, {L_SM}, v7')
    e('''
    s_lshl_b32 s59, s40, 5
    s_lshl_b32 s60, s41, 2
    s_add_u32 s59, s59, s60
    s_lshl_b32 s59, s59, 9
    ''')
    e(f's_add_u32 s59, s59, {WS_QG}')
    e('v_add_u32 v12, s59, v3')
    e(f'v_add_u32 v13, {64*512}, v12')
    lds_spin(4, 4, 'L_lq', sleep=0)
    for w in range(4):
        e(f'ds_read_b64 v[{144+2*w}:{145+2*w}], v7 offset:{R_QP + w*256}')
    e('s_waitcnt lgkmcnt(0)')
    for k in range(2):
        e(f'v_add_f32 v{144+k}, v{144+k}, v{146+k}')
        e(f'v_add_f32 v{148+k}, v{148+k}, v{150+k}')
    for k in range(2):
        e(f'v_add_f32 v{144+k}, v{144+k}, v{148+k}')
    e('''
    v_cvt_pk_bf16_f32 v10, v144, v145
    v_mov_b32 v11, s42
    s_mov_b32 exec_hi, 0
    global_store_dwordx2 v8, v[10:11], s[28:29] sc1
    s_mov_b32 exec_hi, -1
    ds_write_b32 v29, v30 offset:16
    ''')
    stamp(2)
    issue_tile(SETS[1])
    if o['noq']:
        e('s_branch L_qok')
    e(f's_waitcnt vmcnt({o["pollwait"]})')
    e(f's_mov_b32 s66, {SPIN}')
    e.lab('L_qpoll')
    e('''
    global_load_dwordx4 v[144:147], v12, s[28:29] sc1
    global_load_dwordx4 v[148:151], v12, s[28:29] offset:1024 sc1
    global_load_dwordx4 v[152:155], v13, s[28:29] sc1
    global_load_dwordx4 v[156:159], v13, s[28:29] offset:1024 sc1
    s_waitcnt vmcnt(0)
    ''')
    e('v_cmp_eq_u32 vcc, s42, v145')
    for r in (147, 149, 151, 153, 155, 157, 159):
        e(f'v_cmp_eq_u32 s[64:65], s42, v{r}')
        e('s_and_b64 vcc, vcc, s[64:65]')
    e('''
    s_cmp_eq_u64 vcc, -1
    s_cbranch_scc1 L_qok
    s_sub_u32 s66, s66, 1
    s_cbranch_scc1 L_qok
    s_branch L_qpoll
    ''')
    e.lab('L_qok')
    stamp(3)
    e('v_lshlrev_b32 v6, 3, v1')
    for u in range(4):
        r = 144 + 4*u
        off = L_SM + R_Q + (u >> 1)*1024 + (u & 1)*512
        e(f'v_add_u32 v7, {off}, v6')
        e(f'ds_write2_b32 v7, v{r}, v{r+2} offset0:0 offset1:1')
    e('ds_write_b32 v29, v30 offset:8')
    e.c('wo slices (128 rows x 128 B for A and for B) -> LDS, 8 DMA instructions per wave')
    e.lab('L_wo')
    e('''
    v_lshrrev_b32 v10, 4, v1
    v_lshlrev_b32 v10, 10, v10
    v_lshl_add_u32 v10, v4, 4, v10
    s_lshl_b32 s59, s58, 17
    s_lshl_b32 s60, s3, 15
    s_add_u32 s59, s59, s60
    s_lshr_b32 s60, s57, 2
    s_lshl_b32 s60, s60, 12
    s_add_u32 s59, s59, s60
    s_and_b32 s60, s57, 3
    s_lshl_b32 s60, s60, 8
    s_add_u32 s59, s59, s60
    s_lshl_b32 s60, s3, 12
    ''')
    for p in range(2):
        wo = 12 if p == 0 else 22
        e(f's_add_u32 s52, s{wo}, s59')
        e(f's_addc_u32 s53, s{wo+1}, 0')
        for i in range(4):
            e(f's_add_u32 m0, s60, {L_WO + p*16384 + i*1024}')
            if i > 0:
                e('s_add_u32 s52, s52, 0x2000')
                e('s_addc_u32 s53, s53, 0')
            else:
                e('s_nop 0')
            e(f'global_load_lds_dwordx4 v10, s[52:53] {o["polW"]}')
    set_srd(6, 8)
    if not o['noq']:
        lds_spin(8, 1, 'L_qflag')
    e('''
    v_and_b32 v6, 3, v4
    v_lshlrev_b32 v6, 8, v6
    v_lshl_add_u32 v31, v5, 4, v6
    ''')
    e(f'v_add_u32 v31, {L_SM}, v31')
    for j in range(4):
        e(f'ds_read_b128 {vr(QR+4*j)}, v31 offset:{R_Q + 1024 + 64*j}')
    for r in range(32, 64): e(f'v_mov_b32 v{r}, 0')
    e(f'v_mov_b32 v20, {f2u(-1e30):#x}')
    e('''
    v_mov_b32 v21, 0
    s_mov_b32 s54, 1
    s_mov_b32 s69, 0
    s_mov_b32 s46, 0
    v_mov_b32 v7, 0
    s_lshl_b32 s59, s30, 8
    s_add_u32 s50, s28, s59
    s_addc_u32 s51, s29, 0
    ''')
    e(f's_add_u32 s50, s50, {WS_POOL}')
    e('s_addc_u32 s51, s51, 0')
    e('s_waitcnt lgkmcnt(0)')
    stamp(4)
    def body(S, once=False):
        KA, KB, VA, VB, tk = S['KA'], S['KB'], S['VA'], S['VB'], S['tk']
        W = o['wcnt']
        def wait():
            if not once: e(f's_waitcnt vmcnt({W})')
        def iss(ch):
            if not once: issue(ch, S)
        nc = o['nocomp']
        TL = o['tloc']
        pool = TL < 64
        if not once:
            if pool:
                e('s_cmp_lg_u32 s46, 0')
                e(f's_cbranch_scc1 L_pool{tk}')
            e("""
            s_mov_b64 exec, 1
            ds_add_rtn_u32 v26, v29, v30
            s_mov_b64 exec, -1
            """)
        wait()
        for j in range(4):
            e(f'v_mfma_f32_16x16x32_bf16 v[8:11], {vr(KA+4*j)}, {vr(QR+4*j)}, ' + ('0' if j == 0 else 'v[8:11]'))
        if not once:
            e('s_waitcnt lgkmcnt(0)')
            e(f'v_readfirstlane_b32 s{tk}, v26')
            if pool:
                e(f's_cmp_ge_u32 s{tk}, {TL-4}')
                e(f's_cbranch_scc1 L_sw{tk}')
                e.lab(f'L_swret{tk}')
            tile_off(tk)
            e(f's_cmp_lt_u32 s{tk}, 64')
            e.lab(f'L_join{tk}')
            e('s_cselect_b32 s34, 0x800000, 0')
            e('s_cselect_b32 s38, 0x800000, 0')
        iss('Ka')
        wait()
        for j in range(4):
            e(f'v_mfma_f32_16x16x32_bf16 v[12:15], {vr(KB+4*j)}, {vr(QR+4*j)}, ' + ('0' if j == 0 else 'v[12:15]'))
        iss('Kb')
        if once: e('s_nop 3')
        if nc < 1:
          e("""
        v_max3_f32 v22, v8, v9, v10
        v_max_f32 v22, v22, v11
        s_nop 1
        v_max3_f32 v22, v22, v12, v13
        v_max3_f32 v22, v22, v14, v15
        v_mov_b32 v23, v22
        s_nop 1
        v_permlane32_swap_b32 v23, v22
        v_max_f32 v22, v22, v23
        v_mov_b32 v23, v22
        s_nop 1
        v_permlane16_swap_b32 v23, v22
        v_max_f32 v22, v22, v23
        v_mul_f32 v22, s49, v22
        v_max_f32 v23, v20, v22
        v_sub_f32 v24, v20, v23
        v_exp_f32 v28, v24
        v_mov_b32 v20, v23
          """)
          for i in range(8): e(f'v_fma_f32 v{8+i}, v{8+i}, s49, -v23')
          for i in range(8): e(f'v_exp_f32 v{8+i}, v{8+i}')
          e('v_mul_f32 v21, v21, v28')
          for j in range(0, 16):
            e(f'v_pk_mul_f32 v[{32+2*j}:{33+2*j}], v[{32+2*j}:{33+2*j}], v[28:29] op_sel_hi:[1,0]')
          e("""
        v_add_f32 v24, v8, v9
        v_add_f32 v25, v10, v11
        v_add_f32 v26, v12, v13
        v_add_f32 v27, v14, v15
        v_cvt_pk_bf16_f32 v16, v8, v9
        v_cvt_pk_bf16_f32 v17, v10, v11
        v_cvt_pk_bf16_f32 v18, v12, v13
        v_cvt_pk_bf16_f32 v19, v14, v15
        v_add_f32 v24, v24, v25
        v_add_f32 v26, v26, v27
        v_add_f32 v21, v21, v24
        v_add_f32 v21, v21, v26
          """)
        wait()
        if nc < 1:
          for j in range(8):
            w = j >> 1; sel = 's47' if j % 2 == 0 else 's48'
            e(f'v_perm_b32 v{VT+4*j+0}, v{VA+4*1+w}, v{VA+4*0+w}, {sel}')
            e(f'v_perm_b32 v{VT+4*j+1}, v{VA+4*3+w}, v{VA+4*2+w}, {sel}')
        iss('Va')
        wait()
        if nc < 1:
          for j in range(8):
            w = j >> 1; sel = 's47' if j % 2 == 0 else 's48'
            e(f'v_perm_b32 v{VT+4*j+2}, v{VB+4*1+w}, v{VB+4*0+w}, {sel}')
            e(f'v_perm_b32 v{VT+4*j+3}, v{VB+4*3+w}, v{VB+4*2+w}, {sel}')
        iss('Vb')
        if once: e('s_nop 1')
        if nc < 2:
          for j in range(8):
            e(f'v_mfma_f32_16x16x32_bf16 {vr(32+4*j)}, {vr(VT+4*j)}, v[16:19], {vr(32+4*j)}')
    e.c('tile loop: 32 keys; s54 = 1 while on problem B; s68 = next tile (valid while < 64); s46 = 1 in pool mode')
    e.lab('L_t0')
    body(SETS[0])
    e("""
    s_cmp_eq_u32 s54, 1
    s_cbranch_scc1 L_t1
    s_cmp_lt_u32 s68, 64
    s_cbranch_scc1 L_t0
    s_branch L_flush
    """)
    e.c('second window tile (register set 1; its loads are covered by the waits above)')
    e.lab('L_t1')
    body(SETS[1], once=True)
    e.c('per-wave result (m, l, O) -> LDS')
    e.lab('L_flush')
    e('''
    v_mov_b32 v23, v21
    s_nop 1
    v_permlane32_swap_b32 v23, v21
    v_add_f32 v21, v21, v23
    v_mov_b32 v23, v21
    s_nop 1
    v_permlane16_swap_b32 v23, v21
    v_add_f32 v21, v21, v23
    s_lshl_b32 s59, s54, 2
    s_add_u32 s59, s59, s3
    s_lshl_b32 s59, s59, 11
    v_lshlrev_b32 v6, 9, v4
    v_lshl_add_u32 v6, v5, 4, v6
    v_add_u32 v6, s59, v6
    s_lshl_b32 s59, s54, 7
    s_lshl_b32 s60, s3, 3
    s_add_u32 s59, s59, s60
    ''')
    e(f's_add_u32 s59, s59, {L_SM}')
    e('''
    v_lshlrev_b32 v7, 5, v4
    v_add_u32 v7, s59, v7
    v_mov_b32 v22, v20
    v_mov_b32 v23, v21
    s_mov_b32 exec_lo, 0x000f000f
    s_mov_b32 exec_hi, 0x000f000f
    ''')
    for j in range(8):
        e(f'ds_write_b128 v6, {vr(32+4*j)} offset:{L_RES + 64*j}')
    e('s_mov_b64 exec, 15')
    e(f'ds_write_b64 v7, v[22:23] offset:{R_ST}')
    e('s_mov_b64 exec, -1')
    e('s_cmp_eq_u32 s54, 0')
    e('s_cbranch_scc1 L_tail')
    e.c('problem B done: load Q of A, precompute the addresses of the tail')
    stamp(5)
    for j in range(4):
        e(f'ds_read_b128 {vr(QR+4*j)}, v31 offset:{R_Q + 64*j}')
    e("""
    v_lshrrev_b32 v13, 5, v1
    v_and_b32 v14, 31, v1
    v_lshlrev_b32 v240, 13, v13
    v_lshl_add_u32 v240, v14, 4, v240
    s_lshl_b32 s61, s3, 9
    v_add_u32 v240, s61, v240
    v_lshlrev_b32 v241, 7, v13
    s_lshl_b32 s61, s3, 5
    """)
    e(f's_add_u32 s61, s61, {L_SM}')
    e('v_add_u32 v241, s61, v241')
    e("""
    s_lshl_b32 s61, s30, 2
    s_add_u32 s61, s61, s3
    s_lshl_b32 s61, s61, 4
    s_add_u32 s61, s61, s31
    s_lshl_b32 s62, s61, 9
    """)
    e(f's_add_u32 s62, s62, {WS_PART}')
    e("""
    v_lshlrev_b32 v242, 19, v13
    v_lshl_add_u32 v242, v14, 4, v242
    v_add_u32 v242, s62, v242
    s_lshl_b32 s62, s61, 7
    """)
    e(f's_add_u32 s62, s62, {WS_STAT}')
    e("""
    v_lshlrev_b32 v243, 17, v13
    v_and_b32 v15, 7, v1
    v_lshl_add_u32 v243, v15, 4, v243
    v_add_u32 v243, s62, v243
    """)
    e("""
    s_lshr_b32 s59, s3, 1
    s_and_b32 s60, s3, 1
    s_lshl_b32 s61, s59, 4
    s_lshl_b32 s62, s60, 3
    s_add_u32 s61, s61, s62
    s_add_u32 s61, s61, s41
    s_lshl_b32 s61, s61, 2
    s_add_u32 s61, s61, s56
    s_lshl_b32 s62, s61, 11
    """)
    e(f's_add_u32 s62, s62, {WS_STAT}')
    e("""
    v_and_b32 v244, 3, v1
    v_lshl_add_u32 v244, v244, 2, v5
    v_lshlrev_b32 v244, 7, v244
    v_add_u32 v244, s62, v244
    s_lshl_b32 s62, s61, 13
    s_lshr_b32 s60, s57, 2
    s_lshl_b32 s60, s60, 8
    s_add_u32 s62, s62, s60
    """)
    e(f's_add_u32 s62, s62, {WS_PART}')
    e("""
    v_lshlrev_b32 v245, 9, v5
    v_lshl_add_u32 v245, v4, 4, v245
    v_add_u32 v245, s62, v245
    v_add_u32 v246, 4096, v245
    """)
    e("""
    v_and_b32 v15, 3, v4
    v_lshlrev_b32 v247, 5, v15
    v_lshrrev_b32 v15, 2, v4
    v_lshl_add_u32 v247, v15, 1, v247
    s_lshl_b32 s61, s3, 7
    """)
    e(f's_add_u32 s61, s61, {L_SM}')
    e('v_add_u32 v247, s61, v247')
    e("""
    v_lshrrev_b32 v248, 2, v4
    v_lshl_add_u32 v248, v5, 3, v248
    v_lshlrev_b32 v248, 8, v248
    v_and_b32 v13, 3, v4
    v_lshl_add_u32 v248, v13, 3, v248
    s_lshl_b32 s62, s3, 6
    """)
    e(f's_add_u32 s62, s62, {L_WO}')
    e("""
    v_add_u32 v248, s62, v248
    v_and_b32 v249, 1, v4
    v_lshlrev_b32 v249, 7, v249
    v_lshl_add_u32 v249, v5, 4, v249
    """)
    e(f'v_add_u32 v249, {L_SM}, v249')
    e("""
    s_and_b32 s61, s57, 3
    s_lshl_b32 s61, s61, 3
    s_lshl_b32 s62, s3, 1
    s_add_u32 s61, s61, s62
    s_lshl_b32 s61, s61, 6
    s_lshl_b32 s62, s58, 1
    s_add_u32 s61, s61, s62
    s_lshr_b32 s62, s57, 2
    s_add_u32 s61, s61, s62
    s_lshl_b32 s61, s61, 7
    """)
    e(f's_add_u32 s63, s61, {WS_OUTP}')
    e("""
    v_and_b32 v250, 1, v4
    v_lshlrev_b32 v250, 6, v250
    v_lshl_add_u32 v250, v5, 4, v250
    v_add_u32 v250, s63, v250
    v_add_u32 v253, 0x2000, v250
    v_add_u32 v254, 0x40000, v250
    v_add_u32 v255, 0x42000, v250
    s_lshl_b32 s59, s2, 13
    """)
    e(f's_add_u32 s59, s59, {WS_OUTP}')
    e("""
    v_add_u32 v251, s59, v3
    v_bfe_u32 v252, v1, 2, 1
    v_lshlrev_b32 v252, 10, v252
    v_and_b32 v13, 3, v1
    v_lshl_add_u32 v252, v13, 2, v252
    s_lshl_b32 s59, s2, 4
    v_add_u32 v252, s59, v252
    v_lshlrev_b32 v252, 1, v252
    """)
    for r in range(32, 64): e(f'v_mov_b32 v{r}, 0')
    e(f'v_mov_b32 v20, {f2u(-1e30):#x}')
    e('''
    v_mov_b32 v21, 0
    s_mov_b32 s54, 0
    s_waitcnt lgkmcnt(0)
    s_cmp_lt_u32 s68, 64
    s_cbranch_scc1 L_t0
    s_branch L_flush
    ''')
    e.c('out-of-line pieces of the tile loop: switch to the pool, pool-mode head')
    if o['tloc'] < 64:
        TL = o['tloc']; NP = 16*(64-TL)
        for S in SETS[:1]:
            tk = S['tk']
            e.lab(f'L_sw{tk}')
            e('s_mov_b32 s46, 1')
            e('v_mov_b32 v7, 0')
            e('s_mov_b64 exec, 1')
            e('global_atomic_add v6, v7, v30, s[50:51] sc0 sc1')
            e('s_mov_b64 exec, -1')
            e(f's_branch L_swret{tk}')
            e.lab(f'L_pool{tk}')
            e(f's_waitcnt vmcnt({o["wcnt"]})')
            e('v_readfirstlane_b32 s59, v6')
            for j in range(4):
                e(f'v_mfma_f32_16x16x32_bf16 v[8:11], {vr(S["KA"]+4*j)}, {vr(QR+4*j)}, ' + ('0' if j == 0 else 'v[8:11]'))
            e('s_and_b32 s44, s59, 15')
            e('s_lshl_b32 s44, s44, 19')
            e('s_lshr_b32 s60, s59, 4')
            e(f's_add_u32 s60, s60, {TL}')
            e('s_lshl_b32 s60, s60, 13')
            e('s_add_u32 s44, s44, s60')
            e('s_add_u32 s45, s44, 4096')
            e(f's_cmp_lt_u32 s59, {NP}')
            e(f's_cselect_b32 s{tk}, 0, 64')
            e(f's_cbranch_scc0 L_join{tk}')
            e('s_mov_b64 exec, 1')
            e('global_atomic_add v6, v7, v30, s[50:51] sc0 sc1')
            e('s_mov_b64 exec, -1')
            e(f's_branch L_join{tk}')
    e.c('==== tail: reduce the 4 waves (A in lanes 0..31, B in lanes 32..63 of head = wave), publish')
    e.lab('L_tail')
    stamp(6)
    e('v_mov_b32 v26, 0xfffff000')
    e('s_and_b32 s63, s42, 0xfff')
    e('s_waitcnt vmcnt(0) lgkmcnt(0)')
    e('s_barrier')
    stamp(7)
    for k in range(2):
        e(f'ds_read_b128 {vr(64+4*k)}, v241 offset:{R_ST + 16*k}')
    for w in range(4):
        e(f'ds_read_b128 {vr(72+4*w)}, v240 offset:{L_RES + w*2048}')
    e('s_waitcnt lgkmcnt(%d)' % (0 if stamps else 4))
    e("""
    v_max3_f32 v88, v64, v66, v68
    v_max_f32 v88, v88, v70
    v_sub_f32 v64, v64, v88
    v_sub_f32 v66, v66, v88
    v_sub_f32 v68, v68, v88
    v_sub_f32 v70, v70, v88
    v_exp_f32 v64, v64
    v_exp_f32 v66, v66
    v_exp_f32 v68, v68
    v_exp_f32 v70, v70
    v_mov_b32 v92, v88
    v_mul_f32 v90, v64, v65
    v_fmac_f32 v90, v66, v67
    v_fmac_f32 v90, v68, v69
    v_fmac_f32 v90, v70, v71
    v_mov_b32 v93, s42
    s_waitcnt lgkmcnt(0)
    """)
    for k in range(4): e(f'v_mul_f32 v{96+k}, v64, v{72+k}')
    for w in range(1, 4):
        for k in range(4): e(f'v_fmac_f32 v{96+k}, v{64+2*w}, v{72+4*w+k}')
    e('v_mov_b32 v94, v90')
    e('v_mov_b32 v95, s42')
    for k in range(4): e(f'v_and_or_b32 v{96+k}, v{96+k}, v26, s63')
    e('global_store_dwordx4 v242, v[96:99], s[28:29] sc1')
    e("""
    s_mov_b32 exec_lo, 0xff
    s_mov_b32 exec_hi, 0xff
    global_store_dwordx4 v243, v[92:95], s[28:29] sc1
    s_mov_b64 exec, -1
    """)
    stamp(8)
    e.c('combine the 16 splits of (problem = wave>>1, batch = wave&1, head hh): light poll on the statistics, then data + statistics')
    for p in range(2):
        for t in range(2):
            for kk in range(2):
                for h in range(2):
                    r = 128 + ((p*2+t)*2+kk)*4 + 2*h
                    e(f'ds_read_b64_tr_b16 v[{r}:{r+1}], v248 offset:{p*16384 + kk*8192 + h*1024 + t*32}')
    e(f's_mov_b32 s66, {SPIN}')
    e.lab('L_spoll')
    e("""
    global_load_dwordx4 v[100:103], v244, s[28:29] sc1
    s_waitcnt vmcnt(0)
    v_cmp_eq_u32 vcc, s42, v101
    v_cmp_eq_u32 s[64:65], s42, v103
    s_and_b64 vcc, vcc, s[64:65]
    s_and_b32 s59, vcc_lo, 0x000f000f
    s_and_b32 s60, vcc_hi, 0x000f000f
    s_bcnt1_i32_b32 s59, s59
    s_bcnt1_i32_b32 s60, s60
    s_add_u32 s59, s59, s60
    """)
    e(f's_cmp_ge_u32 s59, {o["p2min"]}')
    e('s_cbranch_scc1 L_sok')
    e('s_sub_u32 s66, s66, 1')
    e('s_cbranch_scc1 L_sok')
    e(f's_sleep {o["psleep"]}')
    e('s_branch L_spoll')
    e.lab('L_sok')
    stamp(9)
    e.lab('L_dpoll')
    D = 64
    e('global_load_dwordx4 v[100:103], v244, s[28:29] sc1')
    for i in range(4):
        va = 'v245' if i < 2 else 'v246'
        e(f'global_load_dwordx4 {vr(D+4*i)}, {va}, s[28:29] offset:{(i%2)*2048} sc1')
    e("""
    s_waitcnt vmcnt(4)
    v_max_f32_dpp v12, v100, v100 row_ror:2 row_mask:0xf bank_mask:0xf
    v_cmp_eq_u32 s[60:61], s42, v101
    s_nop 0
    v_max_f32_dpp v13, v12, v12 row_ror:1 row_mask:0xf bank_mask:0xf
    v_cmp_eq_u32 s[64:65], s42, v103
    v_mov_b32 v12, v13
    s_nop 1
    v_permlane16_swap_b32 v12, v13
    v_max_f32 v13, v13, v12
    v_mov_b32 v16, 0
    v_mov_b32 v12, v13
    s_nop 1
    v_permlane32_swap_b32 v12, v13
    v_max_f32 v13, v13, v12
    v_sub_f32 v14, v100, v13
    v_exp_f32 v14, v14
    v_mov_b32 v17, 0
    v_mul_f32 v15, v14, v102
    v_mov_b32 v8, 0
    v_mov_b32 v9, 0
    v_add_f32_dpp v12, v15, v15 row_ror:2 row_mask:0xf bank_mask:0xf
    s_and_b64 s[60:61], s[60:61], s[64:65]
    s_nop 0
    v_add_f32_dpp v15, v12, v12 row_ror:1 row_mask:0xf bank_mask:0xf
    s_nop 0
    v_mov_b32 v12, v15
    s_nop 1
    v_permlane16_swap_b32 v12, v15
    v_add_f32 v15, v15, v12
    s_nop 0
    v_mov_b32 v12, v15
    s_nop 1
    v_permlane32_swap_b32 v12, v15
    v_add_f32 v15, v15, v12
    v_rcp_f32 v15, v15
    s_nop 0
    v_mul_f32 v14, v14, v15
    s_waitcnt vmcnt(0)
    """)
    regs = list(range(D, D+16))
    e(f'v_bitop3_b32 v12, v{regs[0]}, v{regs[1]}, v{regs[2]} bitop3:0x80')
    e(f'v_or3_b32 v13, v{regs[0]}, v{regs[1]}, v{regs[2]}')
    k = 3
    while k + 1 < 16:
        e(f'v_bitop3_b32 v12, v12, v{regs[k]}, v{regs[k+1]} bitop3:0x80')
        e(f'v_or3_b32 v13, v13, v{regs[k]}, v{regs[k+1]}'); k += 2
    e(f'v_and_b32 v12, v12, v{regs[15]}')
    e(f'v_or_b32 v13, v13, v{regs[15]}')
    e("""
    v_xor_b32 v12, s63, v12
    v_xor_b32 v13, s63, v13
    v_or_b32 v12, v12, v13
    v_and_b32 v12, 0xfff, v12
    v_cmp_eq_u32 vcc, 0, v12
    s_and_b64 vcc, vcc, s[60:61]
    s_cmp_eq_u64 vcc, -1
    s_cbranch_scc1 L_dok
    s_sub_u32 s66, s66, 1
    s_cbranch_scc1 L_dok
    s_branch L_dpoll
    """)
    e.lab('L_dok')
    acc = [8, 9, 16, 17]
    for i in range(4):
        for k in range(4):
            e(f'v_fmac_f32_dpp v{acc[k]}, v14, v{D+4*i+k} row_newbcast:{i} row_mask:0xf bank_mask:0xf')
    for k in range(4): e(f'v_mov_b32 v{20+k}, v{acc[k]}')
    e('s_nop 0')
    for k in range(4): e(f'v_permlane16_swap_b32 v{20+k}, v{acc[k]}')
    for k in range(4): e(f'v_add_f32 v{acc[k]}, v{acc[k]}, v{20+k}')
    for k in range(4): e(f'v_mov_b32 v{20+k}, v{acc[k]}')
    e('s_nop 0')
    for k in range(4): e(f'v_permlane32_swap_b32 v{20+k}, v{acc[k]}')
    for k in range(4): e(f'v_add_f32 v{acc[k]}, v{acc[k]}, v{20+k}')
    e('v_cvt_pk_bf16_f32 v18, v8, v9')
    e('v_cvt_pk_bf16_f32 v19, v16, v17')
    e(f'ds_write_b16 v247, v18 offset:{R_O}')
    e(f'ds_write_b16_d16_hi v247, v18 offset:{R_O+8}')
    e(f'ds_write_b16 v247, v19 offset:{R_O+16}')
    e(f'ds_write_b16_d16_hi v247, v19 offset:{R_O+24}')
    e.c('out-projection: 64 input features of head h onto 2 x 16 columns per wave, both problems')
    e('s_waitcnt lgkmcnt(0)')
    e('s_barrier')
    stamp(10)
    for p in range(2):
        for kk in range(2):
            e(f'ds_read_b128 {vr(96+8*p+4*kk)}, v249 offset:{R_O + p*256 + kk*64}')
    e('s_waitcnt lgkmcnt(0)')
    for kk in range(2):
        for p in range(2):
            for t in range(2):
                d = 8 + 4*(p*2+t)
                e(f'v_mfma_f32_16x16x32_bf16 {vr(d)}, {vr(128 + ((p*2+t)*2+kk)*4)}, {vr(96+8*p+4*kk)}, ' + ('0' if kk == 0 else vr(d)))
    e("""
    s_mov_b32 exec_lo, 0x00030003
    s_mov_b32 exec_hi, 0x00030003
    s_nop 2
    """)
    for r in range(8, 24): e(f'v_and_or_b32 v{r}, v{r}, v26, s63')
    e("""
    global_store_dwordx4 v250, v[8:11], s[28:29] sc1
    global_store_dwordx4 v253, v[12:15], s[28:29] sc1
    global_store_dwordx4 v254, v[16:19], s[28:29] sc1
    global_store_dwordx4 v255, v[20:23], s[28:29] sc1
    s_mov_b64 exec, -1
    """)
    stamp(11)
    e.c('final sum over the 32 heads: wave 0 of workgroups 0..63, 16 columns x 2 batches each')
    e('s_cmp_lg_u32 s3, 0')
    e('s_cbranch_scc1 ' + ('L_fin' if stamps else 'L_end'))
    e('s_cmp_ge_u32 s2, %d' % (32 if o['aonly'] else 64))
    e('s_cbranch_scc1 L_fin')
    e(f's_mov_b32 s66, {SPIN}')
    e('v_add_u32 v6, 4096, v251')
    e.lab('L_opoll')
    for i in range(8):
        va = 'v251' if i < 4 else 'v6'
        e(f'global_load_dwordx4 {vr(64+4*i)}, {va}, s[28:29] offset:{(i%4)*1024} sc1')
    e('s_waitcnt vmcnt(0)')
    e('v_bitop3_b32 v12, v64, v65, v66 bitop3:0x80')
    e('v_or3_b32 v13, v64, v65, v66')
    k = 67
    while k + 1 < 96:
        e(f'v_bitop3_b32 v12, v12, v{k}, v{k+1} bitop3:0x80')
        e(f'v_or3_b32 v13, v13, v{k}, v{k+1}'); k += 2
    e('v_and_b32 v12, v12, v95')
    e('v_or_b32 v13, v13, v95')
    e("""
    v_xor_b32 v12, s63, v12
    v_xor_b32 v13, s63, v13
    v_or_b32 v12, v12, v13
    v_and_b32 v12, 0xfff, v12
    v_cmp_eq_u32 vcc, 0, v12
    s_cmp_eq_u64 vcc, -1
    s_cbranch_scc1 L_ook
    s_sub_u32 s66, s66, 1
    s_cbranch_scc1 L_ook
    s_branch L_opoll
    """)
    e.lab('L_ook')
    for k in range(4):
        e(f'v_add_f32 v{64+k}, v{64+k}, v{68+k}')
        e(f'v_add_f32 v{72+k}, v{72+k}, v{76+k}')
        e(f'v_add_f32 v{80+k}, v{80+k}, v{84+k}')
        e(f'v_add_f32 v{88+k}, v{88+k}, v{92+k}')
    for k in range(4):
        e(f'v_add_f32 v{64+k}, v{64+k}, v{72+k}')
        e(f'v_add_f32 v{80+k}, v{80+k}, v{88+k}')
    for k in range(4): e(f'v_add_f32 v{64+k}, v{64+k}, v{80+k}')
    e('s_nop 0')
    for k in range(4): e(f'v_add_f32_dpp v{68+k}, v{64+k}, v{64+k} row_ror:8 row_mask:0xf bank_mask:0xf')
    for k in range(4): e(f'v_mov_b32 v{72+k}, v{68+k}')
    e('s_nop 0')
    for k in range(4): e(f'v_permlane16_swap_b32 v{72+k}, v{68+k}')
    for k in range(4): e(f'v_add_f32 v{68+k}, v{68+k}, v{72+k}')
    for k in range(4): e(f'v_mov_b32 v{72+k}, v{68+k}')
    e('s_nop 0')
    for k in range(4): e(f'v_permlane32_swap_b32 v{72+k}, v{68+k}')
    for k in range(4): e(f'v_add_f32 v{68+k}, v{68+k}, v{72+k}')
    e("""
    v_cvt_pk_bf16_f32 v64, v68, v69
    v_cvt_pk_bf16_f32 v65, v70, v71
    s_mov_b64 exec, 0xff
    global_store_dwordx2 v252, v[64:65], s[24:25] OUTPOL
    s_mov_b64 exec, -1
    """)
    e('''
    s_cmp_lg_u32 s2, 0
    s_cbranch_scc1 L_fin
    s_add_u32 s59, s43, 1
    v_mov_b32 v7, s59
    v_mov_b32 v8, 0
    s_mov_b64 exec, 1
    ''')
    e(f'global_store_dword v8, v7, s[28:29] offset:{WS_EPOCH} sc1')
    e('s_mov_b64 exec, -1')
    e.lab('L_fin')
    if o['holdus']:
        e('s_cmp_lg_u32 s2, 0')
        e('s_cbranch_scc1 L_end')
        e('s_waitcnt vmcnt(0) lgkmcnt(0)')
        e('s_memrealtime s[72:73]')
        e('s_waitcnt lgkmcnt(0)')
        e('s_sub_u32 s74, s72, s70')
        e(f's_mul_i32 s74, s74, {o["holdmul"]}')
        e(f's_add_u32 s74, s74, {o["holdus"]*100}')
        e.lab('L_hold')
        e('s_memrealtime s[72:73]')
        e('s_waitcnt lgkmcnt(0)')
        e('s_sub_u32 s75, s72, s70')
        e('s_cmp_lt_u32 s75, s74')
        e('s_cbranch_scc1 L_hold')
    if stamps:
        e('s_memrealtime s[94:95]')
        e('s_waitcnt lgkmcnt(0)')
        e('s_lshl_b32 s59, s2, 3')
        e('s_add_u32 s59, s59, s3')
        e(f's_mul_i32 s59, s59, {16*8}')
        e(f's_add_u32 s59, s59, {WS_STAMP}')
        e('v_mov_b32 v6, s59')
        e('s_mov_b64 exec, 1')
        for i in range(16):
            e(f'v_mov_b32 v{10+2*i}, s{70+2*i}')
            e(f'v_mov_b32 v{11+2*i}, s{71+2*i}')
        for i in range(16):
            e(f'global_store_dwordx2 v6, v[{10+2*i}:{11+2*i}], s[28:29] offset:{8*i}')
    e.lab('L_end')
    e('s_endpgm')
    e.raw('.section .rodata,"a"')
    e.raw('.p2align 6')
    e.raw(f'.amdhsa_kernel {KN}_kernel')
    e.raw('  .amdhsa_next_free_vgpr 256')
    e.raw('  .amdhsa_next_free_sgpr 102')
    e.raw('  .amdhsa_accum_offset 256')
    e.raw('  .amdhsa_group_segment_fixed_size 0')
    e.raw('  .amdhsa_kernarg_size 104')
    e.raw('  .amdhsa_user_sgpr_count 2')
    e.raw('  .amdhsa_user_sgpr_kernarg_segment_ptr 1')
    e.raw('  .amdhsa_system_sgpr_workgroup_id_x 1')
    e.raw('.end_amdhsa_kernel')
    open(path, 'w').write(('\n'.join(e.L) + '\n').replace('OUTPOL', o['outpol']))

if __name__ == '__main__':
    gen('x_base.s')
    gen('x_ng.s', opts=dict(t1gate=False))
    gen('x_pw8.s', opts=dict(pollwait=8))
    gen('x_pw24.s', opts=dict(pollwait=24))
    gen('x_ps6.s', opts=dict(psleep=6))
    gen('x_t60.s', opts=dict(tloc=60))
```

```python
import sys, struct

KN = 'concat_heads__gqa_block_cached__sliding_block_cached__decode'

def f2u(x):
    return struct.unpack('<I', struct.pack('<f', x))[0]

WS_EPOCH = 0x0
WS_QG    = 0x1000
WS_PART  = 0x20000
WS_STAT  = 0x120000
WS_OUTP  = 0x160000
WS_POOL  = 0x1E0000
WS_STAMP = 512 << 20
L_WQ  = 0x0
L_RES = 0x0
L_WO  = 0x8000
L_SM  = 0x10000
R_ST  = 0x000
R_QP  = 0x200
R_Q   = 0xA00
R_O   = 0x1200
R_CNT = 0x1600
LDS_BYTES = 86016

TAGC = 0x9E3779B9
SPIN = 1 << 19


HEADER = """; Fused GQA decode attention (A: 32768 keys, B: last 4096 keys) + head concat + output projection.
;     to each other through d_ws as 8-byte {2 x bf16, tag} granules; tag = (epoch word found in d_ws) + constant,
;     as {m, tag} {l, tag} granules; consumers re-read until every word they use carries the tag of this launch.
"""

class A:
    def __init__(self):
        self.L = []
    def __call__(self, s):
        for line in s.strip('\n').split('\n'):
            line = line.strip()
            if line:
                self.L.append('  ' + line)
    def lab(self, s):
        self.L.append(s + ':')
    def raw(self, s):
        self.L.append(s)
    def c(self, s):
        for line in s.strip('\n').split('\n'):
            self.L.append('  ; ' + line.strip())

def vr(a, n=4):
    return f'v[{a}:{a+n-1}]'

SETS = [dict(KA=80, KB=96, VA=112, VB=128, tk=68), dict(KA=176, KB=192, VA=208, VB=224, tk=69)]
VT = 144
QR = 64

def gen(path, stamps=False, opts=None):
    o = dict(chk=24, pollwait=16, t1gate=True, rot=0, touch=0, polB='nt', polW='nt', polA='nt', map='g16', noq=False, nowo=False, nocomp=0, p2min=15, outpol='', holdus=0, holdmul=0, tloc=58, wcnt=12, aonly=False, psleep=2, statl=0xff)
    o.update(opts or {})
    e = A()
    def stamp(i):
        if stamps:
            e(f's_memrealtime s[{70+2*i}:{71+2*i}]')
    def lds_spin(off, val, label, sleep=1):
        e(f's_mov_b32 s66, {SPIN}')
        e.lab(label)
        e(f'ds_read_b32 v27, v29 offset:{off}')
        e('s_waitcnt lgkmcnt(0)')
        e('v_readfirstlane_b32 s59, v27')
        e(f's_cmp_eq_u32 s59, {val}')
        e(f's_cbranch_scc1 {label}_ok')
        if sleep: e(f's_sleep {sleep}')
        e('s_sub_u32 s66, s66, 1')
        e(f's_cbranch_scc0 {label}')
        e.lab(label + '_ok')

    def touch_block(lab):
        e('s_cmp_lg_u32 s3, 3')
        e(f's_cbranch_scc1 {lab}')
        e('s_lshl_b32 s59, s30, 23')
        e('s_lshl_b32 s60, s31, 19')
        e('s_add_u32 s59, s59, s60')
        e('v_mov_b32 v26, s59')
        e('s_lshl_b32 s59, s40, 4')
        e('s_add_u32 s59, s59, s31')
        e('s_lshr_b32 s59, s59, 3')
        e('s_lshl_b32 s60, s41, 2')
        e('s_add_u32 s59, s59, s60')
        e('s_lshl_b32 s59, s59, 17')
        e('v_mov_b32 v27, s59')
        e('s_mov_b64 exec, 1')
        e('global_load_dword v244, v26, s[6:7] nt')
        e('global_load_dword v245, v26, s[8:9] nt')
        e('global_load_dword v246, v27, s[12:13] nt')
        e('global_load_dword v247, v27, s[22:23] nt')
        e('global_load_dword v248, v22, s[24:25]')
        e('s_mov_b64 exec, -1')
        e.lab(lab)
    for line in HEADER.strip('\n').split('\n'): e.raw(line)
    e.raw(f'; @launch grid=(256,1,1) block=(256,1,1) lds={LDS_BYTES}')
    e.raw('.amdgcn_target "amdgcn-amd-amdhsa--gfx950"')
    e.raw('.text')
    e.raw(f'.globl {KN}_kernel')
    e.raw('.p2align 8')
    e.raw(f'.type {KN}_kernel,@function')
    e.raw(f'{KN}_kernel:')
    e.c('workgroups past the 256 that carry work exit at once')
    e('s_cmp_ge_u32 s2, 256')
    e('s_cbranch_scc1 L_end')
    if stamps:
        for i in range(70, 102): e(f's_mov_b32 s{i}, 0')
    stamp(0)
    if o['holdus']:
        e('s_memrealtime s[70:71]')
    e('''
    s_load_dwordx16 s[4:19], s[0:1], 0
    s_load_dwordx8 s[20:27], s[0:1], 64
    s_load_dwordx2 s[28:29], s[0:1], 96
    v_lshrrev_b32 v4, 6, v0
    v_and_b32 v1, 63, v0
    v_readfirstlane_b32 s3, v4
    ''')
    if o['map'] == 'g16':
        e('s_lshr_b32 s30, s2, 4')
        e('s_and_b32 s31, s2, 15')
    else:
        e('s_lshr_b32 s31, s2, 3')
        e('s_lshr_b32 s30, s31, 4')
        e('s_lshl_b32 s30, s30, 3')
        e('s_and_b32 s59, s2, 7')
        e('s_add_u32 s30, s30, s59')
        e('s_and_b32 s31, s31, 15')
    e('''
    s_lshr_b32 s40, s30, 3
    s_and_b32 s41, s30, 7
    v_and_b32 v4, 15, v1
    v_lshrrev_b32 v5, 4, v1
    v_lshlrev_b32 v3, 4, v1
    v_mov_b32 v22, 0
    v_mov_b32 v23, 0
    ''')
    e(f'v_mov_b32 v29, {L_SM + R_CNT}')
    e('''
    s_cmp_lg_u32 s3, 0
    s_cbranch_scc1 L_noinit
    v_mov_b32 v8, 0
    v_mov_b32 v9, 0
    v_mov_b32 v10, 0
    v_mov_b32 v11, 0
    ds_write_b128 v29, v[8:11]
    ds_write_b64 v29, v[8:9] offset:16
    ''')
    e.c('lane constants: v1 lane, v2 K offset (row 4*(m&3)+(m>>2), 16 B slab), v3 lane*16, v4 lane&15, v5 lane>>4')
    e.lab('L_noinit')
    e('''
    v_and_b32 v6, 3, v4
    v_lshrrev_b32 v7, 2, v4
    v_lshl_add_u32 v6, v6, 2, v7
    v_lshlrev_b32 v6, 8, v6
    v_lshl_add_u32 v2, v5, 4, v6
    v_mov_b32 v30, 1
    v_lshrrev_b32 v24, 2, v1
    v_lshlrev_b32 v24, 13, v24
    v_and_b32 v11, 3, v1
    v_lshl_add_u32 v24, v11, 4, v24
    v_and_b32 v25, 1, v1
    v_lshlrev_b32 v25, 10, v25
    v_lshl_add_u32 v25, v5, 4, v25
    s_lshl_b32 s59, s3, 8
    v_add_u32 v25, s59, v25
    ''')
    if o['map'] == 'g16':
        e('s_and_b32 s55, s31, 7')
        e('s_lshl_b32 s55, s55, 1')
        e('s_lshr_b32 s59, s31, 3')
        e('s_or_b32 s55, s55, s59')
    else:
        e('s_mov_b32 s55, s31')
    e('''
    s_lshl_b32 s61, s3, 20
    s_lshl_b32 s60, s41, 10
    s_add_u32 s61, s61, s60
    s_lshl_b32 s60, s55, 6
    s_add_u32 s61, s61, s60
    s_lshl_b32 s62, s3, 13
    ''')
    e('s_waitcnt lgkmcnt(0)')
    e('s_barrier')
    stamp(13)
    e('''
    s_cmp_eq_u32 s40, 0
    s_cselect_b32 s52, s10, s20
    s_cselect_b32 s53, s11, s21
    s_cselect_b32 s50, s4, s14
    s_cselect_b32 s51, s5, s15
    s_add_u32 s52, s52, s61
    s_addc_u32 s53, s53, 0
    ''')
    e.c('the pool counter of the group is zeroed by wave 0 of split 0; its q granules are published after this store completes')
    e('s_lshl_b32 s59, s31, 2')
    e('s_or_b32 s59, s59, s3')
    e('s_cmp_lg_u32 s59, 0')
    e('s_cbranch_scc1 L_nopool')
    e('s_lshl_b32 s59, s30, 8')
    e(f's_add_u32 s59, s59, {WS_POOL}')
    e('v_mov_b32 v26, s59')
    e('s_mov_b64 exec, 1')
    e('global_store_dword v26, v22, s[28:29] sc1')
    e('s_mov_b64 exec, -1')
    e.lab('L_nopool')
    e.c('wq slice (128 rows x 64 B per wave) -> LDS, x fragments, epoch word')
    for i in range(8):
        e(f's_add_u32 m0, s62, {L_WQ + i*1024}')
        if i > 0:
            e('s_add_u32 s52, s52, 0x20000')
            e('s_addc_u32 s53, s53, 0')
        else:
            e('s_nop 0')
        e(f'global_load_lds_dwordx4 v24, s[52:53] {o["polW"]}')
    for kk in range(4):
        e(f'global_load_dwordx4 {vr(144+4*kk)}, v25, s[50:51] offset:{64*kk}')
    e(f'global_load_dword v31, v22, s[28:29] offset:{WS_EPOCH} sc1')
    if o['touch'] == 1: touch_block('L_nt1')

    def set_srd(kp, vp):
        e('s_lshl_b32 s59, s30, 23')
        e(f's_add_u32 s32, s{kp}, s59')
        e(f's_addc_u32 s33, s{kp+1}, 0')
        e('s_and_b32 s33, s33, 0xffff')
        e(f's_add_u32 s36, s{vp}, s59')
        e(f's_addc_u32 s37, s{vp+1}, 0')
        e('s_and_b32 s37, s37, 0xffff')
        e('''
        s_mov_b32 s34, 0x800000
        s_mov_b32 s35, 0x20000
        s_mov_b32 s38, 0x800000
        s_mov_b32 s39, 0x20000
        ''')
    def issue(chunk, S, pol=None):
        pol = o['polA'] if pol is None else pol
        if chunk == 'Ka':
            for j in range(4): e(f'buffer_load_dwordx4 {vr(S["KA"]+4*j)}, v2, s[32:35], s44 offen offset:{64*j} {pol}')
        elif chunk == 'Kb':
            for j in range(4): e(f'buffer_load_dwordx4 {vr(S["KB"]+4*j)}, v2, s[32:35], s45 offen offset:{64*j} {pol}')
        elif chunk == 'Va':
            for i in range(4): e(f'buffer_load_dwordx4 {vr(S["VA"]+4*i)}, v3, s[36:39], s44 offen offset:{1024*i} {pol}')
        elif chunk == 'Vb':
            for i in range(4): e(f'buffer_load_dwordx4 {vr(S["VB"]+4*i)}, v3, s[36:39], s45 offen offset:{1024*i} {pol}')
    def issue_tile(S):
        for ch in ('Ka', 'Kb', 'Va', 'Vb'): issue(ch, S, o['polB'])
    def tile_off(tkreg):
        if o['rot']:
            e(f's_add_u32 s44, s{tkreg}, s46')
            e('s_and_b32 s44, s44, 63')
            e('s_lshl_b32 s44, s44, 13')
        else:
            e(f's_lshl_b32 s44, s{tkreg}, 13')
        e('s_add_u32 s44, s44, s67')
        e('s_add_u32 s45, s44, 4096')
    e.c('first window tile (problem B) -> register set 0')
    set_srd(16, 18)
    e('''
    s_lshl_b32 s44, s31, 16
    s_lshl_b32 s60, s3, 13
    s_add_u32 s44, s44, s60
    ''')
    e(f's_add_u32 s44, s44, {(32768-4096)*256}')
    e('s_add_u32 s45, s44, 4096')
    issue_tile(SETS[0])
    e('''
    s_add_u32 s44, s44, 0x8000
    s_add_u32 s45, s45, 0x8000
    s_mov_b32 s47, 0x05040100
    s_mov_b32 s48, 0x07060302
    ''')
    c = (128 ** -0.5) * 1.4426950408889634
    e(f's_mov_b32 s49, {f2u(c):#x}')
    e('''
    s_lshl_b32 s56, s40, 4
    s_add_u32 s56, s56, s31
    s_and_b32 s57, s56, 7
    s_lshr_b32 s56, s56, 3
    s_lshl_b32 s58, s41, 2
    s_add_u32 s58, s58, s56
    s_lshl_b32 s67, s31, 19
    ''')
    if o['rot']: e(f's_mul_i32 s46, s2, {o["rot"]}')
    e('''
    v_lshrrev_b32 v6, 2, v4
    v_lshl_add_u32 v6, v5, 3, v6
    v_lshlrev_b32 v6, 6, v6
    v_and_b32 v7, 3, v4
    v_lshl_add_u32 v6, v7, 3, v6
    v_add_u32 v6, s62, v6
    v_lshlrev_b32 v7, 7, v4
    v_lshl_add_u32 v7, v5, 4, v7
    s_lshl_b32 s59, s3, 8
    ''')
    e(f's_add_u32 s59, s59, {L_SM}')
    e('v_add_u32 v7, s59, v7')
    if o['touch'] == 2:
        touch_block('L_nt2')
        e('s_cmp_lg_u32 s3, 3')
        e('s_cbranch_scc1 L_w16')
        e('s_waitcnt vmcnt(21)')
        e('s_branch L_w16d')
        e.lab('L_w16')
        e('s_waitcnt vmcnt(16)')
        e.lab('L_w16d')
    else:
        e('s_waitcnt vmcnt(16)')
    stamp(1)
    e.c('partial q projection: W^T fragments by transposing LDS reads, 8 MFMAs')
    FR = 176
    for kk in range(4):
        for ct in range(2):
            r = FR + (kk*2+ct)*4
            for h in range(2):
                e(f'ds_read_b64_tr_b16 v[{r+2*h}:{r+2*h+1}], v6 offset:{L_WQ + kk*2048 + h*256 + ct*32}')
    e('v_readfirstlane_b32 s43, v31')
    e('s_waitcnt lgkmcnt(0)')
    for kk in range(4):
        for ct in range(2):
            e(f'v_mfma_f32_16x16x32_bf16 {vr(8+4*ct)}, {vr(FR+(kk*2+ct)*4)}, {vr(144+4*kk)}, ' + ('0' if kk == 0 else vr(8+4*ct)))
    e(f's_add_u32 s42, s43, {TAGC:#x}')
    e('''
    s_nop 5
    s_mov_b32 exec_lo, 0x00030003
    s_mov_b32 exec_hi, 0x00030003
    ''')
    e(f'ds_write_b128 v7, v[8:11] offset:{R_QP}')
    e(f'ds_write_b128 v7, v[12:15] offset:{R_QP+64}')
    e('s_mov_b64 exec, 1')
    e('ds_add_u32 v29, v30 offset:4')
    e('s_mov_b64 exec, -1')
    e('s_cmp_eq_u32 s3, 0')
    e('s_cbranch_scc1 L_w0')
    e.c("waves 1..3: (wave 1) clear this workgroup's hand-off slots, then the second window tile once q is published")
    if o['t1gate']:
        lds_spin(16, 1, 'L_pub')
    issue_tile(SETS[1])
    e('s_branch L_wo')
    e.c("wave 0: sum the 4 partial projections, publish q, second window tile, poll the group's q")
    e.lab('L_w0')
    e('''
    s_lshl_b32 s59, s40, 6
    s_lshl_b32 s60, s41, 2
    s_add_u32 s59, s59, s60
    s_lshr_b32 s60, s55, 2
    s_add_u32 s59, s59, s60
    s_lshl_b32 s59, s59, 9
    s_and_b32 s60, s55, 3
    s_lshl_b32 s60, s60, 7
    s_add_u32 s59, s59, s60
    ''')
    e(f's_add_u32 s59, s59, {WS_QG}')
    e('''
    v_bfe_u32 v6, v1, 4, 1
    v_lshlrev_b32 v8, 14, v6
    v_lshl_add_u32 v8, v4, 3, v8
    v_add_u32 v8, s59, v8
    v_lshlrev_b32 v7, 7, v6
    v_lshl_add_u32 v7, v4, 3, v7
    ''')
    e(f'v_add_u32 v7, {L_SM}, v7')
    e('''
    s_lshl_b32 s59, s40, 5
    s_lshl_b32 s60, s41, 2
    s_add_u32 s59, s59, s60
    s_lshl_b32 s59, s59, 9
    ''')
    e(f's_add_u32 s59, s59, {WS_QG}')
    e('v_add_u32 v12, s59, v3')
    e(f'v_add_u32 v13, {64*512}, v12')
    lds_spin(4, 4, 'L_lq', sleep=0)
    for w in range(4):
        e(f'ds_read_b64 v[{144+2*w}:{145+2*w}], v7 offset:{R_QP + w*256}')
    e('s_waitcnt lgkmcnt(0)')
    for k in range(2):
        e(f'v_add_f32 v{144+k}, v{144+k}, v{146+k}')
        e(f'v_add_f32 v{148+k}, v{148+k}, v{150+k}')
    for k in range(2):
        e(f'v_add_f32 v{144+k}, v{144+k}, v{148+k}')
    e('''
    v_cvt_pk_bf16_f32 v10, v144, v145
    v_mov_b32 v11, s42
    s_mov_b32 exec_hi, 0
    global_store_dwordx2 v8, v[10:11], s[28:29] sc1
    s_mov_b32 exec_hi, -1
    ds_write_b32 v29, v30 offset:16
    ''')
    stamp(2)
    issue_tile(SETS[1])
    if o['noq']:
        e('s_branch L_qok')
    e(f's_waitcnt vmcnt({o["pollwait"]})')
    e(f's_mov_b32 s66, {SPIN}')
    e.lab('L_qpoll')
    e('''
    global_load_dwordx4 v[144:147], v12, s[28:29] sc1
    global_load_dwordx4 v[148:151], v12, s[28:29] offset:1024 sc1
    global_load_dwordx4 v[152:155], v13, s[28:29] sc1
    global_load_dwordx4 v[156:159], v13, s[28:29] offset:1024 sc1
    s_waitcnt vmcnt(0)
    ''')
    e('v_cmp_eq_u32 vcc, s42, v145')
    for r in (147, 149, 151, 153, 155, 157, 159):
        e(f'v_cmp_eq_u32 s[64:65], s42, v{r}')
        e('s_and_b64 vcc, vcc, s[64:65]')
    e('''
    s_cmp_eq_u64 vcc, -1
    s_cbranch_scc1 L_qok
    s_sub_u32 s66, s66, 1
    s_cbranch_scc1 L_qok
    s_branch L_qpoll
    ''')
    e.lab('L_qok')
    stamp(3)
    e('v_lshlrev_b32 v6, 3, v1')
    for u in range(4):
        r = 144 + 4*u
        off = L_SM + R_Q + (u >> 1)*1024 + (u & 1)*512
        e(f'v_add_u32 v7, {off}, v6')
        e(f'ds_write2_b32 v7, v{r}, v{r+2} offset0:0 offset1:1')
    e('ds_write_b32 v29, v30 offset:8')
    e.c('wo slices (128 rows x 128 B for A and for B) -> LDS, 8 DMA instructions per wave')
    e.lab('L_wo')
    e('''
    v_lshrrev_b32 v10, 4, v1
    v_lshlrev_b32 v10, 10, v10
    v_lshl_add_u32 v10, v4, 4, v10
    s_lshl_b32 s59, s58, 17
    s_lshl_b32 s60, s3, 15
    s_add_u32 s59, s59, s60
    s_lshr_b32 s60, s57, 2
    s_lshl_b32 s60, s60, 12
    s_add_u32 s59, s59, s60
    s_and_b32 s60, s57, 3
    s_lshl_b32 s60, s60, 8
    s_add_u32 s59, s59, s60
    s_lshl_b32 s60, s3, 12
    ''')
    for p in range(2):
        wo = 12 if p == 0 else 22
        e(f's_add_u32 s52, s{wo}, s59')
        e(f's_addc_u32 s53, s{wo+1}, 0')
        for i in range(4):
            e(f's_add_u32 m0, s60, {L_WO + p*16384 + i*1024}')
            if i > 0:
                e('s_add_u32 s52, s52, 0x2000')
                e('s_addc_u32 s53, s53, 0')
            else:
                e('s_nop 0')
            e(f'global_load_lds_dwordx4 v10, s[52:53] {o["polW"]}')
    set_srd(6, 8)
    if not o['noq']:
        lds_spin(8, 1, 'L_qflag')
    e('''
    v_and_b32 v6, 3, v4
    v_lshlrev_b32 v6, 8, v6
    v_lshl_add_u32 v31, v5, 4, v6
    ''')
    e(f'v_add_u32 v31, {L_SM}, v31')
    for j in range(4):
        e(f'ds_read_b128 {vr(QR+4*j)}, v31 offset:{R_Q + 1024 + 64*j}')
    for r in range(32, 64): e(f'v_mov_b32 v{r}, 0')
    e(f'v_mov_b32 v20, {f2u(-1e30):#x}')
    e('''
    v_mov_b32 v21, 0
    s_mov_b32 s54, 1
    s_mov_b32 s69, 0
    s_mov_b32 s46, 0
    v_mov_b32 v7, 0
    s_lshl_b32 s59, s30, 8
    s_add_u32 s50, s28, s59
    s_addc_u32 s51, s29, 0
    ''')
    e(f's_add_u32 s50, s50, {WS_POOL}')
    e('s_addc_u32 s51, s51, 0')
    e('s_waitcnt lgkmcnt(0)')
    stamp(4)
    def body(S, once=False):
        KA, KB, VA, VB, tk = S['KA'], S['KB'], S['VA'], S['VB'], S['tk']
        W = o['wcnt']
        def wait():
            if not once: e(f's_waitcnt vmcnt({W})')
        def iss(ch):
            if not once: issue(ch, S)
        nc = o['nocomp']
        TL = o['tloc']
        pool = TL < 64
        if not once:
            if pool:
                e('s_cmp_lg_u32 s46, 0')
                e(f's_cbranch_scc1 L_pool{tk}')
            e("""
            s_mov_b64 exec, 1
            ds_add_rtn_u32 v26, v29, v30
            s_mov_b64 exec, -1
            """)
        wait()
        for j in range(4):
            e(f'v_mfma_f32_16x16x32_bf16 v[8:11], {vr(KA+4*j)}, {vr(QR+4*j)}, ' + ('0' if j == 0 else 'v[8:11]'))
        if not once:
            e('s_waitcnt lgkmcnt(0)')
            e(f'v_readfirstlane_b32 s{tk}, v26')
            if pool:
                e(f's_cmp_ge_u32 s{tk}, {TL-4}')
                e(f's_cbranch_scc1 L_sw{tk}')
                e.lab(f'L_swret{tk}')
            tile_off(tk)
            e(f's_cmp_lt_u32 s{tk}, 64')
            e.lab(f'L_join{tk}')
            e('s_cselect_b32 s34, 0x800000, 0')
            e('s_cselect_b32 s38, 0x800000, 0')
        iss('Ka')
        wait()
        for j in range(4):
            e(f'v_mfma_f32_16x16x32_bf16 v[12:15], {vr(KB+4*j)}, {vr(QR+4*j)}, ' + ('0' if j == 0 else 'v[12:15]'))
        iss('Kb')
        if once: e('s_nop 3')
        if nc < 1:
          e("""
        v_max3_f32 v22, v8, v9, v10
        v_max_f32 v22, v22, v11
        s_nop 1
        v_max3_f32 v22, v22, v12, v13
        v_max3_f32 v22, v22, v14, v15
        v_mov_b32 v23, v22
        s_nop 1
        v_permlane32_swap_b32 v23, v22
        v_max_f32 v22, v22, v23
        v_mov_b32 v23, v22
        s_nop 1
        v_permlane16_swap_b32 v23, v22
        v_max_f32 v22, v22, v23
        v_mul_f32 v22, s49, v22
        v_max_f32 v23, v20, v22
        v_sub_f32 v24, v20, v23
        v_exp_f32 v28, v24
        v_mov_b32 v20, v23
          """)
          for i in range(8): e(f'v_fma_f32 v{8+i}, v{8+i}, s49, -v23')
          for i in range(8): e(f'v_exp_f32 v{8+i}, v{8+i}')
          e('v_mul_f32 v21, v21, v28')
          for j in range(0, 16):
            e(f'v_pk_mul_f32 v[{32+2*j}:{33+2*j}], v[{32+2*j}:{33+2*j}], v[28:29] op_sel_hi:[1,0]')
          e("""
        v_add_f32 v24, v8, v9
        v_add_f32 v25, v10, v11
        v_add_f32 v26, v12, v13
        v_add_f32 v27, v14, v15
        v_cvt_pk_bf16_f32 v16, v8, v9
        v_cvt_pk_bf16_f32 v17, v10, v11
        v_cvt_pk_bf16_f32 v18, v12, v13
        v_cvt_pk_bf16_f32 v19, v14, v15
        v_add_f32 v24, v24, v25
        v_add_f32 v26, v26, v27
        v_add_f32 v21, v21, v24
        v_add_f32 v21, v21, v26
          """)
        wait()
        if nc < 1:
          for j in range(8):
            w = j >> 1; sel = 's47' if j % 2 == 0 else 's48'
            e(f'v_perm_b32 v{VT+4*j+0}, v{VA+4*1+w}, v{VA+4*0+w}, {sel}')
            e(f'v_perm_b32 v{VT+4*j+1}, v{VA+4*3+w}, v{VA+4*2+w}, {sel}')
        iss('Va')
        wait()
        if nc < 1:
          for j in range(8):
            w = j >> 1; sel = 's47' if j % 2 == 0 else 's48'
            e(f'v_perm_b32 v{VT+4*j+2}, v{VB+4*1+w}, v{VB+4*0+w}, {sel}')
            e(f'v_perm_b32 v{VT+4*j+3}, v{VB+4*3+w}, v{VB+4*2+w}, {sel}')
        iss('Vb')
        if once: e('s_nop 1')
        if nc < 2:
          for j in range(8):
            e(f'v_mfma_f32_16x16x32_bf16 {vr(32+4*j)}, {vr(VT+4*j)}, v[16:19], {vr(32+4*j)}')
    e.c('tile loop: 32 keys; s54 = 1 while on problem B; s68 = next tile (valid while < 64); s46 = 1 in pool mode')
    e.lab('L_t0')
    body(SETS[0])
    e("""
    s_cmp_eq_u32 s54, 1
    s_cbranch_scc1 L_t1
    s_cmp_lt_u32 s68, 64
    s_cbranch_scc1 L_t0
    s_branch L_flush
    """)
    e.c('second window tile (register set 1; its loads are covered by the waits above)')
    e.lab('L_t1')
    body(SETS[1], once=True)
    e.c('per-wave result (m, l, O) -> LDS')
    e.lab('L_flush')
    e('''
    v_mov_b32 v23, v21
    s_nop 1
    v_permlane32_swap_b32 v23, v21
    v_add_f32 v21, v21, v23
    v_mov_b32 v23, v21
    s_nop 1
    v_permlane16_swap_b32 v23, v21
    v_add_f32 v21, v21, v23
    s_lshl_b32 s59, s54, 2
    s_add_u32 s59, s59, s3
    s_lshl_b32 s59, s59, 11
    v_lshlrev_b32 v6, 9, v4
    v_lshl_add_u32 v6, v5, 4, v6
    v_add_u32 v6, s59, v6
    s_lshl_b32 s59, s54, 7
    s_lshl_b32 s60, s3, 3
    s_add_u32 s59, s59, s60
    ''')
    e(f's_add_u32 s59, s59, {L_SM}')
    e('''
    v_lshlrev_b32 v7, 5, v4
    v_add_u32 v7, s59, v7
    v_mov_b32 v22, v20
    v_mov_b32 v23, v21
    s_mov_b32 exec_lo, 0x000f000f
    s_mov_b32 exec_hi, 0x000f000f
    ''')
    for j in range(8):
        e(f'ds_write_b128 v6, {vr(32+4*j)} offset:{L_RES + 64*j}')
    e('s_mov_b64 exec, 15')
    e(f'ds_write_b64 v7, v[22:23] offset:{R_ST}')
    e('s_mov_b64 exec, -1')
    e('s_cmp_eq_u32 s54, 0')
    e('s_cbranch_scc1 L_tail')
    e.c('problem B done: load Q of A, precompute the addresses of the tail')
    stamp(5)
    for j in range(4):
        e(f'ds_read_b128 {vr(QR+4*j)}, v31 offset:{R_Q + 64*j}')
    e("""
    v_lshrrev_b32 v13, 5, v1
    v_and_b32 v14, 31, v1
    v_lshlrev_b32 v240, 13, v13
    v_lshl_add_u32 v240, v14, 4, v240
    s_lshl_b32 s61, s3, 9
    v_add_u32 v240, s61, v240
    v_lshlrev_b32 v241, 7, v13
    s_lshl_b32 s61, s3, 5
    """)
    e(f's_add_u32 s61, s61, {L_SM}')
    e('v_add_u32 v241, s61, v241')
    e("""
    s_lshl_b32 s61, s30, 2
    s_add_u32 s61, s61, s3
    s_lshl_b32 s61, s61, 4
    s_add_u32 s61, s61, s31
    s_lshl_b32 s62, s61, 9
    """)
    e(f's_add_u32 s62, s62, {WS_PART}')
    e("""
    v_lshlrev_b32 v242, 19, v13
    v_lshl_add_u32 v242, v14, 4, v242
    v_add_u32 v242, s62, v242
    s_lshl_b32 s62, s61, 7
    """)
    e(f's_add_u32 s62, s62, {WS_STAT}')
    e("""
    v_lshlrev_b32 v243, 17, v13
    v_and_b32 v15, 7, v1
    v_lshl_add_u32 v243, v15, 4, v243
    v_add_u32 v243, s62, v243
    """)
    e("""
    s_lshr_b32 s59, s3, 1
    s_and_b32 s60, s3, 1
    s_lshl_b32 s61, s59, 4
    s_lshl_b32 s62, s60, 3
    s_add_u32 s61, s61, s62
    s_add_u32 s61, s61, s41
    s_lshl_b32 s61, s61, 2
    s_add_u32 s61, s61, s56
    s_lshl_b32 s62, s61, 11
    """)
    e(f's_add_u32 s62, s62, {WS_STAT}')
    e("""
    v_and_b32 v244, 3, v1
    v_lshl_add_u32 v244, v244, 2, v5
    v_lshlrev_b32 v244, 7, v244
    v_add_u32 v244, s62, v244
    s_lshl_b32 s62, s61, 13
    s_lshr_b32 s60, s57, 2
    s_lshl_b32 s60, s60, 8
    s_add_u32 s62, s62, s60
    """)
    e(f's_add_u32 s62, s62, {WS_PART}')
    e("""
    v_lshlrev_b32 v245, 9, v5
    v_lshl_add_u32 v245, v4, 4, v245
    v_add_u32 v245, s62, v245
    v_add_u32 v246, 4096, v245
    """)
    e("""
    v_and_b32 v15, 3, v4
    v_lshlrev_b32 v247, 5, v15
    v_lshrrev_b32 v15, 2, v4
    v_lshl_add_u32 v247, v15, 1, v247
    s_lshl_b32 s61, s3, 7
    """)
    e(f's_add_u32 s61, s61, {L_SM}')
    e('v_add_u32 v247, s61, v247')
    e("""
    v_lshrrev_b32 v248, 2, v4
    v_lshl_add_u32 v248, v5, 3, v248
    v_lshlrev_b32 v248, 8, v248
    v_and_b32 v13, 3, v4
    v_lshl_add_u32 v248, v13, 3, v248
    s_lshl_b32 s62, s3, 6
    """)
    e(f's_add_u32 s62, s62, {L_WO}')
    e("""
    v_add_u32 v248, s62, v248
    v_and_b32 v249, 1, v4
    v_lshlrev_b32 v249, 7, v249
    v_lshl_add_u32 v249, v5, 4, v249
    """)
    e(f'v_add_u32 v249, {L_SM}, v249')
    e("""
    s_and_b32 s61, s57, 3
    s_lshl_b32 s61, s61, 3
    s_lshl_b32 s62, s3, 1
    s_add_u32 s61, s61, s62
    s_lshl_b32 s61, s61, 6
    s_lshl_b32 s62, s58, 1
    s_add_u32 s61, s61, s62
    s_lshr_b32 s62, s57, 2
    s_add_u32 s61, s61, s62
    s_lshl_b32 s61, s61, 7
    """)
    e(f's_add_u32 s63, s61, {WS_OUTP}')
    e("""
    v_and_b32 v250, 1, v4
    v_lshlrev_b32 v250, 6, v250
    v_lshl_add_u32 v250, v5, 4, v250
    v_add_u32 v250, s63, v250
    v_add_u32 v253, 0x2000, v250
    v_add_u32 v254, 0x40000, v250
    v_add_u32 v255, 0x42000, v250
    s_lshl_b32 s59, s2, 13
    """)
    e(f's_add_u32 s59, s59, {WS_OUTP}')
    e("""
    v_add_u32 v251, s59, v3
    v_bfe_u32 v252, v1, 2, 1
    v_lshlrev_b32 v252, 10, v252
    v_and_b32 v13, 3, v1
    v_lshl_add_u32 v252, v13, 2, v252
    s_lshl_b32 s59, s2, 4
    v_add_u32 v252, s59, v252
    v_lshlrev_b32 v252, 1, v252
    """)
    for r in range(32, 64): e(f'v_mov_b32 v{r}, 0')
    e(f'v_mov_b32 v20, {f2u(-1e30):#x}')
    e('''
    v_mov_b32 v21, 0
    s_mov_b32 s54, 0
    s_waitcnt lgkmcnt(0)
    s_cmp_lt_u32 s68, 64
    s_cbranch_scc1 L_t0
    s_branch L_flush
    ''')
    e.c('out-of-line pieces of the tile loop: switch to the pool, pool-mode head')
    if o['tloc'] < 64:
        TL = o['tloc']; NP = 16*(64-TL)
        for S in SETS[:1]:
            tk = S['tk']
            e.lab(f'L_sw{tk}')
            e('s_mov_b32 s46, 1')
            e('v_mov_b32 v7, 0')
            e('s_mov_b64 exec, 1')
            e('global_atomic_add v6, v7, v30, s[50:51] sc0 sc1')
            e('s_mov_b64 exec, -1')
            e(f's_branch L_swret{tk}')
            e.lab(f'L_pool{tk}')
            e(f's_waitcnt vmcnt({o["wcnt"]})')
            e('v_readfirstlane_b32 s59, v6')
            for j in range(4):
                e(f'v_mfma_f32_16x16x32_bf16 v[8:11], {vr(S["KA"]+4*j)}, {vr(QR+4*j)}, ' + ('0' if j == 0 else 'v[8:11]'))
            e('s_and_b32 s44, s59, 15')
            e('s_lshl_b32 s44, s44, 19')
            e('s_lshr_b32 s60, s59, 4')
            e(f's_add_u32 s60, s60, {TL}')
            e('s_lshl_b32 s60, s60, 13')
            e('s_add_u32 s44, s44, s60')
            e('s_add_u32 s45, s44, 4096')
            e(f's_cmp_lt_u32 s59, {NP}')
            e(f's_cselect_b32 s{tk}, 0, 64')
            e(f's_cbranch_scc0 L_join{tk}')
            e('s_mov_b64 exec, 1')
            e('global_atomic_add v6, v7, v30, s[50:51] sc0 sc1')
            e('s_mov_b64 exec, -1')
            e(f's_branch L_join{tk}')
    e.c('==== tail: reduce the 4 waves (A in lanes 0..31, B in lanes 32..63 of head = wave), publish')
    e.lab('L_tail')
    stamp(6)
    e('v_mov_b32 v26, 0xfffff000')
    e('s_and_b32 s63, s42, 0xfff')
    e('s_waitcnt vmcnt(0) lgkmcnt(0)')
    e('s_barrier')
    stamp(7)
    for k in range(2):
        e(f'ds_read_b128 {vr(64+4*k)}, v241 offset:{R_ST + 16*k}')
    for w in range(4):
        e(f'ds_read_b128 {vr(72+4*w)}, v240 offset:{L_RES + w*2048}')
    e('s_waitcnt lgkmcnt(%d)' % (0 if stamps else 4))
    e("""
    v_max3_f32 v88, v64, v66, v68
    v_max_f32 v88, v88, v70
    v_sub_f32 v64, v64, v88
    v_sub_f32 v66, v66, v88
    v_sub_f32 v68, v68, v88
    v_sub_f32 v70, v70, v88
    v_exp_f32 v64, v64
    v_exp_f32 v66, v66
    v_exp_f32 v68, v68
    v_exp_f32 v70, v70
    v_mov_b32 v92, v88
    v_mul_f32 v90, v64, v65
    v_fmac_f32 v90, v66, v67
    v_fmac_f32 v90, v68, v69
    v_fmac_f32 v90, v70, v71
    v_mov_b32 v93, s42
    s_waitcnt lgkmcnt(0)
    """)
    for k in range(4): e(f'v_mul_f32 v{96+k}, v64, v{72+k}')
    for w in range(1, 4):
        for k in range(4): e(f'v_fmac_f32 v{96+k}, v{64+2*w}, v{72+4*w+k}')
    e('v_mov_b32 v94, v90')
    e('v_mov_b32 v95, s42')
    for k in range(4): e(f'v_and_or_b32 v{96+k}, v{96+k}, v26, s63')
    e('global_store_dwordx4 v242, v[96:99], s[28:29] sc1')
    e("""
    s_mov_b32 exec_lo, STATL
    s_mov_b32 exec_hi, STATL
    global_store_dwordx4 v243, v[92:95], s[28:29] sc1
    s_mov_b64 exec, -1
    """)
    stamp(8)
    e.c('combine the 16 splits of (problem = wave>>1, batch = wave&1, head hh): light poll on the statistics, then data + statistics')
    for p in range(2):
        for t in range(2):
            for kk in range(2):
                for h in range(2):
                    r = 128 + ((p*2+t)*2+kk)*4 + 2*h
                    e(f'ds_read_b64_tr_b16 v[{r}:{r+1}], v248 offset:{p*16384 + kk*8192 + h*1024 + t*32}')
    e(f's_mov_b32 s66, {SPIN}')
    e.lab('L_spoll')
    e("""
    global_load_dwordx4 v[100:103], v244, s[28:29] sc1
    s_waitcnt vmcnt(0)
    v_cmp_eq_u32 vcc, s42, v101
    v_cmp_eq_u32 s[64:65], s42, v103
    s_and_b64 vcc, vcc, s[64:65]
    s_and_b32 s59, vcc_lo, 0x000f000f
    s_and_b32 s60, vcc_hi, 0x000f000f
    s_bcnt1_i32_b32 s59, s59
    s_bcnt1_i32_b32 s60, s60
    s_add_u32 s59, s59, s60
    """)
    e(f's_cmp_ge_u32 s59, {o["p2min"]}')
    e('s_cbranch_scc1 L_sok')
    e('s_sub_u32 s66, s66, 1')
    e('s_cbranch_scc1 L_sok')
    e(f's_sleep {o["psleep"]}')
    e('s_branch L_spoll')
    e.lab('L_sok')
    stamp(9)
    e.lab('L_dpoll')
    D = 64
    e('global_load_dwordx4 v[100:103], v244, s[28:29] sc1')
    for i in range(4):
        va = 'v245' if i < 2 else 'v246'
        e(f'global_load_dwordx4 {vr(D+4*i)}, {va}, s[28:29] offset:{(i%2)*2048} sc1')
    e("""
    s_waitcnt vmcnt(4)
    v_max_f32_dpp v12, v100, v100 row_ror:2 row_mask:0xf bank_mask:0xf
    v_cmp_eq_u32 s[60:61], s42, v101
    s_nop 0
    v_max_f32_dpp v13, v12, v12 row_ror:1 row_mask:0xf bank_mask:0xf
    v_cmp_eq_u32 s[64:65], s42, v103
    v_mov_b32 v12, v13
    s_nop 1
    v_permlane16_swap_b32 v12, v13
    v_max_f32 v13, v13, v12
    v_mov_b32 v16, 0
    v_mov_b32 v12, v13
    s_nop 1
    v_permlane32_swap_b32 v12, v13
    v_max_f32 v13, v13, v12
    v_sub_f32 v14, v100, v13
    v_exp_f32 v14, v14
    v_mov_b32 v17, 0
    v_mul_f32 v15, v14, v102
    v_mov_b32 v8, 0
    v_mov_b32 v9, 0
    v_add_f32_dpp v12, v15, v15 row_ror:2 row_mask:0xf bank_mask:0xf
    s_and_b64 s[60:61], s[60:61], s[64:65]
    s_nop 0
    v_add_f32_dpp v15, v12, v12 row_ror:1 row_mask:0xf bank_mask:0xf
    s_nop 0
    v_mov_b32 v12, v15
    s_nop 1
    v_permlane16_swap_b32 v12, v15
    v_add_f32 v15, v15, v12
    s_nop 0
    v_mov_b32 v12, v15
    s_nop 1
    v_permlane32_swap_b32 v12, v15
    v_add_f32 v15, v15, v12
    v_rcp_f32 v15, v15
    s_nop 0
    v_mul_f32 v14, v14, v15
    s_waitcnt vmcnt(0)
    """)
    regs = list(range(D, D+16))
    e(f'v_bitop3_b32 v12, v{regs[0]}, v{regs[1]}, v{regs[2]} bitop3:0x80')
    e(f'v_or3_b32 v13, v{regs[0]}, v{regs[1]}, v{regs[2]}')
    k = 3
    while k + 1 < 16:
        e(f'v_bitop3_b32 v12, v12, v{regs[k]}, v{regs[k+1]} bitop3:0x80')
        e(f'v_or3_b32 v13, v13, v{regs[k]}, v{regs[k+1]}'); k += 2
    e(f'v_and_b32 v12, v12, v{regs[15]}')
    e(f'v_or_b32 v13, v13, v{regs[15]}')
    e("""
    v_xor_b32 v12, s63, v12
    v_xor_b32 v13, s63, v13
    v_or_b32 v12, v12, v13
    v_and_b32 v12, 0xfff, v12
    v_cmp_eq_u32 vcc, 0, v12
    s_and_b64 vcc, vcc, s[60:61]
    s_cmp_eq_u64 vcc, -1
    s_cbranch_scc1 L_dok
    s_sub_u32 s66, s66, 1
    s_cbranch_scc1 L_dok
    s_branch L_dpoll
    """)
    e.lab('L_dok')
    acc = [8, 9, 16, 17]
    for i in range(4):
        for k in range(4):
            e(f'v_fmac_f32_dpp v{acc[k]}, v14, v{D+4*i+k} row_newbcast:{i} row_mask:0xf bank_mask:0xf')
    for k in range(4): e(f'v_mov_b32 v{20+k}, v{acc[k]}')
    e('s_nop 0')
    for k in range(4): e(f'v_permlane16_swap_b32 v{20+k}, v{acc[k]}')
    for k in range(4): e(f'v_add_f32 v{acc[k]}, v{acc[k]}, v{20+k}')
    for k in range(4): e(f'v_mov_b32 v{20+k}, v{acc[k]}')
    e('s_nop 0')
    for k in range(4): e(f'v_permlane32_swap_b32 v{20+k}, v{acc[k]}')
    for k in range(4): e(f'v_add_f32 v{acc[k]}, v{acc[k]}, v{20+k}')
    e('v_cvt_pk_bf16_f32 v18, v8, v9')
    e('v_cvt_pk_bf16_f32 v19, v16, v17')
    e(f'ds_write_b16 v247, v18 offset:{R_O}')
    e(f'ds_write_b16_d16_hi v247, v18 offset:{R_O+8}')
    e(f'ds_write_b16 v247, v19 offset:{R_O+16}')
    e(f'ds_write_b16_d16_hi v247, v19 offset:{R_O+24}')
    e.c('out-projection: 64 input features of head h onto 2 x 16 columns per wave, both problems')
    e('s_waitcnt lgkmcnt(0)')
    e('s_barrier')
    stamp(10)
    for p in range(2):
        for kk in range(2):
            e(f'ds_read_b128 {vr(96+8*p+4*kk)}, v249 offset:{R_O + p*256 + kk*64}')
    e('s_waitcnt lgkmcnt(0)')
    for kk in range(2):
        for p in range(2):
            for t in range(2):
                d = 8 + 4*(p*2+t)
                e(f'v_mfma_f32_16x16x32_bf16 {vr(d)}, {vr(128 + ((p*2+t)*2+kk)*4)}, {vr(96+8*p+4*kk)}, ' + ('0' if kk == 0 else vr(d)))
    e("""
    s_mov_b32 exec_lo, 0x00030003
    s_mov_b32 exec_hi, 0x00030003
    s_nop 2
    """)
    for r in range(8, 24): e(f'v_and_or_b32 v{r}, v{r}, v26, s63')
    e("""
    global_store_dwordx4 v250, v[8:11], s[28:29] sc1
    global_store_dwordx4 v253, v[12:15], s[28:29] sc1
    global_store_dwordx4 v254, v[16:19], s[28:29] sc1
    global_store_dwordx4 v255, v[20:23], s[28:29] sc1
    s_mov_b64 exec, -1
    """)
    stamp(11)
    e.c('final sum over the 32 heads: wave 0 of workgroups 0..63, 16 columns x 2 batches each')
    e('s_cmp_lg_u32 s3, 0')
    e('s_cbranch_scc1 ' + ('L_fin' if stamps else 'L_end'))
    e('s_cmp_ge_u32 s2, %d' % (32 if o['aonly'] else 64))
    e('s_cbranch_scc1 L_fin')
    e(f's_mov_b32 s66, {SPIN}')
    e('v_add_u32 v6, 4096, v251')
    e.lab('L_opoll')
    for i in range(8):
        va = 'v251' if i < 4 else 'v6'
        e(f'global_load_dwordx4 {vr(64+4*i)}, {va}, s[28:29] offset:{(i%4)*1024} sc1')
    e('s_waitcnt vmcnt(0)')
    e('v_bitop3_b32 v12, v64, v65, v66 bitop3:0x80')
    e('v_or3_b32 v13, v64, v65, v66')
    k = 67
    while k + 1 < 96:
        e(f'v_bitop3_b32 v12, v12, v{k}, v{k+1} bitop3:0x80')
        e(f'v_or3_b32 v13, v13, v{k}, v{k+1}'); k += 2
    e('v_and_b32 v12, v12, v95')
    e('v_or_b32 v13, v13, v95')
    e("""
    v_xor_b32 v12, s63, v12
    v_xor_b32 v13, s63, v13
    v_or_b32 v12, v12, v13
    v_and_b32 v12, 0xfff, v12
    v_cmp_eq_u32 vcc, 0, v12
    s_cmp_eq_u64 vcc, -1
    s_cbranch_scc1 L_ook
    s_sub_u32 s66, s66, 1
    s_cbranch_scc1 L_ook
    s_branch L_opoll
    """)
    e.lab('L_ook')
    for k in range(4):
        e(f'v_add_f32 v{64+k}, v{64+k}, v{68+k}')
        e(f'v_add_f32 v{72+k}, v{72+k}, v{76+k}')
        e(f'v_add_f32 v{80+k}, v{80+k}, v{84+k}')
        e(f'v_add_f32 v{88+k}, v{88+k}, v{92+k}')
    for k in range(4):
        e(f'v_add_f32 v{64+k}, v{64+k}, v{72+k}')
        e(f'v_add_f32 v{80+k}, v{80+k}, v{88+k}')
    for k in range(4): e(f'v_add_f32 v{64+k}, v{64+k}, v{80+k}')
    e('s_nop 0')
    for k in range(4): e(f'v_add_f32_dpp v{68+k}, v{64+k}, v{64+k} row_ror:8 row_mask:0xf bank_mask:0xf')
    for k in range(4): e(f'v_mov_b32 v{72+k}, v{68+k}')
    e('s_nop 0')
    for k in range(4): e(f'v_permlane16_swap_b32 v{72+k}, v{68+k}')
    for k in range(4): e(f'v_add_f32 v{68+k}, v{68+k}, v{72+k}')
    for k in range(4): e(f'v_mov_b32 v{72+k}, v{68+k}')
    e('s_nop 0')
    for k in range(4): e(f'v_permlane32_swap_b32 v{72+k}, v{68+k}')
    for k in range(4): e(f'v_add_f32 v{68+k}, v{68+k}, v{72+k}')
    e("""
    v_cvt_pk_bf16_f32 v64, v68, v69
    v_cvt_pk_bf16_f32 v65, v70, v71
    s_mov_b64 exec, 0xff
    global_store_dwordx2 v252, v[64:65], s[24:25] OUTPOL
    s_mov_b64 exec, -1
    """)
    e('''
    s_cmp_lg_u32 s2, 0
    s_cbranch_scc1 L_fin
    s_add_u32 s59, s43, 1
    v_mov_b32 v7, s59
    v_mov_b32 v8, 0
    s_mov_b64 exec, 1
    ''')
    e(f'global_store_dword v8, v7, s[28:29] offset:{WS_EPOCH} sc1')
    e('s_mov_b64 exec, -1')
    e.lab('L_fin')
    if o['holdus']:
        e('s_cmp_lg_u32 s2, 0')
        e('s_cbranch_scc1 L_end')
        e('s_waitcnt vmcnt(0) lgkmcnt(0)')
        e('s_memrealtime s[72:73]')
        e('s_waitcnt lgkmcnt(0)')
        e('s_sub_u32 s74, s72, s70')
        e(f's_mul_i32 s74, s74, {o["holdmul"]}')
        e(f's_add_u32 s74, s74, {o["holdus"]*100}')
        e.lab('L_hold')
        e('s_memrealtime s[72:73]')
        e('s_waitcnt lgkmcnt(0)')
        e('s_sub_u32 s75, s72, s70')
        e('s_cmp_lt_u32 s75, s74')
        e('s_cbranch_scc1 L_hold')
    if stamps:
        e('s_memrealtime s[94:95]')
        e('s_waitcnt lgkmcnt(0)')
        e('s_lshl_b32 s59, s2, 3')
        e('s_add_u32 s59, s59, s3')
        e(f's_mul_i32 s59, s59, {16*8}')
        e(f's_add_u32 s59, s59, {WS_STAMP}')
        e('v_mov_b32 v6, s59')
        e('s_mov_b64 exec, 1')
        for i in range(16):
            e(f'v_mov_b32 v{10+2*i}, s{70+2*i}')
            e(f'v_mov_b32 v{11+2*i}, s{71+2*i}')
        for i in range(16):
            e(f'global_store_dwordx2 v6, v[{10+2*i}:{11+2*i}], s[28:29] offset:{8*i}')
    e.lab('L_end')
    e('s_endpgm')
    e.raw('.section .rodata,"a"')
    e.raw('.p2align 6')
    e.raw(f'.amdhsa_kernel {KN}_kernel')
    e.raw('  .amdhsa_next_free_vgpr 256')
    e.raw('  .amdhsa_next_free_sgpr 102')
    e.raw('  .amdhsa_accum_offset 256')
    e.raw('  .amdhsa_group_segment_fixed_size 0')
    e.raw('  .amdhsa_kernarg_size 104')
    e.raw('  .amdhsa_user_sgpr_count 2')
    e.raw('  .amdhsa_user_sgpr_kernarg_segment_ptr 1')
    e.raw('  .amdhsa_system_sgpr_workgroup_id_x 1')
    e.raw('.end_amdhsa_kernel')
    open(path, 'w').write(('\n'.join(e.L) + '\n').replace('OUTPOL', o['outpol']).replace('STATL', hex(o['statl'])))

if __name__ == '__main__':
    gen('y_ff.s')
    gen('y_01.s', opts=dict(statl=1))
    gen('y_0f.s', opts=dict(statl=0xf))
```
